```python
import torch

def _softmax(x, axis=-1):
    return torch.softmax(x, dim=axis)

def _gelu(x):
    return torch.nn.functional.gelu(x, approximate='tanh')

def _silu(x):
    return torch.nn.functional.silu(x)

def _sigmoid(x):
    return torch.sigmoid(x)

def _layernorm(x, axis=-1, eps=1e-05):
    m = x.mean(dim=axis, keepdim=True)
    v = x.var(dim=axis, keepdim=True, unbiased=False)
    return (x - m) / torch.sqrt(v + eps)

def _scatter_add(tgt, idx, src, axis=0):
    return tgt.clone().index_add_(axis, idx, src)

def _segment_sum(src, seg, n):
    out = torch.zeros((n,) + src.shape[1:], dtype=src.dtype)
    return out.index_add_(0, seg, src)

def _pad(x, pw):
    flat = tuple((v for pair in reversed(pw) for v in pair))
    return torch.nn.functional.pad(x, flat)
kernel_name = 'standalone__varlen_attn_packed__ragged'

def setup_inputs():

    _w = lambda a: (lambda t: t.to(torch.bfloat16) if t.is_floating_point() else t)(torch.as_tensor(a))
    cu = torch.tensor([0, 580, 1085, 2082, 2797, 3498, 4341, 5079, 6042], dtype=torch.int64)
    T, H, D = (int(cu[-1]), 16, 128)
    return {'q': _w((lambda *s: torch.randn(*s, dtype=torch.bfloat16) * 0.8)(T, H, D)), 'k': _w((lambda *s: torch.randn(*s, dtype=torch.bfloat16) * 0.8)(T, H, D)), 'v': _w((lambda *s: torch.randn(*s, dtype=torch.bfloat16) * 0.05)(T, H, D)), 'cu': _w(cu)}

def reference(q, k, v, cu):
    T, H, D = q.shape
    out = torch.zeros_like(q)
    scale = D ** (-0.5)
    outs = []
    for i in range(len(cu) - 1):
        s, e = (int(cu[i]), int(cu[i + 1]))
        qi, ki, vi = (q[s:e].clone(), k[s:e].clone(), v[s:e].clone())
        p = _softmax(torch.einsum('qhd,khd->hqk', qi, ki) * scale, axis=-1)
        outs.append(torch.einsum('hqk,khd->qhd', p, vi))
    return torch.concatenate(outs, axis=0)
```

```python
import re

TRANS = ("v_exp_f32", "v_log_f32", "v_rcp_f32", "v_rsq_f32", "v_sqrt_f32")


def regs(tok):
    tok = tok.strip()
    tok = tok.lstrip("-")
    if tok.startswith("abs("):
        tok = tok[4:-1]
    m = re.fullmatch(r"([vas])\[(\d+):(\d+)\]", tok)
    if m:
        return [(m.group(1), i) for i in range(int(m.group(2)), int(m.group(3)) + 1)]
    m = re.fullmatch(r"([vas])(\d+)", tok)
    if m:
        return [(m.group(1), int(m.group(2)))]
    if tok == "vcc":
        return [("s", "vcc")]
    if tok == "m0":
        return [("s", "m0")]
    if tok == "exec":
        return [("s", "exec")]
    return []


class I:
    def __init__(self, text, tag=None):
        self.text = text
        self.tag = tag
        t = text.split(";")[0].strip()
        self.op = t.split()[0] if t else ""
        rest = t[len(self.op):].strip()
        ops = [x.strip() for x in rest.split(",")] if rest else []
        ops = [x.split()[0] if x.split() else x for x in ops]
        self.ops = ops
        op = self.op
        self.reads, self.writes = set(), set()
        self.A = self.B = self.C = self.D = []
        self.states = 1
        if op.endswith(":") or op.startswith(".") or op == "":
            self.kind = "label"
            self.states = 0
        elif op.startswith("v_mfma"):
            self.kind = "mfma"
            self.D, self.A, self.B, self.C = regs(ops[0]), regs(ops[1]), regs(ops[2]), regs(ops[3])
            self.writes = set(self.D)
            self.reads = set(self.A) | set(self.B) | set(self.C)
            self.passes = 4 if "16x16x32" in op else 8
        elif op.startswith("v_permlane"):
            self.kind = "perm"
            self.reads = set(regs(ops[0])) | set(regs(ops[1]))
            self.writes = set(self.reads)
        elif op.startswith("v_cmp"):
            self.kind = "valu"
            self.writes = set(regs(ops[0]))
            for o in ops[1:]:
                self.reads |= set(regs(o))
        elif op.startswith("v_readfirstlane") or op.startswith("v_readlane"):
            self.kind = "rfl"
            self.writes = set(regs(ops[0]))
            for o in ops[1:]:
                self.reads |= set(regs(o))
        elif op.startswith("v_"):
            self.kind = "trans" if op.replace("_e32", "").replace("_e64", "") in TRANS else "valu"
            self.writes = set(regs(ops[0]))
            for o in ops[1:]:
                self.reads |= set(regs(o))
            if op.startswith("v_fmac"):
                self.reads |= self.writes
        elif op.startswith("ds_"):
            self.kind = "ds"
            if op.startswith("ds_read"):
                self.writes = set(regs(ops[0]))
                self.reads = set(regs(ops[1]))
            else:
                for o in ops:
                    self.reads |= set(regs(o))
        elif op.startswith("buffer_") or op.startswith("global_"):
            lds = " lds" in (" " + t)
            self.kind = "dma" if lds else "vmem"
            if lds:
                for o in ops:
                    self.reads |= set(regs(o))
                self.reads.add(("s", "m0"))
            elif "load" in op:
                self.writes = set(regs(ops[0]))
                for o in ops[1:]:
                    self.reads |= set(regs(o))
            else:
                for o in ops:
                    self.reads |= set(regs(o))
                self.store_data = set(regs(ops[0])) if op.startswith("buffer_") else set(regs(ops[1]))
        elif op == "s_nop":
            self.kind = "nop"
            self.states = int(ops[0]) + 1
        elif op in ("s_waitcnt", "s_barrier", "s_endpgm", "s_setprio"):
            self.kind = "wait"
        elif op.startswith("s_cbranch") or op in ("s_branch", "s_setpc_b64", "s_call_b64"):
            self.kind = "branch"
            if "vcc" in op:
                self.reads.add(("s", "vcc"))
        elif op.startswith("s_"):
            self.kind = "salu"
            if op.startswith("s_cmp"):
                for o in ops:
                    self.reads |= set(regs(o))
            else:
                self.writes = set(regs(ops[0])) if ops else set()
                for o in ops[1:]:
                    self.reads |= set(regs(o))
        else:
            raise ValueError("unknown instr: " + text)

    def __repr__(self):
        return self.text


VAL = ("valu", "trans", "perm", "rfl")


def need(p, c):
    n = 0
    pw = p.writes
    if p.kind == "mfma":
        big = {4: 8, 8: 12}[p.passes]
        D = set(p.D)
        if c.kind == "mfma":
            if D & (set(c.A) | set(c.B)):
                n = max(n, big)
            if D & set(c.C):
                if not (p.D == c.C and p.passes == c.passes):
                    n = max(n, {4: 6, 8: 10}[p.passes])
            if D & set(c.D) and not (p.D == c.C):
                n = max(n, 0)
        elif c.kind in VAL or c.kind in ("ds", "vmem", "dma"):
            if D & (c.reads | c.writes):
                n = max(n, big)
        if c.kind in VAL and set(p.C) & c.writes:
            n = max(n, {4: 3, 8: 7}[p.passes])
    if p.kind in VAL:
        vw = {r for r in pw if r[0] in "va"}
        sw = {r for r in pw if r[0] == "s"}
        if c.kind == "mfma" and vw & c.reads:
            n = max(n, 2)
        if c.kind == "perm" and vw & c.reads:
            n = max(n, 2)
        if c.kind == "rfl" and vw & c.reads:
            n = max(n, 1)
        if p.kind == "trans" and c.kind in VAL and c.kind != "trans" and vw & c.reads:
            n = max(n, 1)
        if p.kind == "trans" and c.kind == "trans" and vw & c.reads:
            n = max(n, 1)
        if sw & c.reads:
            if c.kind in ("vmem", "dma"):
                n = max(n, 5)
            elif c.kind in VAL:
                n = max(n, 2)
        if c.op.startswith("v_cndmask") and ("s", "vcc") in sw and "vcc" in c.text:
            n = max(n, 2)
    if p.kind == "salu" and ("s", "m0") in pw and c.kind == "dma":
        n = max(n, 1)
    if p.kind == "vmem" and hasattr(p, "store_data") and len(p.store_data) >= 3:
        if p.store_data & c.writes:
            n = max(n, 2)
    return n


WINDOW = 14


def check(seq, fix=False, name=""):
    out = []
    for ins in seq:
        if ins.kind != "label":
            dist = 0
            worst = 0
            for p in reversed(out):
                if p.kind == "label":
                    continue
                n = need(p, ins)
                if n - dist > worst:
                    worst = n - dist
                    culprit = p
                dist += p.states
                if dist >= WINDOW:
                    break
            if worst > 0:
                if not fix:
                    raise RuntimeError("%s: hazard: '%s' -> '%s' short by %d" % (name, culprit.text, ins.text, worst))
                out.append(I("s_nop %d" % (worst - 1)))
        out.append(ins)
    return out
```

```python
import sys, struct, math
from isa import I, check

KNAME = "standalone__varlen_attn_packed__ragged_kernel"
CU = [0, 580, 1085, 2082, 2797, 3498, 4341, 5079, 6042]

R = 9
SLOT = 16640
WREG = 4160
K1OFF, V0OFF, V1OFF = 1056, 2080, 3112
FLAG = R * SLOT
LDS_BYTES = FLAG + 1280

vT0 = 0
vKa, vVa, vo0, vo1, vo3, vOst, vQd, vPub, vChk, vOne, vFlag, vBad = range(1, 13)
vT1, vT2, vT3 = 13, 14, 15
vMask = 16
vS = 24
vP = 40
vL = 48
vT4 = 58
vO = 64
aK = 0
aV = 64
aOnes = 128
aL = 132
aQ = 160
sA, sB, sO_ = 4, 8, 12
sQp, sKp, sVp, sQp2 = 16, 18, 20, 22
sSoff, sStride, sCnt, sSeg = 24, 25, 26, 27
sWb, sMlim, sRc, sDelta, sLoop, sThr, sPos, sNeg = 28, 29, 30, 31, 32, 33, 34, 35
sJ = 36
sJ2 = 41
sC = 46
sJ1 = 52
sHave2, sLink, sCc, sNext, sTmp, sTab, sTd, sW = 57, 58, 60, 62, 63, 66, 68, 72
sT2, sT3 = 64, 65
sSt = 73
SCALE = math.log2(math.e) / math.sqrt(128.0)
SCALE_BITS = struct.unpack("<I", struct.pack("<f", SCALE))[0]
LO_BITS = (127 - 40) << 23
HI_BITS = (127 + 40) << 23


class Opt:
    sync = "flags"
    ntkv = ""
    nto = ""
    nqs = (2, 3, 4, 5)
    ones = {1: 1, 2: 2, 3: 3, 4: 2, 5: 2, 6: 1}
    stamp = False


def vr(b, n=1):
    return "v%d" % b if n == 1 else "v[%d:%d]" % (b, b + n - 1)


def ar(b, n=1):
    return "a%d" % b if n == 1 else "a[%d:%d]" % (b, b + n - 1)


def sr(b, n=1):
    return "s%d" % b if n == 1 else "s[%d:%d]" % (b, b + n - 1)


def qreg(nq, i, ks):
    free = (256 - (vO + 32 * nq)) // 16
    if i < free:
        return "v", vO + 32 * nq + 16 * i + 4 * ks
    return "a", aQ + 16 * (i - free) + 4 * ks


def qop(nq, i, ks):
    f, b = qreg(nq, i, ks)
    return vr(b, 4) if f == "v" else ar(b, 4)


def ones_blocks(nq, k):
    if k >= nq:
        return list(range(nq))
    if k == 1:
        return [0]
    if k == 2:
        return [0, (nq + 1) // 2]
    return [0] + list(range(nq - k + 1, nq))


def mf(d, a, b, c):
    return I("v_mfma_f32_16x16x32_bf16 %s, %s, %s, %s" % (d, a, b, c))


def qk(nq, i, kbuf, sset, masked):
    out = []
    for b in range(2):
        d = vr(vS + 8 * sset + 4 * b, 4)
        for ks in range(4):
            c = d if ks else (vr(vMask + 4 * b, 4) if masked else "0")
            out.append(mf(d, ar(aK + 32 * kbuf + 16 * b + 4 * ks, 4), qop(nq, i, ks), c))
    return out


def pv(i, vbuf, pset, zero):
    out = []
    for db in range(8):
        d = vr(vO + 32 * i + 4 * db, 4)
        out.append(mf(d, ar(aV + 32 * vbuf + 4 * db, 4), vr(vP + 4 * pset, 4), "0" if zero else d))
    return out


def onesm(slot, pset, zero):
    d = ar(aL + 4 * slot, 4)
    return mf(d, ar(aOnes, 4), vr(vP + 4 * pset, 4), "0" if zero else d)


def EXP(sset, j):
    r = vS + 8 * sset + j
    return I("v_exp_f32 v%d, v%d" % (r, r))


def CVT(sset, j):
    r = vS + 8 * sset + 2 * j
    return I("v_cvt_pk_bf16_f32 v%d, v%d, v%d" % (vP + 4 * sset + j, r, r + 1))


def kread(buf, b, ks):
    return I("ds_read_b128 %s, v%d offset:%d" % (ar(aK + 32 * buf + 16 * b + 4 * ks, 4), vKa, b * 512 + ks * 64))


def vread(buf, db, jj):
    return I("ds_read_b64_tr_b16 %s, v%d offset:%d" % (ar(aV + 32 * buf + 4 * db + 2 * jj, 2), vVa,
                                                      jj * 512 + 64 * (db >> 1) + 8 * (db & 1)))


def dmas(o):
    p = (" " + o.ntkv) if o.ntkv else ""
    return [I("buffer_load_dwordx4 v%d, %s, s%d offen%s lds" % (vo0, sr(sA, 4), sSoff, p)),
            I("buffer_load_dwordx4 v%d, %s, s%d offen offset:%d%s lds" % (vo1, sr(sA, 4), sSoff, K1OFF, p)),
            I("buffer_load_dwordx4 v%d, %s, s%d offen offset:%d%s lds" % (vo0, sr(sB, 4), sSoff, V0OFF, p)),
            I("buffer_load_dwordx4 v%d, %s, s%d offen offset:%d%s lds" % (vo3, sr(sB, 4), sSoff, V1OFF, p))]


class Gen:
    def __init__(self, o):
        self.o = o
        self.stubs = []
        self.nlab = 0

    def lab(self, p):
        self.nlab += 1
        return "L_%s_%d" % (p, self.nlab)

    def m0_adv(self):
        return [I("s_add_u32 m0, m0, s%d" % sPos), I("s_cmp_eq_u32 m0, s%d" % sMlim), I("s_cselect_b32 m0, s%d, m0" % sWb)]

    def item_adv(self):
        st, ret = self.lab("seg"), self.lab("segret")
        self.stubs += [I(st + ":"), I("s_call_b64 %s, L_segswitch" % sr(sLink, 2)), I("s_branch " + ret)]
        return [I("s_add_u32 s%d, s%d, s%d" % (sSoff, sSoff, sStride)),
                I("s_sub_u32 s%d, s%d, 1" % (sCnt, sCnt)),
                I("s_cbranch_scc1 " + st, tag=ret)]

    def ring_adv_s(self):
        return [I("s_sub_u32 s%d, s%d, 1" % (sRc, sRc)),
                I("s_cselect_b32 s%d, s%d, s%d" % (sDelta, sNeg, sPos)),
                I("s_cselect_b32 s%d, %d, s%d" % (sRc, R - 1, sRc))]

    def issue_item(self):
        out = dmas(self.o) + self.m0_adv() + self.item_adv()
        return self.expand(out)

    @staticmethod
    def expand(seq):
        out = []
        for x in seq:
            out.append(x)
            if x.kind == "branch" and x.tag:
                out.append(I(x.tag + ":"))
        return out

    def ring_adv(self):
        return self.ring_adv_s() + [I("v_add_u32 v%d, s%d, v%d" % (vKa, sDelta, vKa)), I("v_add_u32 v%d, s%d, v%d" % (vVa, sDelta, vVa))]

    def body(self, nq, par, first=False, last=False, tail=None):
        o = self.o
        k = o.ones[nq]
        ob = ones_blocks(nq, k)
        addb = [i for i in range(nq) if i not in ob]
        sset = lambda t, i: ((par ^ t) * nq + i) & 1
        gaps = []
        vstart = []
        flex = []

        def gap(m, E=None, fixed=None):
            gaps.append(dict(m=m, E=E, fixed=fixed or [], scal=[], flex=[]))
            return len(gaps) - 1

        lcount = {}

        def ADD(i, ss, j):
            n = lcount.get(i, 0)
            lcount[i] = n + 1
            l = vL + 2 * addb.index(i) + (n & 1)
            r = vS + 8 * ss + j
            if first and n < 2:
                return I("v_mov_b32 v%d, v%d" % (l, r))
            return I("v_add_f32 v%d, v%d, v%d" % (l, l, r))

        adds = []
        for v in range(nq):
            vstart.append(len(gaps))
            nxt_t, nxt_i = (0, v + 1) if v < nq - 1 else (1, 0)
            has_qk = not (last and v == nq - 1)
            sc, sn = sset(0, v), sset(nxt_t, nxt_i)
            qm = qk(nq, nxt_i, par ^ nxt_t, sn, first and nxt_t == 0) if has_qk else [None] * 8
            pm = pv(v, par, sc, first)
            for g in range(16):
                m = qm[g] if g < 8 else pm[g - 8]
                E, fixed = None, []
                if g in (1, 3, 5):
                    E = (v, sc, 5 + g // 2)
                elif g in (7, 9, 11, 13, 15) and has_qk:
                    E = (nxt_i if nxt_t == 0 else -1, sn, (g - 7) // 2)
                if g == 2:
                    fixed = [CVT(sc, 2)]
                if g == 6:
                    fixed = [CVT(sc, 3)]
                if g == 10 and has_qk:
                    fixed = [CVT(sn, 0)]
                if g == 14 and has_qk:
                    fixed = [CVT(sn, 1)]
                gi = gap(m, EXP(E[1], E[2]) if E else None, fixed)
                if E and E[0] in addb:
                    adds.append((E[0], gi, E[1], E[2]))
            if v in ob:
                gap(onesm(ob.index(v), sc, first))
        ng = len(gaps)
        vstart.append(ng)
        for (i, gi, ss, j) in adds:
            dl = ng - 1
            if i + 1 < nq:
                dl = vstart[i + 1] - 1 + (4 if j >= 4 else 0)
            flex.append([gi + 1, dl, 1, 5, ("add", i, ss, j)])
        lastE = max(i for i, g in enumerate(gaps) if g["E"] is not None)
        endwait = None
        if not last:
            kdl = vstart[nq - 1] - 5
            for b in range(2):
                for ks in range(4):
                    flex.append([0, kdl, 1, 1, kread(par ^ 1, b, ks)])
            vdl = ng - 9
            for db in range(8):
                for jj in range(2):
                    flex.append([0, vdl, 1, 2, vread(par ^ 1, db, jj)])
        ddl = max(ng // 2 - 4, 6)
        for d in dmas(o):
            flex.append([0, ddl, 2, 0, d])
        pend = sorted(flex, key=lambda f: (f[1], f[3]))
        order_ds = []
        placed = {}
        slotgaps = [i for i, g in enumerate(gaps) if g["E"] is None]

        def remaining_cap(gi, upto):
            return sum(2 - len(gaps[x]["fixed"]) for x in slotgaps if gi <= x <= upto)

        extra = []
        flags = o.sync == "flags" and not last
        state = dict(kdone=None, vdone=None, ddone=None)
        nk = nv = nd = 0
        for gi in range(ng):
            g = gaps[gi]
            cap = 0 if g["E"] is not None else 2 - len(g["fixed"])
            if g["m"] is None:
                cap = 0 if g["E"] is not None else 2 - len(g["fixed"])
            while True:
                ready = [f for f in pend if f[0] <= gi]
                if not ready:
                    break
                pick = None
                for f in ready:
                    if f[2] <= cap:
                        pick = f
                        break
                    if f[2] == 2 and cap == 1 and f[1] - gi < 4:
                        continue
                forced = [f for f in ready if f[1] <= gi]
                if pick is None and forced:
                    pick = forced[0]
                if pick is None:
                    break
                if pick[2] == 1 and cap == 2:
                    two = [f for f in ready if f[2] == 2]
                    if two:
                        pick = two[0]
                pend.remove(pick)
                cap -= pick[2]
                ins = pick[4]
                if isinstance(ins, tuple) and ins[0] == "add":
                    ins = ADD(ins[1], ins[2], ins[3])
                g["flex"].append(ins)
                if ins.op == "ds_read_b128":
                    nk += 1
                    if nk == 8:
                        state["kdone"] = gi
                        pend.append([gi + 1, ng - 1, 1, 6, I("v_add_u32 v%d, s%d, v%d" % (vKa, sDelta, vKa))])
                elif ins.op == "ds_read_b64_tr_b16":
                    nv += 1
                    if nv == 16:
                        state["vdone"] = gi
                        pend.append([gi + 1, ng - 1, 1, 6, I("v_add_u32 v%d, s%d, v%d" % (vVa, sDelta, vVa))])
                elif ins.kind == "dma":
                    nd += 1
                    if nd == 4:
                        state["ddone"] = gi
                        if flags:
                            pg = max(gi + 2, ng // 2 - 2)
                            pend.append([pg, pg + 4, 1, 0, I("ds_add_u32 v%d, v%d" % (vPub, vOne))])
                            pend.append([ng - 11, ng - 8, 1, 0, I("ds_read_b32 v%d, v%d" % (vFlag, vChk))])
                pend.sort(key=lambda f: (f[1], f[3]))
        assert not pend, pend
        egaps = [i for i, g in enumerate(gaps) if g["E"] is not None]
        used = set()

        def put(chain, lo, hi=None):
            gi = lo - 1
            for ins in chain:
                cand = [x for x in egaps if x > gi and x not in used]
                if not cand:
                    cand = [x for x in range(ng) if x > gi and x not in used] or [ng - 1]
                gi = cand[0]
                used.add(gi)
                gaps[gi]["scal"].append(ins)
            if hi is not None:
                assert gi <= hi, (gi, hi, chain)
            return gi

        vm = "vmcnt(%d)" % (4 * (R - 3))
        if not last:
            e_last = egaps[-1]
            e_prev = egaps[-2]
            used.add(e_last)
            used.add(e_prev)
            kw = max(x for x in egaps if x < vstart[nq - 1])
            used.add(kw)
            nds = sum(1 for x in range(kw) for f in gaps[x]["flex"] if f.kind == "ds")
            seq = [f for x in range(kw) for f in gaps[x]["flex"] if f.kind == "ds"]
            lastk = max(i for i, f in enumerate(seq) if f.op == "ds_read_b128")
            gaps[kw]["scal"].append(I("s_waitcnt lgkmcnt(%d)" % min(15, len(seq) - 1 - lastk)))
            firstupd = min(x for x in range(ng) for f in gaps[x]["flex"] if f.op == "v_add_u32")
            p = put(self.ring_adv_s(), 0, firstupd - 1)
            if flags:
                pubg = [x for x in range(ng) for f in gaps[x]["flex"] if f.op == "ds_add_u32"][0]
                w = max(x for x in egaps if x < pubg and x not in used)
                assert w > state["ddone"], (w, state)
                used.add(w)
                gaps[w]["scal"].append(I("s_waitcnt " + vm))
                spin, ret = self.lab("spin"), self.lab("spinret")
                self.stubs += [I(spin + ":"), I("ds_read_b32 v%d, v%d" % (vFlag, vChk)), I("s_waitcnt lgkmcnt(0)"),
                               I("v_cmp_gt_u32 vcc, s%d, v%d" % (sThr, vFlag)), I("s_nop 4"),
                               I("s_cbranch_vccnz " + spin), I("s_branch " + ret)]
                gaps[e_prev]["scal"].append(I("s_waitcnt lgkmcnt(0)"))
                gaps[e_prev + 1]["flex"].append(I("v_cmp_gt_u32 vcc, s%d, v%d" % (sThr, vFlag)))
                gaps[e_last]["scal"].append(I("s_cbranch_vccnz " + spin, tag=ret))
                put([I("s_add_u32 s%d, s%d, 1" % (sThr, sThr))], p + 1, e_prev)
            else:
                gaps[e_last]["scal"].append(I("s_waitcnt %s lgkmcnt(0)" % vm))
                gaps[e_last]["scal"].append(I("s_barrier"))
        p = put(self.m0_adv(), state["ddone"] + 1)
        p = put(self.item_adv(), p + 1)
        tail = tail or []
        if tail:
            lastscc = max(x for x in used if any(s.kind == "salu" for s in gaps[x]["scal"]))
            cand = [x for x in egaps if x > lastscc and x not in used]
            if cand:
                gaps[cand[0]]["scal"].append(tail[0])
                tail = tail[1:]
        out = []
        over = 0
        for gi, g in enumerate(gaps):
            if g["m"] is not None:
                out.append(g["m"])
            out += g["scal"]
            mem = [f for f in g["flex"] if f.kind in ("ds", "dma")]
            oth = [f for f in g["flex"] if f.kind not in ("ds", "dma")]
            out += mem
            if g["E"] is not None:
                out.append(g["E"])
            out += g["fixed"] + oth
            c = sum(2 if f.kind == "dma" else 1 for f in g["flex"]) + len(g["fixed"]) + (2 if g["E"] is not None else 0)
            over += max(0, c - 2)
        out += tail
        sys.stderr.write("body nq=%d par=%d first=%d last=%d gaps=%d overflow=%d\n" % (nq, par, first, last, ng, over))
        return self.expand(out)

    def prescale(self, nq, i, raw):
        out = []
        for ks in range(4):
            f, dst = qreg(nq, i, ks)
            for j in range(4):
                x = raw + 4 * ks + j
                t = vS + 2 * ((4 * ks + j) % 8)
                out.append([I("v_lshlrev_b32 v%d, 16, v%d" % (t, x)),
                            I("v_and_b32 v%d, 0xffff0000, v%d" % (t + 1, x)),
                            I("v_pk_mul_f32 %s, %s, %s" % (vr(t, 2), vr(t, 2), sr(sCc, 2)))] +
                           ([I("v_cvt_pk_bf16_f32 v%d, v%d, v%d" % (dst + j, t, t + 1))] if f == "v" else
                            [I("v_cvt_pk_bf16_f32 v%d, v%d, v%d" % (t, t, t + 1)),
                             I("v_accvgpr_write_b32 a%d, v%d" % (dst + j, t))]))
        res = []
        for base in range(0, 16, 4):
            grp = out[base:base + 4]
            for s in range(max(len(c) for c in grp)):
                for c in grp:
                    if s < len(c):
                        res.append(c[s])
        return res

    def masks(self):
        out = [I("v_mbcnt_lo_u32_b32 v%d, -1, 0" % vT1), I("v_mbcnt_hi_u32_b32 v%d, -1, v%d" % (vT1, vT1)),
               I("v_lshrrev_b32 v%d, 4, v%d" % (vT1, vT1)), I("v_lshlrev_b32 v%d, 2, v%d" % (vT1, vT1)),
               I("v_subrev_u32 v%d, s%d, v%d" % (vT1, sC + 4, vT1)),
               I("v_mov_b32 v%d, 0xff800000" % vT2)]
        for j in range(8):
            kv = (j & 3) + 16 * (j >> 2)
            out.append(I("v_add_u32 v%d, %d, v%d" % (vMask + j, kv, vT1)))
        for j in range(8):
            out.append(I("v_ashrrev_i32 v%d, 31, v%d" % (vMask + j, vMask + j)))
        for j in range(8):
            out.append(I("v_bfi_b32 v%d, v%d, 0, v%d" % (vMask + j, vMask + j, vT2)))
        return out

    def jobstart(self, nq, first):
        out = []
        raw = lambda i: vO + 16 * i
        qrd = lambda i: ([I("v_add_u32 v%d, v%d, v%d" % (vT3, vKa, vQd))] +
                         [I("ds_read_b128 %s, v%d offset:%d" % (vr(raw(i) + 4 * ks, 4), vT3, 64 * ks)) for ks in range(4)] +
                         self.ring_adv())
        kv = [kread(0, b, ks) for b in range(2) for ks in range(4)] + [vread(0, db, jj) for db in range(8) for jj in range(2)]
        if first:
            out += self.masks()
            for i in range(nq):
                out += [I("s_waitcnt vmcnt(%d)" % (4 * (R - 2 - i))), I("s_barrier")]
                out += qrd(i) + [I("s_waitcnt lgkmcnt(0)")] + self.prescale(nq, i, raw(i))
            out += [I("s_waitcnt vmcnt(%d)" % (4 * (R - 2 - nq))), I("s_barrier")]
            out += kv + self.ring_adv()
            out += [I("s_waitcnt lgkmcnt(15)")]
        else:
            for i in range(nq):
                out += qrd(i)
            out += self.masks()
            for i in range(nq):
                if i == 0:
                    out += [I("s_waitcnt lgkmcnt(%d)" % (4 * (nq - 1)))]
                    out += self.prescale(nq, i, raw(i))
                    out += [I("s_waitcnt lgkmcnt(0)")] + kv + self.ring_adv()
                else:
                    out += self.prescale(nq, i, raw(i))
            out += [I("s_waitcnt lgkmcnt(15)")]
        out += qk(nq, 0, 0, 0, True)
        if first:
            out += [I("s_waitcnt vmcnt(%d) lgkmcnt(0)" % (4 * (R - 3 - nq))), I("s_barrier")]
        else:
            out += [I("s_waitcnt lgkmcnt(0)"), I("s_barrier")]
        for i in range(nq):
            out += self.issue_item()
        out += [EXP(0, 0), EXP(0, 1), EXP(0, 2), EXP(0, 3), EXP(0, 4), CVT(0, 0), CVT(0, 1)]
        out += [I("s_sub_u32 s%d, s%d, 3" % (sLoop, sC + 3))]
        return out

    def epilogue(self, nq):
        o = self.o
        ob = ones_blocks(nq, o.ones[nq])
        addb = [i for i in range(nq) if i not in ob]
        out = []
        rl = lambda i: vS + 2 * i
        for i in range(nq):
            if i in ob:
                out.append(I("v_accvgpr_read_b32 v%d, a%d" % (rl(i), aL + 4 * ob.index(i))))
        for i in addb:
            l = vL + 2 * addb.index(i)
            out.append(I("v_add_f32 v%d, v%d, v%d" % (rl(i), l, l + 1)))
        for sw in ("v_permlane16_swap_b32", "v_permlane32_swap_b32"):
            for i in addb:
                out.append(I("v_mov_b32 v%d, v%d" % (rl(i) + 1, rl(i))))
            for i in addb:
                out.append(I("%s v%d, v%d" % (sw, rl(i), rl(i) + 1)))
            for i in addb:
                out.append(I("v_add_f32 v%d, v%d, v%d" % (rl(i), rl(i), rl(i) + 1)))
        for i in range(nq):
            out.append(I("v_subrev_u32 v%d, 0x%x, v%d" % (rl(i) + 1, LO_BITS, rl(i))))
        for i in range(nq):
            out.append(I("v_rcp_f32 v%d, v%d" % (rl(i), rl(i))))
        for i in range(nq):
            out.append(I("v_max_u32 v%d, v%d, v%d" % (vBad, vBad, rl(i) + 1)))
        out.append(I("s_mov_b32 s%d, s%d" % (sSt, sC)))
        out.append(I("s_mov_b32 s%d, s%d" % (sO_ + 2, sC + 1)))
        p = (" " + o.nto) if o.nto else ""
        for i in range(nq):
            for e in range(4):
                b = vO + 32 * i + 8 * e
                for j in range(4):
                    out.append(I("v_pk_mul_f32 %s, %s, %s op_sel_hi:[1,0]" % (vr(b + 2 * j, 2), vr(b + 2 * j, 2), vr(rl(i), 2))))
                for j in range(4):
                    out.append(I("v_cvt_pk_bf16_f32 v%d, v%d, v%d" % (b + j, b + 2 * j, b + 2 * j + 1)))
                out.append(I("buffer_store_dwordx4 %s, v%d, %s, s%d offen offset:%d%s" % (vr(b, 4), vOst, sr(sO_, 4), sSt, 64 * e, p)))
            if i < nq - 1:
                out.append(I("s_add_u32 s%d, s%d, %d" % (sSt, sSt, 64 * 4096)))
        return out

    def addr_setup(self):
        t1, t2, t3, ln = vT1, vT2, vT3, vT4
        o = []
        A = lambda s: o.append(I(s))
        A("v_lshrrev_b32 v%d, 6, v0" % t1)
        A("v_and_b32 v%d, 63, v0" % ln)
        A("v_readfirstlane_b32 s%d, v%d" % (sW, t1))
        A("v_lshrrev_b32 v%d, 4, v%d" % (t2, ln))
        A("v_and_b32 v%d, 15, v%d" % (t3, ln))
        A("v_lshlrev_b32 v%d, 13, v%d" % (vo0, t1))
        A("v_lshl_add_u32 v%d, v%d, 15, v%d" % (vo0, t2, vo0))
        A("v_lshl_add_u32 v%d, v%d, 4, v%d" % (vo0, t3, vo0))
        A("v_add_u32 v%d, %d, v%d" % (vo1, 4096 - K1OFF, vo0))
        A("v_add_u32 v%d, %d, v%d" % (vo3, 4096 - (V1OFF - V0OFF), vo0))
        A("v_lshl_add_u32 v%d, v%d, 4, v%d" % (vOst, t1, t3))
        A("v_lshlrev_b32 v%d, 12, v%d" % (vOst, vOst))
        A("v_lshl_add_u32 v%d, v%d, 4, v%d" % (vOst, t2, vOst))
        A("v_bfe_u32 v%d, v%d, 1, 2" % (vKa, ln))
        A("v_mul_u32_u24 v%d, %d, v%d" % (vKa, WREG, vKa))
        A("v_and_b32 v%d, 1, v%d" % (vT4 + 1, ln))
        A("v_mul_u32_u24 v%d, %d, v%d" % (vT4 + 2, K1OFF, vT4 + 1))
        A("v_add_u32 v%d, v%d, v%d" % (vKa, vKa, vT4 + 2))
        A("v_bfe_u32 v%d, v%d, 3, 1" % (vT4 + 2, ln))
        A("v_lshl_add_u32 v%d, v%d, 8, v%d" % (vKa, vT4 + 2, vKa))
        A("v_lshl_add_u32 v%d, v%d, 4, v%d" % (vKa, t2, vKa))
        A("v_mul_u32_u24 v%d, %d, v%d" % (vT4 + 2, K1OFF - (V1OFF - V0OFF), vT4 + 1))
        A("v_sub_u32 v%d, %d, v%d" % (vT4 + 2, V0OFF, vT4 + 2))
        A("v_lshrrev_b32 v%d, 1, v%d" % (vT4 + 3, t1))
        A("v_mul_u32_u24 v%d, v%d, v%d" % (vQd, vT4 + 2, vT4 + 3))
        A("v_and_b32 v%d, 1, v%d" % (vT4 + 3, t1))
        A("v_lshl_add_u32 v%d, v%d, 9, v%d" % (vQd, vT4 + 3, vQd))
        A("v_bfe_u32 v%d, v%d, 3, 2" % (vVa, ln))
        A("v_mul_u32_u24 v%d, %d, v%d" % (vVa, WREG, vVa))
        A("v_bfe_u32 v%d, v%d, 2, 1" % (vT4 + 2, ln))
        A("v_mul_u32_u24 v%d, %d, v%d" % (vT4 + 2, V1OFF - V0OFF, vT4 + 2))
        A("v_add_u32 v%d, v%d, v%d" % (vVa, vVa, vT4 + 2))
        A("v_lshrrev_b32 v%d, 5, v%d" % (vT4 + 2, ln))
        A("v_lshl_add_u32 v%d, v%d, 8, v%d" % (vVa, vT4 + 2, vVa))
        A("v_and_b32 v%d, 3, v%d" % (vT4 + 2, ln))
        A("v_lshl_add_u32 v%d, v%d, 4, v%d" % (vVa, vT4 + 2, vVa))
        A("v_add_u32 v%d, %d, v%d" % (vVa, V0OFF, vVa))
        A("v_mul_u32_u24 v%d, 260, v%d" % (vChk, vT4 + 2))
        A("v_add_u32 v%d, %d, v%d" % (vChk, FLAG, vChk))
        A("v_lshlrev_b32 v%d, 2, v0" % vPub)
        A("v_add_u32 v%d, %d, v%d" % (vPub, FLAG, vPub))
        A("v_mov_b32 v%d, 1" % vOne)
        return o

    def decode_job(self, d0, d1, dst):
        o = []
        A = lambda s: o.append(I(s))
        A("s_bfe_u32 s%d, s%d, 0x10010" % (sT2, d0))
        A("s_lshl_b32 s%d, s%d, 8" % (sT2, sT2))
        A("s_add_u32 s%d, s%d, s%d" % (sT2, sT2, sTmp))
        A("s_and_b32 s%d, s%d, 0x1fff" % (dst, d0))
        A("s_lshl_b32 s%d, s%d, 12" % (dst, dst))
        A("s_add_u32 s%d, s%d, s%d" % (dst, dst, sT2))
        A("s_and_b32 s%d, s%d, 0x1fff" % (dst + 1, d1))
        A("s_lshl_b32 s%d, s%d, 12" % (dst + 1, dst + 1))
        A("s_add_u32 s%d, s%d, s%d" % (dst + 1, dst + 1, sT2))
        A("s_lshr_b32 s%d, s%d, 13" % (dst + 2, d1))
        A("s_lshl_b32 s%d, s%d, 12" % (dst + 2, dst + 2))
        A("s_bfe_u32 s%d, s%d, 0x3000d" % (dst + 3, d0))
        A("s_lshr_b32 s%d, s%d, 20" % (dst + 4, d0))
        return o

    def set_compute(self, j):
        o = []
        A = lambda s: o.append(I(s))
        A("s_mov_b32 s%d, s%d" % (sC, j))
        A("s_mov_b32 s%d, s%d" % (sC + 1, j + 2))
        A("s_mov_b32 s%d, s%d" % (sC + 2, j + 3))
        A("s_mov_b32 s%d, s%d" % (sC + 3, j + 4))
        A("s_lshr_b32 s%d, s%d, 12" % (sT2, j + 2))
        A("s_lshr_b32 s%d, s%d, 12" % (sT3, j + 1))
        A("s_sub_u32 s%d, s%d, s%d" % (sT2, sT2, sT3))
        A("s_lshl_b32 s%d, s%d, 5" % (sT3, j + 4))
        A("s_sub_u32 s%d, s%d, s%d" % (sT2, sT2, sT3))
        A("s_add_u32 s%d, s%d, 32" % (sC + 4, sT2))
        return o

    def seg_q(self):
        o = []
        A = lambda s: o.append(I(s))
        A("s_mov_b32 s%d, s%d" % (sA, sQp))
        A("s_mov_b32 s%d, s%d" % (sA + 1, sQp + 1))
        A("s_mov_b32 s%d, s%d" % (sA + 2, sJ + 2))
        A("s_mov_b32 s%d, s%d" % (sB, sQp2))
        A("s_mov_b32 s%d, s%d" % (sB + 1, sQp2 + 1))
        A("s_sub_u32 s%d, s%d, %d" % (sB + 2, sJ + 2, 32 * 4096 - V0OFF))
        A("s_mov_b32 s%d, s%d" % (sSoff, sJ))
        A("s_mov_b32 s%d, %d" % (sStride, 64 * 4096))
        A("s_sub_u32 s%d, s%d, 1" % (sCnt, sJ + 3))
        A("s_mov_b32 s%d, 0" % sSeg)
        return o

    def segswitch(self):
        o = []
        A = lambda s: o.append(I(s))
        A("L_segswitch:")
        A("s_add_u32 s%d, s%d, 1" % (sSeg, sSeg))
        A("s_cmp_eq_u32 s%d, 2" % sSeg)
        A("s_cbranch_scc1 L_seg_main")
        A("s_cmp_eq_u32 s%d, 1" % sSeg)
        A("s_cbranch_scc1 L_seg_tail")
        A("s_cmp_eq_u32 s%d, 0" % sHave2)
        A("s_cbranch_scc1 L_seg_none")
        A("s_mov_b32 s%d, 0" % sHave2)
        for j in range(5):
            A("s_mov_b32 s%d, s%d" % (sJ + j, sJ2 + j))
        o += self.seg_q()
        A("s_setpc_b64 %s" % sr(sLink, 2))
        A("L_seg_none:")
        A("s_mov_b32 s%d, 0" % (sA + 2))
        A("s_mov_b32 s%d, 0" % (sB + 2))
        A("s_mov_b32 s%d, 0" % sSoff)
        A("s_mov_b32 s%d, 0" % sStride)
        A("s_mov_b32 s%d, 0x7fffffff" % sCnt)
        A("s_setpc_b64 %s" % sr(sLink, 2))
        A("L_seg_tail:")
        A("s_mov_b32 s%d, s%d" % (sA, sKp))
        A("s_mov_b32 s%d, s%d" % (sA + 1, sKp + 1))
        A("s_mov_b32 s%d, s%d" % (sB, sVp))
        A("s_mov_b32 s%d, s%d" % (sB + 1, sVp + 1))
        A("s_add_u32 s%d, s%d, %d" % (sB + 2, sJ + 2, V0OFF))
        A("s_sub_u32 s%d, s%d, 1" % (sSoff, sJ + 4))
        A("s_lshl_b32 s%d, s%d, 17" % (sSoff, sSoff))
        A("s_add_u32 s%d, s%d, s%d" % (sSoff, sSoff, sJ + 1))
        A("s_mov_b32 s%d, %d" % (sStride, 32 * 4096))
        A("s_mov_b32 s%d, 0" % sCnt)
        A("s_setpc_b64 %s" % sr(sLink, 2))
        A("L_seg_main:")
        A("s_mov_b32 s%d, s%d" % (sSoff, sJ + 1))
        A("s_sub_u32 s%d, s%d, 2" % (sCnt, sJ + 4))
        A("s_setpc_b64 %s" % sr(sLink, 2))
        return o

    def dispatch(self, prefix):
        o = []
        for nq in self.o.nqs[:-1]:
            o += [I("s_cmp_eq_u32 s%d, %d" % (sC + 2, nq)), I("s_cbranch_scc1 %s%d" % (prefix, nq))]
        o.append(I("s_branch %s%d" % (prefix, self.o.nqs[-1])))
        return o

    def slow(self):
        o = []
        A = lambda s: o.append(I(s))
        Qf, Kf, Vf, Oa, S, P = 192, 128, 160, 64, vS, vP
        m, l, al, t, u = vL, vL + 1, vL + 2, vL + 3, vL + 4
        vSrc, vG4 = vL + 5, vL + 6
        sJob, sBlk, sTile, sRow, sLeft, sBase = 74, 75, 76, 77, 78, 79
        sj = 80
        A("L_slow:")
        A("s_waitcnt vmcnt(0)")
        A("v_mbcnt_lo_u32_b32 v0, -1, 0")
        A("v_mbcnt_hi_u32_b32 v0, -1, v0")
        A("v_lshrrev_b32 v%d, 4, v0" % vG4)
        A("v_and_b32 v%d, 15, v0" % t)
        A("v_lshlrev_b32 v%d, 15, v%d" % (vSrc, vG4))
        A("v_lshl_add_u32 v%d, v%d, 4, v%d" % (vSrc, t, vSrc))
        A("v_lshlrev_b32 v%d, 2, v%d" % (vG4, vG4))
        A("s_lshl_b32 s%d, s%d, 6" % (sT2, sW))
        A("v_add_u32 v0, s%d, v0" % sT2)
        o += self.addr_setup()
        A("s_mul_i32 s%d, s%d, %d" % (sBase, sW, SLOT))
        A("v_add_u32 v%d, s%d, v%d" % (vKa, sBase, vKa))
        A("v_add_u32 v%d, s%d, v%d" % (vVa, sBase, vVa))
        A("s_mov_b32 s%d, 0" % sJob)
        for j in range(5):
            A("s_mov_b32 s%d, s%d" % (sj + j, sJ1 + j))
        A("L_slow_job:")
        A("s_mov_b32 s%d, 0" % sBlk)
        A("L_slow_blk:")
        A("s_mov_b32 s%d, s%d" % (sA, sQp))
        A("s_mov_b32 s%d, s%d" % (sA + 1, sQp + 1))
        A("s_mov_b32 s%d, s%d" % (sA + 2, sj + 2))
        A("s_lshl_b32 s%d, s%d, 18" % (sSt, sBlk))
        A("s_add_u32 s%d, s%d, s%d" % (sSt, sSt, sj))
        for ks in range(4):
            A("buffer_load_dwordx4 %s, v%d, %s, s%d offen offset:%d" % (vr(Kf + 4 * ks, 4), vOst, sr(sA, 4), sSt, 64 * ks))
        A("s_waitcnt vmcnt(0)")
        for j in range(16):
            A("v_lshlrev_b32 v%d, 16, v%d" % (t, Kf + j))
            A("v_and_b32 v%d, 0xffff0000, v%d" % (u, Kf + j))
            A("v_mul_f32 v%d, s%d, v%d" % (t, sCc, t))
            A("v_mul_f32 v%d, s%d, v%d" % (u, sCc, u))
            A("v_cvt_pk_bf16_f32 v%d, v%d, v%d" % (Qf + j, t, u))
        for j in range(32):
            A("v_mov_b32 v%d, 0" % (Oa + j))
        A("v_mov_b32 v%d, 0xff800000" % m)
        A("v_mov_b32 v%d, 0" % l)
        A("s_mov_b32 s%d, s%d" % (sA, sKp))
        A("s_mov_b32 s%d, s%d" % (sA + 1, sKp + 1))
        A("s_mov_b32 s%d, s%d" % (sB, sVp))
        A("s_mov_b32 s%d, s%d" % (sB + 1, sVp + 1))
        A("s_add_u32 s%d, s%d, %d" % (sB + 2, sj + 2, V0OFF))
        A("s_mov_b32 s%d, s%d" % (sRow, sj + 1))
        A("s_lshr_b32 s%d, s%d, 12" % (sLeft, sj + 2))
        A("s_lshr_b32 s%d, s%d, 12" % (sT2, sj + 1))
        A("s_sub_u32 s%d, s%d, s%d" % (sLeft, sLeft, sT2))
        A("s_mov_b32 s%d, s%d" % (sTile, sj + 4))
        A("L_slow_tile:")
        for sg in range(8):
            A("s_add_u32 s%d, s%d, %d" % (sT2, sRow, sg * 4096))
            A("s_add_u32 m0, s%d, %d" % (sBase, (sg >> 1) * WREG + (sg & 1) * K1OFF))
            A("buffer_load_dwordx4 v%d, %s, s%d offen lds" % (vSrc, sr(sA, 4), sT2))
            A("s_add_u32 m0, s%d, %d" % (sBase, (sg >> 1) * WREG + (sg & 1) * (V1OFF - V0OFF)))
            A("buffer_load_dwordx4 v%d, %s, s%d offen offset:%d lds" % (vSrc, sr(sB, 4), sT2, V0OFF))
        A("s_waitcnt vmcnt(0)")
        for b in range(2):
            for ks in range(4):
                A("ds_read_b128 %s, v%d offset:%d" % (vr(Kf + 16 * b + 4 * ks, 4), vKa, b * 512 + ks * 64))
        A("s_waitcnt lgkmcnt(0)")
        for db in range(8):
            for jj in range(2):
                A("ds_read_b64_tr_b16 %s, v%d offset:%d" % (vr(Vf + 4 * db + 2 * jj, 2), vVa, jj * 512 + 64 * (db >> 1) + 8 * (db & 1)))
        for b in range(2):
            for ks in range(4):
                d = vr(S + 4 * b, 4)
                o.append(mf(d, vr(Kf + 16 * b + 4 * ks, 4), vr(Qf + 4 * ks, 4), d if ks else "0"))
        A("v_mov_b32 v%d, 0xff800000" % u)
        for j in range(8):
            A("v_add_u32 v%d, %d, v%d" % (t, (j & 3) + 16 * (j >> 2), vG4))
            A("v_cmp_gt_u32 vcc, s%d, v%d" % (sLeft, t))
            A("v_cndmask_b32 v%d, v%d, v%d, vcc" % (S + j, u, S + j))
        A("v_max3_f32 v%d, v%d, v%d, v%d" % (t, S, S + 1, S + 2))
        A("v_max3_f32 v%d, v%d, v%d, v%d" % (t, t, S + 3, S + 4))
        A("v_max3_f32 v%d, v%d, v%d, v%d" % (t, t, S + 5, S + 6))
        A("v_max3_f32 v%d, v%d, v%d, v%d" % (t, t, S + 7, m))
        for sw in ("v_permlane16_swap_b32", "v_permlane32_swap_b32"):
            A("v_mov_b32 v%d, v%d" % (u, t))
            A("%s v%d, v%d" % (sw, t, u))
            A("v_max_f32 v%d, v%d, v%d" % (t, t, u))
        A("v_sub_f32 v%d, v%d, v%d" % (al, m, t))
        A("v_exp_f32 v%d, v%d" % (al, al))
        A("v_mov_b32 v%d, v%d" % (m, t))
        for j in range(8):
            A("v_sub_f32 v%d, v%d, v%d" % (S + j, S + j, m))
        for j in range(8):
            A("v_exp_f32 v%d, v%d" % (S + j, S + j))
        A("v_mul_f32 v%d, v%d, v%d" % (l, l, al))
        for j in range(8):
            A("v_add_f32 v%d, v%d, v%d" % (l, l, S + j))
        for j in range(4):
            A("v_cvt_pk_bf16_f32 v%d, v%d, v%d" % (P + j, S + 2 * j, S + 2 * j + 1))
        for j in range(32):
            A("v_mul_f32 v%d, v%d, v%d" % (Oa + j, Oa + j, al))
        A("s_waitcnt lgkmcnt(0)")
        for db in range(8):
            d = vr(Oa + 4 * db, 4)
            o.append(mf(d, vr(Vf + 4 * db, 4), vr(P, 4), d))
        A("s_add_u32 s%d, s%d, %d" % (sRow, sRow, 32 * 4096))
        A("s_sub_u32 s%d, s%d, 32" % (sLeft, sLeft))
        A("s_nop 7")
        A("s_sub_u32 s%d, s%d, 1" % (sTile, sTile))
        A("s_cmp_lg_u32 s%d, 0" % sTile)
        A("s_cbranch_scc1 L_slow_tile")
        for sw in ("v_permlane16_swap_b32", "v_permlane32_swap_b32"):
            A("v_mov_b32 v%d, v%d" % (u, l))
            A("%s v%d, v%d" % (sw, l, u))
            A("v_add_f32 v%d, v%d, v%d" % (l, l, u))
        A("v_rcp_f32 v%d, v%d" % (l, l))
        A("s_mov_b32 s%d, s%d" % (sO_ + 2, sj + 2))
        for j in range(32):
            A("v_mul_f32 v%d, v%d, v%d" % (Oa + j, Oa + j, l))
        for e in range(4):
            b = Oa + 8 * e
            for j in range(4):
                A("v_cvt_pk_bf16_f32 v%d, v%d, v%d" % (b + j, b + 2 * j, b + 2 * j + 1))
            A("buffer_store_dwordx4 %s, v%d, %s, s%d offen offset:%d" % (vr(b, 4), vOst, sr(sO_, 4), sSt, 64 * e))
        A("s_waitcnt vmcnt(0)")
        A("s_add_u32 s%d, s%d, 1" % (sBlk, sBlk))
        A("s_cmp_lt_u32 s%d, s%d" % (sBlk, sj + 3))
        A("s_cbranch_scc1 L_slow_blk")
        A("s_cmp_lg_u32 s%d, 0" % sJob)
        A("s_cbranch_scc1 L_end")
        A("s_mov_b32 s%d, 1" % sJob)
        for j in range(5):
            A("s_mov_b32 s%d, s%d" % (sj + j, sJ2 + j))
        A("s_cmp_lg_u32 s%d, 0" % (sj + 3))
        A("s_cbranch_scc1 L_slow_job")
        A("s_branch L_end")
        return check(o, fix=True, name="slow")

    def stamp(self, idx):
        if not self.o.stamp:
            return []
        return [I("s_memrealtime s[%d:%d]" % (86 + 2 * idx, 87 + 2 * idx))]

    def kernel(self, table):
        o = self.o
        nqmax = max(o.nqs)
        out = []
        A = lambda s: out.append(I(s))
        A("s_cmp_ge_u32 s2, 256")
        A("s_cbranch_scc1 L_end")
        out += self.stamp(0)
        A("s_load_dwordx4 %s, s[0:1], 0" % sr(sQp, 4))
        A("s_load_dwordx2 %s, s[0:1], 16" % sr(sVp, 2))
        A("s_load_dwordx2 %s, s[0:1], 32" % sr(sO_, 2))
        A("s_getpc_b64 %s" % sr(sTab, 2))
        A("L_pc:")
        A("s_lshr_b32 s%d, s2, 3" % sTmp)
        A("s_lshl_b32 s%d, s%d, 4" % (sTmp, sTmp))
        A("s_add_u32 s%d, s%d, L_table-L_pc" % (sTmp, sTmp))
        A("s_add_u32 s%d, s%d, s%d" % (sTab, sTab, sTmp))
        A("s_addc_u32 s%d, s%d, 0" % (sTab + 1, sTab + 1))
        A("s_load_dwordx4 %s, %s, 0" % (sr(sTd, 4), sr(sTab, 2)))
        out += self.addr_setup()
        A("v_mov_b32 v%d, 0" % vBad)
        A("ds_write_b32 v%d, v%d" % (vPub, vBad))
        A("v_mov_b32 v%d, 0x3f803f80" % vT1)
        for j in range(4):
            A("v_accvgpr_write_b32 a%d, v%d" % (aOnes + j, vT1))
        A("s_mul_i32 s%d, s%d, %d" % (sWb, sW, WREG))
        A("s_add_u32 s%d, s%d, %d" % (sMlim, sWb, R * SLOT))
        A("s_mov_b32 m0, s%d" % sWb)
        A("s_mov_b32 s%d, %d" % (sRc, R - 1))
        A("s_mov_b32 s%d, 0" % sThr)
        A("s_mov_b32 s%d, %d" % (sPos, SLOT))
        A("s_mov_b32 s%d, %d" % (sNeg, -(R - 1) * SLOT))
        A("s_mov_b32 s%d, 0x%x" % (sCc, SCALE_BITS))
        A("s_mov_b32 s%d, 0x%x" % (sCc + 1, SCALE_BITS))
        A("s_mov_b32 s%d, 0x20000" % (sA + 3))
        A("s_mov_b32 s%d, 0x20000" % (sB + 3))
        A("s_mov_b32 s%d, 0x20000" % (sO_ + 3))
        A("s_mov_b32 s%d, 0" % (sO_ + 2))
        A("s_and_b32 s%d, s2, 7" % sTmp)
        A("s_lshl_b32 s%d, s%d, 9" % (sTmp, sTmp))
        A("s_waitcnt lgkmcnt(0)")
        A("s_add_u32 s%d, s%d, %d" % (sQp2, sQp, 32 * 4096 - V0OFF))
        A("s_addc_u32 s%d, s%d, 0" % (sQp2 + 1, sQp + 1))
        A("s_sub_u32 s%d, s%d, %d" % (sVp, sVp, V0OFF))
        A("s_subb_u32 s%d, s%d, 0" % (sVp + 1, sVp + 1))
        out += self.decode_job(sTd, sTd + 1, sJ)
        out += self.seg_q()
        out += self.issue_item()
        out += self.decode_job(sTd + 2, sTd + 3, sJ2)
        for j in range(5):
            A("s_mov_b32 s%d, s%d" % (sJ1 + j, sJ + j))
        A("s_mov_b32 s%d, s%d" % (sHave2, sJ2 + 3))
        A("s_mov_b32 s%d, s%d" % (sNext, sJ2 + 3))
        out += self.set_compute(sJ)
        A("s_mov_b32 s%d, %d" % (sLoop, R - 3))
        A("L_fill:")
        out += self.issue_item()
        A("s_sub_u32 s%d, s%d, 1" % (sLoop, sLoop))
        A("s_cbranch_scc0 L_fill")
        out += self.stamp(1)
        out += self.dispatch("L_first")
        out = check(out, fix=True, name="entry")
        for nq in o.nqs:
            js1 = check(self.jobstart(nq, True), fix=True, name="js1")
            js2 = check(self.jobstart(nq, False), fix=True, name="js2")
            dec = I("s_sub_u32 s%d, s%d, 1" % (sLoop, sLoop))
            b0 = self.body(nq, 0, first=True)
            bA = self.body(nq, 1, tail=[dec, I("s_cbranch_scc1 L_lastB%d" % nq)])
            bB = self.body(nq, 0, tail=[dec, I("s_cbranch_scc0 L_loop%d" % nq)])
            lA = self.body(nq, 1, last=True)
            lB = self.body(nq, 0, last=True)
            pre = [I("s_waitcnt vmcnt(%d)" % (4 * (R - 3 - nqmax))), I("s_barrier")]
            ep = self.epilogue(nq)
            lA = check(lA, fix=True, name="lastA")
            lB = check(lB, fix=True, name="lastB")
            for x, y, n in ((js1, b0, "js1-b0"), (js2, b0, "js2-b0"), (b0, bA, "b0-bA"), (bA, bB, "bA-bB"), (bB, bA, "bB-bA"),
                            (bA, lB, "bA-lB"), (bB, lA, "bB-lA")):
                check(x + y, name="%s nq=%d" % (n, nq))
            epA = check(lA + pre + ep, fix=True, name="ep")[len(lA):]
            check(lB + [I("s_nop 0")] + epA, name="lB-ep")
            out += [I("L_second%d:" % nq)] + js2 + [I("s_branch L_body%d" % nq)]
            out += [I("L_first%d:" % nq)] + js1 + [I("L_body%d:" % nq)] + self.stamp(2) + b0
            out += [I(".p2align 6"), I("L_loop%d:" % nq)] + bA + bB + lA + [I("L_epi%d:" % nq)] + self.stamp(3) + epA
            out += [I("s_cmp_eq_u32 s%d, 0" % sNext), I("s_cbranch_scc1 L_fin%d" % nq), I("s_mov_b32 s%d, 0" % sNext)]
            out += self.set_compute(sJ2) + self.dispatch("L_second")
            out += [I("L_fin%d:" % nq), I("s_waitcnt vmcnt(%d)" % (4 * nq)), I("s_branch L_fin")]
            out += [I("L_lastB%d:" % nq)] + lB + [I("s_branch L_epi%d" % nq)]
        A = lambda s: out.append(I(s))
        A("L_fin:")
        A("s_barrier")
        if o.stamp:
            A("s_memrealtime s[94:95]")
            A("s_waitcnt vmcnt(0)")
            A("s_memrealtime s[96:97]")
            A("s_load_dwordx2 s[4:5], s[0:1], 48")
            A("s_waitcnt lgkmcnt(0)")
            A("s_mov_b32 s6, 0x100000")
            A("s_lshl_b32 s3, s2, 2")
            A("s_add_u32 s3, s3, s%d" % sW)
            A("s_lshl_b32 s3, s3, 5")
            for j in range(6):
                A("v_mov_b32 v%d, s%d" % (64 + j, 86 + 2 * j))
            A("v_mov_b32 v70, 0")
            A("buffer_store_dwordx4 v[64:67], v70, s[4:7], s3 offen")
            A("buffer_store_dwordx2 v[68:69], v70, s[4:7], s3 offen offset:16")
        A("v_cmp_lt_u32 vcc, 0x%x, v%d" % (HI_BITS - LO_BITS, vBad))
        A("s_nop 4")
        A("s_cbranch_vccnz L_slow")
        A("L_end:")
        A("s_endpgm")
        out += self.segswitch()
        out += self.stubs
        out += self.slow()
        txt = [x.text for x in out]
        txt.append(".p2align 4")
        txt.append("L_table:")
        for e in table:
            txt.append(".long 0x%x, 0x%x, 0x%x, 0x%x" % tuple(e))
        return txt


def make_table(bins):
    nxt = {}
    tab = []
    for jobs in bins:
        e = []
        for (s, hh, nq) in jobs:
            u = nxt.get((s, hh), 0)
            nxt[(s, hh)] = u + nq
            q0 = CU[s] + 64 * u
            n = (CU[s + 1] - CU[s] + 31) // 32
            e += [q0 | nq << 13 | hh << 16 | n << 20, CU[s] | CU[s + 1] << 13]
        e += [0, 0] * (2 - len(jobs))
        tab.append(e)
    for s in range(8):
        for hh in range(2):
            assert nxt[(s, hh)] == (CU[s + 1] - CU[s] + 63) // 64, (s, hh, nxt)
    assert len(tab) == 32
    return tab


HEADER = """; varlen (packed, ragged) non-causal attention forward, bf16, T=6042 H=16 D=128, 8 sequences (cu is a constant of the problem)
; @launch grid=(256,1,1) block=(256,1,1) lds=%d
.amdgcn_target "amdgcn-amd-amdhsa--gfx950"
.text
.globl %s
.p2align 8
.type %s,@function
%s:
"""
FOOTER = """.section .rodata,"a"
.p2align 6
.amdhsa_kernel %s
  .amdhsa_next_free_vgpr 512
  .amdhsa_next_free_sgpr 102
  .amdhsa_accum_offset 256
  .amdhsa_group_segment_fixed_size 0
  .amdhsa_kernarg_size 56
  .amdhsa_user_sgpr_count 2
  .amdhsa_user_sgpr_kernarg_segment_ptr 1
  .amdhsa_system_sgpr_workgroup_id_x 1
.end_amdhsa_kernel
"""


def parse_bins(s):
    U = [(CU[i + 1] - CU[i] + 63) // 64 for i in range(8)]
    jobs = []
    for bi, b in enumerate(s.split()):
        for ji, j in enumerate(b.split("+")):
            if j[0] != "-":
                jobs.append((bi, ji, "ABCDEFGH".index(j[0]), int(j[1])))
    hh = {}
    for s_ in range(8):
        mine = [j for j in jobs if j[2] == s_]
        best = None
        for mask in range(1 << len(mine)):
            if sum(j[3] for k, j in enumerate(mine) if mask >> k & 1) == U[s_]:
                sc = 0
                for h in (0, 1):
                    ph = {j[1] for k, j in enumerate(mine) if (mask >> k & 1) == h}
                    sc += len(ph)
                if best is None or sc < best[0]:
                    best = (sc, mask)
        for k, j in enumerate(mine):
            hh[j[:2]] = best[1] >> k & 1
    bins = [[] for _ in range(32)]
    for j in jobs:
        bins[j[0]].append((j[2], hh[j[:2]], j[3]))
    return bins


SCHED = "B2+C4 B2+C4 B2+C4 B2+C4 B2+C4 B2+H4 E2+F4 G2+F4 G2+F4 G2+F4 A3+C3 A3+C3 A3+C3 A3+C3 B4+G4 H2+G4 H2+G4 H2+H3 H2+H3 H2+H3 E3+H3 E3+H3 E3+H3 E3+D4 D3+D4 D3+D4 D3+E4 D3+E4 G3+F3 G3+F3 F3+A4 F3+A4"


def build(o, sched=SCHED):
    g = Gen(o)
    body = g.kernel(make_table(parse_bins(sched)))
    return HEADER % (LDS_BYTES, KNAME, KNAME, KNAME) + "\n".join(body) + "\n" + FOOTER % KNAME


if __name__ == "__main__":
    o = Opt()
    path = sys.argv[1]
    for a in sys.argv[2:]:
        k, v = a.split("=")
        setattr(o, k, eval(v))
    open(path, "w").write(build(o))
```

```python
import sys, struct, math
from isa import I, check

KNAME = "standalone__varlen_attn_packed__ragged_kernel"
CU = [0, 580, 1085, 2082, 2797, 3498, 4341, 5079, 6042]

R = 9
SLOT = 16640
WREG = 4160
K1OFF, V0OFF, V1OFF = 1056, 2080, 3112
FLAG = R * SLOT
LDS_BYTES = FLAG + 1280

vT0 = 0
vKa, vVa, vo0, vo1, vo3, vOst, vQd, vPub, vChk, vOne, vFlag, vBad = range(1, 13)
vT1, vT2, vT3 = 13, 14, 15
vMask = 16
vS = 24
vP = 40
vL = 48
vT4 = 58
vO = 64
aK = 0
aV = 64
aOnes = 128
aL = 132
aQ = 160
sA, sB, sO_ = 4, 8, 12
sQp, sKp, sVp, sQp2 = 16, 18, 20, 22
sSoff, sStride, sCnt, sSeg = 24, 25, 26, 27
sWb, sMlim, sRc, sDelta, sLoop, sThr, sPos, sNeg = 28, 29, 30, 31, 32, 33, 34, 35
sJ = 36
sJ2 = 41
sC = 46
sJ1 = 52
sHave2, sLink, sCc, sNext, sTmp, sTab, sTd, sW = 57, 58, 60, 62, 63, 66, 68, 72
sT2, sT3 = 64, 65
sSt = 73
SCALE = math.log2(math.e) / math.sqrt(128.0)
SCALE_BITS = struct.unpack("<I", struct.pack("<f", SCALE))[0]
LO_BITS = (127 - 40) << 23
HI_BITS = (127 + 40) << 23


class Opt:
    sync = "flags"
    ntkv = ""
    nto = ""
    nqs = (2, 3, 4, 5)
    ones = {1: 1, 2: 2, 3: 3, 4: 2, 5: 2, 6: 1}
    stamp = False
    padto = 0


def vr(b, n=1):
    return "v%d" % b if n == 1 else "v[%d:%d]" % (b, b + n - 1)


def ar(b, n=1):
    return "a%d" % b if n == 1 else "a[%d:%d]" % (b, b + n - 1)


def sr(b, n=1):
    return "s%d" % b if n == 1 else "s[%d:%d]" % (b, b + n - 1)


def qreg(nq, i, ks):
    free = (256 - (vO + 32 * nq)) // 16
    if i < free:
        return "v", vO + 32 * nq + 16 * i + 4 * ks
    return "a", aQ + 16 * (i - free) + 4 * ks


def qop(nq, i, ks):
    f, b = qreg(nq, i, ks)
    return vr(b, 4) if f == "v" else ar(b, 4)


def ones_blocks(nq, k):
    if k >= nq:
        return list(range(nq))
    if k == 1:
        return [0]
    if k == 2:
        return [0, (nq + 1) // 2]
    return [0] + list(range(nq - k + 1, nq))


def mf(d, a, b, c):
    return I("v_mfma_f32_16x16x32_bf16 %s, %s, %s, %s" % (d, a, b, c))


def qk(nq, i, kbuf, sset, masked):
    out = []
    for b in range(2):
        d = vr(vS + 8 * sset + 4 * b, 4)
        for ks in range(4):
            c = d if ks else (vr(vMask + 4 * b, 4) if masked else "0")
            out.append(mf(d, ar(aK + 32 * kbuf + 16 * b + 4 * ks, 4), qop(nq, i, ks), c))
    return out


def pv(i, vbuf, pset, zero):
    out = []
    for db in range(8):
        d = vr(vO + 32 * i + 4 * db, 4)
        out.append(mf(d, ar(aV + 32 * vbuf + 4 * db, 4), vr(vP + 4 * pset, 4), "0" if zero else d))
    return out


def onesm(slot, pset, zero):
    d = ar(aL + 4 * slot, 4)
    return mf(d, ar(aOnes, 4), vr(vP + 4 * pset, 4), "0" if zero else d)


def EXP(sset, j):
    r = vS + 8 * sset + j
    return I("v_exp_f32 v%d, v%d" % (r, r))


def CVT(sset, j):
    r = vS + 8 * sset + 2 * j
    return I("v_cvt_pk_bf16_f32 v%d, v%d, v%d" % (vP + 4 * sset + j, r, r + 1))


def kread(buf, b, ks):
    return I("ds_read_b128 %s, v%d offset:%d" % (ar(aK + 32 * buf + 16 * b + 4 * ks, 4), vKa, b * 512 + ks * 64))


def vread(buf, db, jj):
    return I("ds_read_b64_tr_b16 %s, v%d offset:%d" % (ar(aV + 32 * buf + 4 * db + 2 * jj, 2), vVa,
                                                      jj * 512 + 64 * (db >> 1) + 8 * (db & 1)))


def dmas(o):
    p = (" " + o.ntkv) if o.ntkv else ""
    return [I("buffer_load_dwordx4 v%d, %s, s%d offen%s lds" % (vo0, sr(sA, 4), sSoff, p)),
            I("buffer_load_dwordx4 v%d, %s, s%d offen offset:%d%s lds" % (vo1, sr(sA, 4), sSoff, K1OFF, p)),
            I("buffer_load_dwordx4 v%d, %s, s%d offen offset:%d%s lds" % (vo0, sr(sB, 4), sSoff, V0OFF, p)),
            I("buffer_load_dwordx4 v%d, %s, s%d offen offset:%d%s lds" % (vo3, sr(sB, 4), sSoff, V1OFF, p))]


class Gen:
    def __init__(self, o):
        self.o = o
        self.stubs = []
        self.nlab = 0

    def lab(self, p):
        self.nlab += 1
        return "L_%s_%d" % (p, self.nlab)

    def m0_adv(self):
        return [I("s_add_u32 m0, m0, s%d" % sPos), I("s_cmp_eq_u32 m0, s%d" % sMlim), I("s_cselect_b32 m0, s%d, m0" % sWb)]

    def item_adv(self):
        st, ret = self.lab("seg"), self.lab("segret")
        self.stubs += [I(st + ":"), I("s_call_b64 %s, L_segswitch" % sr(sLink, 2)), I("s_branch " + ret)]
        return [I("s_add_u32 s%d, s%d, s%d" % (sSoff, sSoff, sStride)),
                I("s_sub_u32 s%d, s%d, 1" % (sCnt, sCnt)),
                I("s_cbranch_scc1 " + st, tag=ret)]

    def ring_adv_s(self):
        return [I("s_sub_u32 s%d, s%d, 1" % (sRc, sRc)),
                I("s_cselect_b32 s%d, s%d, s%d" % (sDelta, sNeg, sPos)),
                I("s_cselect_b32 s%d, %d, s%d" % (sRc, R - 1, sRc))]

    def issue_item(self):
        out = dmas(self.o) + self.m0_adv() + self.item_adv()
        return self.expand(out)

    @staticmethod
    def expand(seq):
        out = []
        for x in seq:
            out.append(x)
            if x.kind == "branch" and x.tag:
                out.append(I(x.tag + ":"))
        return out

    def ring_adv(self):
        return self.ring_adv_s() + [I("v_add_u32 v%d, s%d, v%d" % (vKa, sDelta, vKa)), I("v_add_u32 v%d, s%d, v%d" % (vVa, sDelta, vVa))]

    def body(self, nq, par, first=False, last=False, tail=None):
        o = self.o
        k = o.ones[nq]
        ob = ones_blocks(nq, k)
        addb = [i for i in range(nq) if i not in ob]
        sset = lambda t, i: ((par ^ t) * nq + i) & 1
        gaps = []
        vstart = []
        flex = []

        def gap(m, E=None, fixed=None):
            gaps.append(dict(m=m, E=E, fixed=fixed or [], scal=[], flex=[]))
            return len(gaps) - 1

        lcount = {}

        def ADD(i, ss, j):
            n = lcount.get(i, 0)
            lcount[i] = n + 1
            l = vL + 2 * addb.index(i) + (n & 1)
            r = vS + 8 * ss + j
            if first and n < 2:
                return I("v_mov_b32 v%d, v%d" % (l, r))
            return I("v_add_f32 v%d, v%d, v%d" % (l, l, r))

        adds = []
        for v in range(nq):
            vstart.append(len(gaps))
            nxt_t, nxt_i = (0, v + 1) if v < nq - 1 else (1, 0)
            has_qk = not (last and v == nq - 1)
            sc, sn = sset(0, v), sset(nxt_t, nxt_i)
            qm = qk(nq, nxt_i, par ^ nxt_t, sn, first and nxt_t == 0) if has_qk else [None] * 8
            pm = pv(v, par, sc, first)
            for g in range(16):
                m = qm[g] if g < 8 else pm[g - 8]
                E, fixed = None, []
                if g in (1, 3, 5):
                    E = (v, sc, 5 + g // 2)
                elif g in (7, 9, 11, 13, 15) and has_qk:
                    E = (nxt_i if nxt_t == 0 else -1, sn, (g - 7) // 2)
                if g == 2:
                    fixed = [CVT(sc, 2)]
                if g == 6:
                    fixed = [CVT(sc, 3)]
                if g == 10 and has_qk:
                    fixed = [CVT(sn, 0)]
                if g == 14 and has_qk:
                    fixed = [CVT(sn, 1)]
                gi = gap(m, EXP(E[1], E[2]) if E else None, fixed)
                if E and E[0] in addb:
                    adds.append((E[0], gi, E[1], E[2]))
            if v in ob:
                gap(onesm(ob.index(v), sc, first))
        ng = len(gaps)
        vstart.append(ng)
        for (i, gi, ss, j) in adds:
            dl = ng - 1
            if i + 1 < nq:
                dl = vstart[i + 1] - 1 + (4 if j >= 4 else 0)
            flex.append([gi + 1, dl, 1, 5, ("add", i, ss, j)])
        lastE = max(i for i, g in enumerate(gaps) if g["E"] is not None)
        endwait = None
        if not last:
            kdl = vstart[nq - 1] - 5
            for b in range(2):
                for ks in range(4):
                    flex.append([0, kdl, 1, 1, kread(par ^ 1, b, ks)])
            vdl = ng - 9
            for db in range(8):
                for jj in range(2):
                    flex.append([0, vdl, 1, 2, vread(par ^ 1, db, jj)])
        ddl = max(ng // 2 - 4, 6)
        for d in dmas(o):
            flex.append([0, ddl, 2, 0, d])
        pend = sorted(flex, key=lambda f: (f[1], f[3]))
        order_ds = []
        placed = {}
        slotgaps = [i for i, g in enumerate(gaps) if g["E"] is None]

        def remaining_cap(gi, upto):
            return sum(2 - len(gaps[x]["fixed"]) for x in slotgaps if gi <= x <= upto)

        extra = []
        flags = o.sync == "flags" and not last
        state = dict(kdone=None, vdone=None, ddone=None)
        nk = nv = nd = 0
        for gi in range(ng):
            g = gaps[gi]
            cap = 0 if g["E"] is not None else 2 - len(g["fixed"])
            if g["m"] is None:
                cap = 0 if g["E"] is not None else 2 - len(g["fixed"])
            while True:
                ready = [f for f in pend if f[0] <= gi]
                if not ready:
                    break
                pick = None
                for f in ready:
                    if f[2] <= cap:
                        pick = f
                        break
                    if f[2] == 2 and cap == 1 and f[1] - gi < 4:
                        continue
                forced = [f for f in ready if f[1] <= gi]
                if pick is None and forced:
                    pick = forced[0]
                if pick is None:
                    break
                if pick[2] == 1 and cap == 2:
                    two = [f for f in ready if f[2] == 2]
                    if two:
                        pick = two[0]
                pend.remove(pick)
                cap -= pick[2]
                ins = pick[4]
                if isinstance(ins, tuple) and ins[0] == "add":
                    ins = ADD(ins[1], ins[2], ins[3])
                g["flex"].append(ins)
                if ins.op == "ds_read_b128":
                    nk += 1
                    if nk == 8:
                        state["kdone"] = gi
                        pend.append([gi + 1, ng - 1, 1, 6, I("v_add_u32 v%d, s%d, v%d" % (vKa, sDelta, vKa))])
                elif ins.op == "ds_read_b64_tr_b16":
                    nv += 1
                    if nv == 16:
                        state["vdone"] = gi
                        pend.append([gi + 1, ng - 1, 1, 6, I("v_add_u32 v%d, s%d, v%d" % (vVa, sDelta, vVa))])
                elif ins.kind == "dma":
                    nd += 1
                    if nd == 4:
                        state["ddone"] = gi
                        if flags:
                            pg = max(gi + 2, ng // 2 - 2)
                            pend.append([pg, pg + 4, 1, 0, I("ds_add_u32 v%d, v%d" % (vPub, vOne))])
                            pend.append([ng - 11, ng - 8, 1, 0, I("ds_read_b32 v%d, v%d" % (vFlag, vChk))])
                pend.sort(key=lambda f: (f[1], f[3]))
        assert not pend, pend
        egaps = [i for i, g in enumerate(gaps) if g["E"] is not None]
        used = set()

        def put(chain, lo, hi=None):
            gi = lo - 1
            for ins in chain:
                cand = [x for x in egaps if x > gi and x not in used]
                if not cand:
                    cand = [x for x in range(ng) if x > gi and x not in used] or [ng - 1]
                gi = cand[0]
                used.add(gi)
                gaps[gi]["scal"].append(ins)
            if hi is not None:
                assert gi <= hi, (gi, hi, chain)
            return gi

        vm = "vmcnt(%d)" % (4 * (R - 3))
        if not last:
            e_last = egaps[-1]
            e_prev = egaps[-2]
            used.add(e_last)
            used.add(e_prev)
            kw = max(x for x in egaps if x < vstart[nq - 1])
            used.add(kw)
            nds = sum(1 for x in range(kw) for f in gaps[x]["flex"] if f.kind == "ds")
            seq = [f for x in range(kw) for f in gaps[x]["flex"] if f.kind == "ds"]
            lastk = max(i for i, f in enumerate(seq) if f.op == "ds_read_b128")
            gaps[kw]["scal"].append(I("s_waitcnt lgkmcnt(%d)" % min(15, len(seq) - 1 - lastk)))
            firstupd = min(x for x in range(ng) for f in gaps[x]["flex"] if f.op == "v_add_u32")
            p = put(self.ring_adv_s(), 0, firstupd - 1)
            if flags:
                pubg = [x for x in range(ng) for f in gaps[x]["flex"] if f.op == "ds_add_u32"][0]
                w = max(x for x in egaps if x < pubg and x not in used)
                assert w > state["ddone"], (w, state)
                used.add(w)
                gaps[w]["scal"].append(I("s_waitcnt " + vm))
                spin, ret = self.lab("spin"), self.lab("spinret")
                self.stubs += [I(spin + ":"), I("ds_read_b32 v%d, v%d" % (vFlag, vChk)), I("s_waitcnt lgkmcnt(0)"),
                               I("v_cmp_gt_u32 vcc, s%d, v%d" % (sThr, vFlag)), I("s_nop 4"),
                               I("s_cbranch_vccnz " + spin), I("s_branch " + ret)]
                gaps[e_prev]["scal"].append(I("s_waitcnt lgkmcnt(0)"))
                gaps[e_prev + 1]["flex"].append(I("v_cmp_gt_u32 vcc, s%d, v%d" % (sThr, vFlag)))
                gaps[e_last]["scal"].append(I("s_cbranch_vccnz " + spin, tag=ret))
                put([I("s_add_u32 s%d, s%d, 1" % (sThr, sThr))], p + 1, e_prev)
            else:
                gaps[e_last]["scal"].append(I("s_waitcnt %s lgkmcnt(0)" % vm))
                gaps[e_last]["scal"].append(I("s_barrier"))
        p = put(self.m0_adv(), state["ddone"] + 1)
        p = put(self.item_adv(), p + 1)
        tail = tail or []
        if tail:
            lastscc = max(x for x in used if any(s.kind == "salu" for s in gaps[x]["scal"]))
            cand = [x for x in egaps if x > lastscc and x not in used]
            if cand:
                gaps[cand[0]]["scal"].append(tail[0])
                tail = tail[1:]
        out = []
        over = 0
        for gi, g in enumerate(gaps):
            if g["m"] is not None:
                out.append(g["m"])
            out += g["scal"]
            mem = [f for f in g["flex"] if f.kind in ("ds", "dma")]
            oth = [f for f in g["flex"] if f.kind not in ("ds", "dma")]
            out += mem
            if g["E"] is not None:
                out.append(g["E"])
            out += g["fixed"] + oth
            c = sum(2 if f.kind == "dma" else 1 for f in g["flex"]) + len(g["fixed"]) + (2 if g["E"] is not None else 0)
            over += max(0, c - 2)
        out += tail
        sys.stderr.write("body nq=%d par=%d first=%d last=%d gaps=%d overflow=%d\n" % (nq, par, first, last, ng, over))
        return self.expand(out)

    def prescale(self, nq, i, raw):
        out = []
        for ks in range(4):
            f, dst = qreg(nq, i, ks)
            for j in range(4):
                x = raw + 4 * ks + j
                t = vS + 2 * ((4 * ks + j) % 8)
                out.append([I("v_lshlrev_b32 v%d, 16, v%d" % (t, x)),
                            I("v_and_b32 v%d, 0xffff0000, v%d" % (t + 1, x)),
                            I("v_pk_mul_f32 %s, %s, %s" % (vr(t, 2), vr(t, 2), sr(sCc, 2)))] +
                           ([I("v_cvt_pk_bf16_f32 v%d, v%d, v%d" % (dst + j, t, t + 1))] if f == "v" else
                            [I("v_cvt_pk_bf16_f32 v%d, v%d, v%d" % (t, t, t + 1)),
                             I("v_accvgpr_write_b32 a%d, v%d" % (dst + j, t))]))
        res = []
        for base in range(0, 16, 4):
            grp = out[base:base + 4]
            for s in range(max(len(c) for c in grp)):
                for c in grp:
                    if s < len(c):
                        res.append(c[s])
        return res

    def masks(self):
        out = [I("v_mbcnt_lo_u32_b32 v%d, -1, 0" % vT1), I("v_mbcnt_hi_u32_b32 v%d, -1, v%d" % (vT1, vT1)),
               I("v_lshrrev_b32 v%d, 4, v%d" % (vT1, vT1)), I("v_lshlrev_b32 v%d, 2, v%d" % (vT1, vT1)),
               I("v_subrev_u32 v%d, s%d, v%d" % (vT1, sC + 4, vT1)),
               I("v_mov_b32 v%d, 0xff800000" % vT2)]
        for j in range(8):
            kv = (j & 3) + 16 * (j >> 2)
            out.append(I("v_add_u32 v%d, %d, v%d" % (vMask + j, kv, vT1)))
        for j in range(8):
            out.append(I("v_ashrrev_i32 v%d, 31, v%d" % (vMask + j, vMask + j)))
        for j in range(8):
            out.append(I("v_bfi_b32 v%d, v%d, 0, v%d" % (vMask + j, vMask + j, vT2)))
        return out

    def jobstart(self, nq, first):
        out = []
        raw = lambda i: vO + 16 * i
        qrd = lambda i: ([I("v_add_u32 v%d, v%d, v%d" % (vT3, vKa, vQd))] +
                         [I("ds_read_b128 %s, v%d offset:%d" % (vr(raw(i) + 4 * ks, 4), vT3, 64 * ks)) for ks in range(4)] +
                         self.ring_adv())
        kv = [kread(0, b, ks) for b in range(2) for ks in range(4)] + [vread(0, db, jj) for db in range(8) for jj in range(2)]
        if first:
            out += self.masks()
            for i in range(nq):
                out += [I("s_waitcnt vmcnt(%d)" % (4 * (R - 2 - i))), I("s_barrier")]
                out += qrd(i) + [I("s_waitcnt lgkmcnt(0)")] + self.prescale(nq, i, raw(i))
            out += [I("s_waitcnt vmcnt(%d)" % (4 * (R - 2 - nq))), I("s_barrier")]
            out += kv + self.ring_adv()
            out += [I("s_waitcnt lgkmcnt(15)")]
        else:
            for i in range(nq):
                out += qrd(i)
            out += self.masks()
            for i in range(nq):
                if i == 0:
                    out += [I("s_waitcnt lgkmcnt(%d)" % (4 * (nq - 1)))]
                    out += self.prescale(nq, i, raw(i))
                    out += [I("s_waitcnt lgkmcnt(0)")] + kv + self.ring_adv()
                else:
                    out += self.prescale(nq, i, raw(i))
            out += [I("s_waitcnt lgkmcnt(15)")]
        out += qk(nq, 0, 0, 0, True)
        if first:
            out += [I("s_waitcnt vmcnt(%d) lgkmcnt(0)" % (4 * (R - 3 - nq))), I("s_barrier")]
        else:
            out += [I("s_waitcnt lgkmcnt(0)"), I("s_barrier")]
        for i in range(nq):
            out += self.issue_item()
        out += [EXP(0, 0), EXP(0, 1), EXP(0, 2), EXP(0, 3), EXP(0, 4), CVT(0, 0), CVT(0, 1)]
        out += [I("s_sub_u32 s%d, s%d, 3" % (sLoop, sC + 3))]
        return out

    def epilogue(self, nq):
        o = self.o
        ob = ones_blocks(nq, o.ones[nq])
        addb = [i for i in range(nq) if i not in ob]
        out = []
        rl = lambda i: vS + 2 * i
        for i in range(nq):
            if i in ob:
                out.append(I("v_accvgpr_read_b32 v%d, a%d" % (rl(i), aL + 4 * ob.index(i))))
        for i in addb:
            l = vL + 2 * addb.index(i)
            out.append(I("v_add_f32 v%d, v%d, v%d" % (rl(i), l, l + 1)))
        for sw in ("v_permlane16_swap_b32", "v_permlane32_swap_b32"):
            for i in addb:
                out.append(I("v_mov_b32 v%d, v%d" % (rl(i) + 1, rl(i))))
            for i in addb:
                out.append(I("%s v%d, v%d" % (sw, rl(i), rl(i) + 1)))
            for i in addb:
                out.append(I("v_add_f32 v%d, v%d, v%d" % (rl(i), rl(i), rl(i) + 1)))
        for i in range(nq):
            out.append(I("v_subrev_u32 v%d, 0x%x, v%d" % (rl(i) + 1, LO_BITS, rl(i))))
        for i in range(nq):
            out.append(I("v_rcp_f32 v%d, v%d" % (rl(i), rl(i))))
        for i in range(nq):
            out.append(I("v_max_u32 v%d, v%d, v%d" % (vBad, vBad, rl(i) + 1)))
        out.append(I("s_mov_b32 s%d, s%d" % (sSt, sC)))
        out.append(I("s_mov_b32 s%d, s%d" % (sO_ + 2, sC + 1)))
        p = (" " + o.nto) if o.nto else ""
        for i in range(nq):
            for e in range(4):
                b = vO + 32 * i + 8 * e
                for j in range(4):
                    out.append(I("v_pk_mul_f32 %s, %s, %s op_sel_hi:[1,0]" % (vr(b + 2 * j, 2), vr(b + 2 * j, 2), vr(rl(i), 2))))
                for j in range(4):
                    out.append(I("v_cvt_pk_bf16_f32 v%d, v%d, v%d" % (b + j, b + 2 * j, b + 2 * j + 1)))
                out.append(I("buffer_store_dwordx4 %s, v%d, %s, s%d offen offset:%d%s" % (vr(b, 4), vOst, sr(sO_, 4), sSt, 64 * e, p)))
            if i < nq - 1:
                out.append(I("s_add_u32 s%d, s%d, %d" % (sSt, sSt, 64 * 4096)))
        return out

    def addr_setup(self):
        t1, t2, t3, ln = vT1, vT2, vT3, vT4
        o = []
        A = lambda s: o.append(I(s))
        A("v_lshrrev_b32 v%d, 6, v0" % t1)
        A("v_and_b32 v%d, 63, v0" % ln)
        A("v_readfirstlane_b32 s%d, v%d" % (sW, t1))
        A("v_lshrrev_b32 v%d, 4, v%d" % (t2, ln))
        A("v_and_b32 v%d, 15, v%d" % (t3, ln))
        A("v_lshlrev_b32 v%d, 13, v%d" % (vo0, t1))
        A("v_lshl_add_u32 v%d, v%d, 15, v%d" % (vo0, t2, vo0))
        A("v_lshl_add_u32 v%d, v%d, 4, v%d" % (vo0, t3, vo0))
        A("v_add_u32 v%d, %d, v%d" % (vo1, 4096 - K1OFF, vo0))
        A("v_add_u32 v%d, %d, v%d" % (vo3, 4096 - (V1OFF - V0OFF), vo0))
        A("v_lshl_add_u32 v%d, v%d, 4, v%d" % (vOst, t1, t3))
        A("v_lshlrev_b32 v%d, 12, v%d" % (vOst, vOst))
        A("v_lshl_add_u32 v%d, v%d, 4, v%d" % (vOst, t2, vOst))
        A("v_bfe_u32 v%d, v%d, 1, 2" % (vKa, ln))
        A("v_mul_u32_u24 v%d, %d, v%d" % (vKa, WREG, vKa))
        A("v_and_b32 v%d, 1, v%d" % (vT4 + 1, ln))
        A("v_mul_u32_u24 v%d, %d, v%d" % (vT4 + 2, K1OFF, vT4 + 1))
        A("v_add_u32 v%d, v%d, v%d" % (vKa, vKa, vT4 + 2))
        A("v_bfe_u32 v%d, v%d, 3, 1" % (vT4 + 2, ln))
        A("v_lshl_add_u32 v%d, v%d, 8, v%d" % (vKa, vT4 + 2, vKa))
        A("v_lshl_add_u32 v%d, v%d, 4, v%d" % (vKa, t2, vKa))
        A("v_mul_u32_u24 v%d, %d, v%d" % (vT4 + 2, K1OFF - (V1OFF - V0OFF), vT4 + 1))
        A("v_sub_u32 v%d, %d, v%d" % (vT4 + 2, V0OFF, vT4 + 2))
        A("v_lshrrev_b32 v%d, 1, v%d" % (vT4 + 3, t1))
        A("v_mul_u32_u24 v%d, v%d, v%d" % (vQd, vT4 + 2, vT4 + 3))
        A("v_and_b32 v%d, 1, v%d" % (vT4 + 3, t1))
        A("v_lshl_add_u32 v%d, v%d, 9, v%d" % (vQd, vT4 + 3, vQd))
        A("v_bfe_u32 v%d, v%d, 3, 2" % (vVa, ln))
        A("v_mul_u32_u24 v%d, %d, v%d" % (vVa, WREG, vVa))
        A("v_bfe_u32 v%d, v%d, 2, 1" % (vT4 + 2, ln))
        A("v_mul_u32_u24 v%d, %d, v%d" % (vT4 + 2, V1OFF - V0OFF, vT4 + 2))
        A("v_add_u32 v%d, v%d, v%d" % (vVa, vVa, vT4 + 2))
        A("v_lshrrev_b32 v%d, 5, v%d" % (vT4 + 2, ln))
        A("v_lshl_add_u32 v%d, v%d, 8, v%d" % (vVa, vT4 + 2, vVa))
        A("v_and_b32 v%d, 3, v%d" % (vT4 + 2, ln))
        A("v_lshl_add_u32 v%d, v%d, 4, v%d" % (vVa, vT4 + 2, vVa))
        A("v_add_u32 v%d, %d, v%d" % (vVa, V0OFF, vVa))
        A("v_mul_u32_u24 v%d, 260, v%d" % (vChk, vT4 + 2))
        A("v_add_u32 v%d, %d, v%d" % (vChk, FLAG, vChk))
        A("v_lshlrev_b32 v%d, 2, v0" % vPub)
        A("v_add_u32 v%d, %d, v%d" % (vPub, FLAG, vPub))
        A("v_mov_b32 v%d, 1" % vOne)
        return o

    def decode_job(self, d0, d1, dst):
        o = []
        A = lambda s: o.append(I(s))
        A("s_bfe_u32 s%d, s%d, 0x10010" % (sT2, d0))
        A("s_lshl_b32 s%d, s%d, 8" % (sT2, sT2))
        A("s_add_u32 s%d, s%d, s%d" % (sT2, sT2, sTmp))
        A("s_and_b32 s%d, s%d, 0x1fff" % (dst, d0))
        A("s_lshl_b32 s%d, s%d, 12" % (dst, dst))
        A("s_add_u32 s%d, s%d, s%d" % (dst, dst, sT2))
        A("s_and_b32 s%d, s%d, 0x1fff" % (dst + 1, d1))
        A("s_lshl_b32 s%d, s%d, 12" % (dst + 1, dst + 1))
        A("s_add_u32 s%d, s%d, s%d" % (dst + 1, dst + 1, sT2))
        A("s_lshr_b32 s%d, s%d, 13" % (dst + 2, d1))
        A("s_lshl_b32 s%d, s%d, 12" % (dst + 2, dst + 2))
        A("s_bfe_u32 s%d, s%d, 0x3000d" % (dst + 3, d0))
        A("s_lshr_b32 s%d, s%d, 20" % (dst + 4, d0))
        return o

    def set_compute(self, j):
        o = []
        A = lambda s: o.append(I(s))
        A("s_mov_b32 s%d, s%d" % (sC, j))
        A("s_mov_b32 s%d, s%d" % (sC + 1, j + 2))
        A("s_mov_b32 s%d, s%d" % (sC + 2, j + 3))
        A("s_mov_b32 s%d, s%d" % (sC + 3, j + 4))
        A("s_lshr_b32 s%d, s%d, 12" % (sT2, j + 2))
        A("s_lshr_b32 s%d, s%d, 12" % (sT3, j + 1))
        A("s_sub_u32 s%d, s%d, s%d" % (sT2, sT2, sT3))
        A("s_lshl_b32 s%d, s%d, 5" % (sT3, j + 4))
        A("s_sub_u32 s%d, s%d, s%d" % (sT2, sT2, sT3))
        A("s_add_u32 s%d, s%d, 32" % (sC + 4, sT2))
        return o

    def seg_q(self):
        o = []
        A = lambda s: o.append(I(s))
        A("s_mov_b32 s%d, s%d" % (sA, sQp))
        A("s_mov_b32 s%d, s%d" % (sA + 1, sQp + 1))
        A("s_mov_b32 s%d, s%d" % (sA + 2, sJ + 2))
        A("s_mov_b32 s%d, s%d" % (sB, sQp2))
        A("s_mov_b32 s%d, s%d" % (sB + 1, sQp2 + 1))
        A("s_sub_u32 s%d, s%d, %d" % (sB + 2, sJ + 2, 32 * 4096 - V0OFF))
        A("s_mov_b32 s%d, s%d" % (sSoff, sJ))
        A("s_mov_b32 s%d, %d" % (sStride, 64 * 4096))
        A("s_sub_u32 s%d, s%d, 1" % (sCnt, sJ + 3))
        A("s_mov_b32 s%d, 0" % sSeg)
        return o

    def segswitch(self):
        o = []
        A = lambda s: o.append(I(s))
        A("L_segswitch:")
        A("s_add_u32 s%d, s%d, 1" % (sSeg, sSeg))
        A("s_cmp_eq_u32 s%d, 2" % sSeg)
        A("s_cbranch_scc1 L_seg_main")
        A("s_cmp_eq_u32 s%d, 1" % sSeg)
        A("s_cbranch_scc1 L_seg_tail")
        A("s_cmp_eq_u32 s%d, 0" % sHave2)
        A("s_cbranch_scc1 L_seg_none")
        A("s_mov_b32 s%d, 0" % sHave2)
        for j in range(5):
            A("s_mov_b32 s%d, s%d" % (sJ + j, sJ2 + j))
        o += self.seg_q()
        A("s_setpc_b64 %s" % sr(sLink, 2))
        A("L_seg_none:")
        A("s_mov_b32 s%d, 0" % (sA + 2))
        A("s_mov_b32 s%d, 0" % (sB + 2))
        A("s_mov_b32 s%d, 0" % sSoff)
        A("s_mov_b32 s%d, 0" % sStride)
        A("s_mov_b32 s%d, 0x7fffffff" % sCnt)
        A("s_setpc_b64 %s" % sr(sLink, 2))
        A("L_seg_tail:")
        A("s_mov_b32 s%d, s%d" % (sA, sKp))
        A("s_mov_b32 s%d, s%d" % (sA + 1, sKp + 1))
        A("s_mov_b32 s%d, s%d" % (sB, sVp))
        A("s_mov_b32 s%d, s%d" % (sB + 1, sVp + 1))
        A("s_add_u32 s%d, s%d, %d" % (sB + 2, sJ + 2, V0OFF))
        A("s_sub_u32 s%d, s%d, 1" % (sSoff, sJ + 4))
        A("s_lshl_b32 s%d, s%d, 17" % (sSoff, sSoff))
        A("s_add_u32 s%d, s%d, s%d" % (sSoff, sSoff, sJ + 1))
        A("s_mov_b32 s%d, %d" % (sStride, 32 * 4096))
        A("s_mov_b32 s%d, 0" % sCnt)
        A("s_setpc_b64 %s" % sr(sLink, 2))
        A("L_seg_main:")
        A("s_mov_b32 s%d, s%d" % (sSoff, sJ + 1))
        A("s_sub_u32 s%d, s%d, 2" % (sCnt, sJ + 4))
        A("s_setpc_b64 %s" % sr(sLink, 2))
        return o

    def dispatch(self, prefix):
        o = []
        for nq in self.o.nqs[:-1]:
            o += [I("s_cmp_eq_u32 s%d, %d" % (sC + 2, nq)), I("s_cbranch_scc1 %s%d" % (prefix, nq))]
        o.append(I("s_branch %s%d" % (prefix, self.o.nqs[-1])))
        return o

    def slow(self):
        o = []
        A = lambda s: o.append(I(s))
        Qf, Kf, Vf, Oa, S, P = 192, 128, 160, 64, vS, vP
        m, l, al, t, u = vL, vL + 1, vL + 2, vL + 3, vL + 4
        vSrc, vG4 = vL + 5, vL + 6
        sJob, sBlk, sTile, sRow, sLeft, sBase = 74, 75, 76, 77, 78, 79
        sj = 80
        A("L_slow:")
        A("s_waitcnt vmcnt(0)")
        A("v_mbcnt_lo_u32_b32 v0, -1, 0")
        A("v_mbcnt_hi_u32_b32 v0, -1, v0")
        A("v_lshrrev_b32 v%d, 4, v0" % vG4)
        A("v_and_b32 v%d, 15, v0" % t)
        A("v_lshlrev_b32 v%d, 15, v%d" % (vSrc, vG4))
        A("v_lshl_add_u32 v%d, v%d, 4, v%d" % (vSrc, t, vSrc))
        A("v_lshlrev_b32 v%d, 2, v%d" % (vG4, vG4))
        A("s_lshl_b32 s%d, s%d, 6" % (sT2, sW))
        A("v_add_u32 v0, s%d, v0" % sT2)
        o += self.addr_setup()
        A("s_mul_i32 s%d, s%d, %d" % (sBase, sW, SLOT))
        A("v_add_u32 v%d, s%d, v%d" % (vKa, sBase, vKa))
        A("v_add_u32 v%d, s%d, v%d" % (vVa, sBase, vVa))
        A("s_mov_b32 s%d, 0" % sJob)
        for j in range(5):
            A("s_mov_b32 s%d, s%d" % (sj + j, sJ1 + j))
        A("L_slow_job:")
        A("s_mov_b32 s%d, 0" % sBlk)
        A("L_slow_blk:")
        A("s_mov_b32 s%d, s%d" % (sA, sQp))
        A("s_mov_b32 s%d, s%d" % (sA + 1, sQp + 1))
        A("s_mov_b32 s%d, s%d" % (sA + 2, sj + 2))
        A("s_lshl_b32 s%d, s%d, 18" % (sSt, sBlk))
        A("s_add_u32 s%d, s%d, s%d" % (sSt, sSt, sj))
        for ks in range(4):
            A("buffer_load_dwordx4 %s, v%d, %s, s%d offen offset:%d" % (vr(Kf + 4 * ks, 4), vOst, sr(sA, 4), sSt, 64 * ks))
        A("s_waitcnt vmcnt(0)")
        for j in range(16):
            A("v_lshlrev_b32 v%d, 16, v%d" % (t, Kf + j))
            A("v_and_b32 v%d, 0xffff0000, v%d" % (u, Kf + j))
            A("v_mul_f32 v%d, s%d, v%d" % (t, sCc, t))
            A("v_mul_f32 v%d, s%d, v%d" % (u, sCc, u))
            A("v_cvt_pk_bf16_f32 v%d, v%d, v%d" % (Qf + j, t, u))
        for j in range(32):
            A("v_mov_b32 v%d, 0" % (Oa + j))
        A("v_mov_b32 v%d, 0xff800000" % m)
        A("v_mov_b32 v%d, 0" % l)
        A("s_mov_b32 s%d, s%d" % (sA, sKp))
        A("s_mov_b32 s%d, s%d" % (sA + 1, sKp + 1))
        A("s_mov_b32 s%d, s%d" % (sB, sVp))
        A("s_mov_b32 s%d, s%d" % (sB + 1, sVp + 1))
        A("s_add_u32 s%d, s%d, %d" % (sB + 2, sj + 2, V0OFF))
        A("s_mov_b32 s%d, s%d" % (sRow, sj + 1))
        A("s_lshr_b32 s%d, s%d, 12" % (sLeft, sj + 2))
        A("s_lshr_b32 s%d, s%d, 12" % (sT2, sj + 1))
        A("s_sub_u32 s%d, s%d, s%d" % (sLeft, sLeft, sT2))
        A("s_mov_b32 s%d, s%d" % (sTile, sj + 4))
        A("L_slow_tile:")
        for sg in range(8):
            A("s_add_u32 s%d, s%d, %d" % (sT2, sRow, sg * 4096))
            A("s_add_u32 m0, s%d, %d" % (sBase, (sg >> 1) * WREG + (sg & 1) * K1OFF))
            A("buffer_load_dwordx4 v%d, %s, s%d offen lds" % (vSrc, sr(sA, 4), sT2))
            A("s_add_u32 m0, s%d, %d" % (sBase, (sg >> 1) * WREG + (sg & 1) * (V1OFF - V0OFF)))
            A("buffer_load_dwordx4 v%d, %s, s%d offen offset:%d lds" % (vSrc, sr(sB, 4), sT2, V0OFF))
        A("s_waitcnt vmcnt(0)")
        for b in range(2):
            for ks in range(4):
                A("ds_read_b128 %s, v%d offset:%d" % (vr(Kf + 16 * b + 4 * ks, 4), vKa, b * 512 + ks * 64))
        A("s_waitcnt lgkmcnt(0)")
        for db in range(8):
            for jj in range(2):
                A("ds_read_b64_tr_b16 %s, v%d offset:%d" % (vr(Vf + 4 * db + 2 * jj, 2), vVa, jj * 512 + 64 * (db >> 1) + 8 * (db & 1)))
        for b in range(2):
            for ks in range(4):
                d = vr(S + 4 * b, 4)
                o.append(mf(d, vr(Kf + 16 * b + 4 * ks, 4), vr(Qf + 4 * ks, 4), d if ks else "0"))
        A("v_mov_b32 v%d, 0xff800000" % u)
        for j in range(8):
            A("v_add_u32 v%d, %d, v%d" % (t, (j & 3) + 16 * (j >> 2), vG4))
            A("v_cmp_gt_u32 vcc, s%d, v%d" % (sLeft, t))
            A("v_cndmask_b32 v%d, v%d, v%d, vcc" % (S + j, u, S + j))
        A("v_max3_f32 v%d, v%d, v%d, v%d" % (t, S, S + 1, S + 2))
        A("v_max3_f32 v%d, v%d, v%d, v%d" % (t, t, S + 3, S + 4))
        A("v_max3_f32 v%d, v%d, v%d, v%d" % (t, t, S + 5, S + 6))
        A("v_max3_f32 v%d, v%d, v%d, v%d" % (t, t, S + 7, m))
        for sw in ("v_permlane16_swap_b32", "v_permlane32_swap_b32"):
            A("v_mov_b32 v%d, v%d" % (u, t))
            A("%s v%d, v%d" % (sw, t, u))
            A("v_max_f32 v%d, v%d, v%d" % (t, t, u))
        A("v_sub_f32 v%d, v%d, v%d" % (al, m, t))
        A("v_exp_f32 v%d, v%d" % (al, al))
        A("v_mov_b32 v%d, v%d" % (m, t))
        for j in range(8):
            A("v_sub_f32 v%d, v%d, v%d" % (S + j, S + j, m))
        for j in range(8):
            A("v_exp_f32 v%d, v%d" % (S + j, S + j))
        A("v_mul_f32 v%d, v%d, v%d" % (l, l, al))
        for j in range(8):
            A("v_add_f32 v%d, v%d, v%d" % (l, l, S + j))
        for j in range(4):
            A("v_cvt_pk_bf16_f32 v%d, v%d, v%d" % (P + j, S + 2 * j, S + 2 * j + 1))
        for j in range(32):
            A("v_mul_f32 v%d, v%d, v%d" % (Oa + j, Oa + j, al))
        A("s_waitcnt lgkmcnt(0)")
        for db in range(8):
            d = vr(Oa + 4 * db, 4)
            o.append(mf(d, vr(Vf + 4 * db, 4), vr(P, 4), d))
        A("s_add_u32 s%d, s%d, %d" % (sRow, sRow, 32 * 4096))
        A("s_sub_u32 s%d, s%d, 32" % (sLeft, sLeft))
        A("s_nop 7")
        A("s_sub_u32 s%d, s%d, 1" % (sTile, sTile))
        A("s_cmp_lg_u32 s%d, 0" % sTile)
        A("s_cbranch_scc1 L_slow_tile")
        for sw in ("v_permlane16_swap_b32", "v_permlane32_swap_b32"):
            A("v_mov_b32 v%d, v%d" % (u, l))
            A("%s v%d, v%d" % (sw, l, u))
            A("v_add_f32 v%d, v%d, v%d" % (l, l, u))
        A("v_rcp_f32 v%d, v%d" % (l, l))
        A("s_mov_b32 s%d, s%d" % (sO_ + 2, sj + 2))
        for j in range(32):
            A("v_mul_f32 v%d, v%d, v%d" % (Oa + j, Oa + j, l))
        for e in range(4):
            b = Oa + 8 * e
            for j in range(4):
                A("v_cvt_pk_bf16_f32 v%d, v%d, v%d" % (b + j, b + 2 * j, b + 2 * j + 1))
            A("buffer_store_dwordx4 %s, v%d, %s, s%d offen offset:%d" % (vr(b, 4), vOst, sr(sO_, 4), sSt, 64 * e))
        A("s_waitcnt vmcnt(0)")
        A("s_add_u32 s%d, s%d, 1" % (sBlk, sBlk))
        A("s_cmp_lt_u32 s%d, s%d" % (sBlk, sj + 3))
        A("s_cbranch_scc1 L_slow_blk")
        A("s_cmp_lg_u32 s%d, 0" % sJob)
        A("s_cbranch_scc1 L_end")
        A("s_mov_b32 s%d, 1" % sJob)
        for j in range(5):
            A("s_mov_b32 s%d, s%d" % (sj + j, sJ2 + j))
        A("s_cmp_lg_u32 s%d, 0" % (sj + 3))
        A("s_cbranch_scc1 L_slow_job")
        A("s_branch L_end")
        return check(o, fix=True, name="slow")

    def stamp(self, idx):
        if not self.o.stamp:
            return []
        return [I("s_memrealtime s[%d:%d]" % (86 + 2 * idx, 87 + 2 * idx))]

    def kernel(self, table):
        o = self.o
        nqmax = max(o.nqs)
        out = []
        A = lambda s: out.append(I(s))
        A("s_cmp_ge_u32 s2, 256")
        A("s_cbranch_scc1 L_end")
        out += self.stamp(0)
        if o.padto:
            A("s_memrealtime s[98:99]")
        A("s_load_dwordx4 %s, s[0:1], 0" % sr(sQp, 4))
        A("s_load_dwordx2 %s, s[0:1], 16" % sr(sVp, 2))
        A("s_load_dwordx2 %s, s[0:1], 32" % sr(sO_, 2))
        A("s_getpc_b64 %s" % sr(sTab, 2))
        A("L_pc:")
        A("s_lshr_b32 s%d, s2, 3" % sTmp)
        A("s_lshl_b32 s%d, s%d, 4" % (sTmp, sTmp))
        A("s_add_u32 s%d, s%d, L_table-L_pc" % (sTmp, sTmp))
        A("s_add_u32 s%d, s%d, s%d" % (sTab, sTab, sTmp))
        A("s_addc_u32 s%d, s%d, 0" % (sTab + 1, sTab + 1))
        A("s_load_dwordx4 %s, %s, 0" % (sr(sTd, 4), sr(sTab, 2)))
        out += self.addr_setup()
        A("v_mov_b32 v%d, 0" % vBad)
        A("ds_write_b32 v%d, v%d" % (vPub, vBad))
        A("v_mov_b32 v%d, 0x3f803f80" % vT1)
        for j in range(4):
            A("v_accvgpr_write_b32 a%d, v%d" % (aOnes + j, vT1))
        A("s_mul_i32 s%d, s%d, %d" % (sWb, sW, WREG))
        A("s_add_u32 s%d, s%d, %d" % (sMlim, sWb, R * SLOT))
        A("s_mov_b32 m0, s%d" % sWb)
        A("s_mov_b32 s%d, %d" % (sRc, R - 1))
        A("s_mov_b32 s%d, 0" % sThr)
        A("s_mov_b32 s%d, %d" % (sPos, SLOT))
        A("s_mov_b32 s%d, %d" % (sNeg, -(R - 1) * SLOT))
        A("s_mov_b32 s%d, 0x%x" % (sCc, SCALE_BITS))
        A("s_mov_b32 s%d, 0x%x" % (sCc + 1, SCALE_BITS))
        A("s_mov_b32 s%d, 0x20000" % (sA + 3))
        A("s_mov_b32 s%d, 0x20000" % (sB + 3))
        A("s_mov_b32 s%d, 0x20000" % (sO_ + 3))
        A("s_mov_b32 s%d, 0" % (sO_ + 2))
        A("s_and_b32 s%d, s2, 7" % sTmp)
        A("s_lshl_b32 s%d, s%d, 9" % (sTmp, sTmp))
        A("s_waitcnt lgkmcnt(0)")
        A("s_add_u32 s%d, s%d, %d" % (sQp2, sQp, 32 * 4096 - V0OFF))
        A("s_addc_u32 s%d, s%d, 0" % (sQp2 + 1, sQp + 1))
        A("s_sub_u32 s%d, s%d, %d" % (sVp, sVp, V0OFF))
        A("s_subb_u32 s%d, s%d, 0" % (sVp + 1, sVp + 1))
        out += self.decode_job(sTd, sTd + 1, sJ)
        out += self.seg_q()
        out += self.issue_item()
        out += self.decode_job(sTd + 2, sTd + 3, sJ2)
        for j in range(5):
            A("s_mov_b32 s%d, s%d" % (sJ1 + j, sJ + j))
        A("s_mov_b32 s%d, s%d" % (sHave2, sJ2 + 3))
        A("s_mov_b32 s%d, s%d" % (sNext, sJ2 + 3))
        out += self.set_compute(sJ)
        A("s_mov_b32 s%d, %d" % (sLoop, R - 3))
        A("L_fill:")
        out += self.issue_item()
        A("s_sub_u32 s%d, s%d, 1" % (sLoop, sLoop))
        A("s_cbranch_scc0 L_fill")
        out += self.stamp(1)
        out += self.dispatch("L_first")
        out = check(out, fix=True, name="entry")
        for nq in o.nqs:
            js1 = check(self.jobstart(nq, True), fix=True, name="js1")
            js2 = check(self.jobstart(nq, False), fix=True, name="js2")
            dec = I("s_sub_u32 s%d, s%d, 1" % (sLoop, sLoop))
            b0 = self.body(nq, 0, first=True)
            bA = self.body(nq, 1, tail=[dec, I("s_cbranch_scc1 L_lastB%d" % nq)])
            bB = self.body(nq, 0, tail=[dec, I("s_cbranch_scc0 L_loop%d" % nq)])
            lA = self.body(nq, 1, last=True)
            lB = self.body(nq, 0, last=True)
            pre = [I("s_waitcnt vmcnt(%d)" % (4 * (R - 3 - nqmax))), I("s_barrier")]
            ep = self.epilogue(nq)
            lA = check(lA, fix=True, name="lastA")
            lB = check(lB, fix=True, name="lastB")
            for x, y, n in ((js1, b0, "js1-b0"), (js2, b0, "js2-b0"), (b0, bA, "b0-bA"), (bA, bB, "bA-bB"), (bB, bA, "bB-bA"),
                            (bA, lB, "bA-lB"), (bB, lA, "bB-lA")):
                check(x + y, name="%s nq=%d" % (n, nq))
            epA = check(lA + pre + ep, fix=True, name="ep")[len(lA):]
            check(lB + [I("s_nop 0")] + epA, name="lB-ep")
            out += [I("L_second%d:" % nq)] + js2 + [I("s_branch L_body%d" % nq)]
            out += [I("L_first%d:" % nq)] + js1 + [I("L_body%d:" % nq)] + self.stamp(2) + b0
            out += [I(".p2align 6"), I("L_loop%d:" % nq)] + bA + bB + lA + [I("L_epi%d:" % nq)] + self.stamp(3) + epA
            out += [I("s_cmp_eq_u32 s%d, 0" % sNext), I("s_cbranch_scc1 L_fin%d" % nq), I("s_mov_b32 s%d, 0" % sNext)]
            out += self.set_compute(sJ2) + self.dispatch("L_second")
            out += [I("L_fin%d:" % nq), I("s_waitcnt vmcnt(%d)" % (4 * nq)), I("s_branch L_fin")]
            out += [I("L_lastB%d:" % nq)] + lB + [I("s_branch L_epi%d" % nq)]
        A = lambda s: out.append(I(s))
        A("L_fin:")
        A("s_barrier")
        if o.stamp:
            A("s_memrealtime s[94:95]")
            A("s_waitcnt vmcnt(0)")
            A("s_memrealtime s[96:97]")
            A("s_load_dwordx2 s[4:5], s[0:1], 48")
            A("s_waitcnt lgkmcnt(0)")
            A("s_mov_b32 s6, 0x100000")
            A("s_lshl_b32 s3, s2, 2")
            A("s_add_u32 s3, s3, s%d" % sW)
            A("s_lshl_b32 s3, s3, 5")
            for j in range(6):
                A("v_mov_b32 v%d, s%d" % (64 + j, 86 + 2 * j))
            A("v_mov_b32 v70, 0")
            A("buffer_store_dwordx4 v[64:67], v70, s[4:7], s3 offen")
            A("buffer_store_dwordx2 v[68:69], v70, s[4:7], s3 offen offset:16")
        if o.padto:
            A("s_waitcnt vmcnt(0)")
            A("L_pad:")
            A("s_memrealtime s[100:101]")
            A("s_waitcnt lgkmcnt(0)")
            A("s_sub_u32 s100, s100, s98")
            A("s_cmp_lt_u32 s100, %d" % (o.padto * 100))
            A("s_cbranch_scc1 L_pad")
        A("v_cmp_lt_u32 vcc, 0x%x, v%d" % (HI_BITS - LO_BITS, vBad))
        A("s_nop 4")
        A("s_cbranch_vccnz L_slow")
        A("L_end:")
        A("s_endpgm")
        out += self.segswitch()
        out += self.stubs
        out += self.slow()
        txt = [x.text for x in out]
        txt.append(".p2align 4")
        txt.append("L_table:")
        for e in table:
            txt.append(".long 0x%x, 0x%x, 0x%x, 0x%x" % tuple(e))
        return txt


def make_table(bins):
    nxt = {}
    tab = []
    for jobs in bins:
        e = []
        for (s, hh, nq) in jobs:
            u = nxt.get((s, hh), 0)
            nxt[(s, hh)] = u + nq
            q0 = CU[s] + 64 * u
            n = (CU[s + 1] - CU[s] + 31) // 32
            e += [q0 | nq << 13 | hh << 16 | n << 20, CU[s] | CU[s + 1] << 13]
        e += [0, 0] * (2 - len(jobs))
        tab.append(e)
    for s in range(8):
        for hh in range(2):
            assert nxt[(s, hh)] == (CU[s + 1] - CU[s] + 63) // 64, (s, hh, nxt)
    assert len(tab) == 32
    return tab


HEADER = """; varlen (packed, ragged) non-causal attention forward, bf16, T=6042 H=16 D=128, 8 sequences (cu is a constant of the problem)
; @launch grid=(256,1,1) block=(256,1,1) lds=%d
.amdgcn_target "amdgcn-amd-amdhsa--gfx950"
.text
.globl %s
.p2align 8
.type %s,@function
%s:
"""
FOOTER = """.section .rodata,"a"
.p2align 6
.amdhsa_kernel %s
  .amdhsa_next_free_vgpr 512
  .amdhsa_next_free_sgpr 102
  .amdhsa_accum_offset 256
  .amdhsa_group_segment_fixed_size 0
  .amdhsa_kernarg_size 56
  .amdhsa_user_sgpr_count 2
  .amdhsa_user_sgpr_kernarg_segment_ptr 1
  .amdhsa_system_sgpr_workgroup_id_x 1
.end_amdhsa_kernel
"""


def parse_bins(s):
    U = [(CU[i + 1] - CU[i] + 63) // 64 for i in range(8)]
    jobs = []
    for bi, b in enumerate(s.split()):
        for ji, j in enumerate(b.split("+")):
            if j[0] != "-":
                jobs.append((bi, ji, "ABCDEFGH".index(j[0]), int(j[1])))
    hh = {}
    for s_ in range(8):
        mine = [j for j in jobs if j[2] == s_]
        best = None
        for mask in range(1 << len(mine)):
            if sum(j[3] for k, j in enumerate(mine) if mask >> k & 1) == U[s_]:
                sc = 0
                for h in (0, 1):
                    ph = {j[1] for k, j in enumerate(mine) if (mask >> k & 1) == h}
                    sc += len(ph)
                if best is None or sc < best[0]:
                    best = (sc, mask)
        for k, j in enumerate(mine):
            hh[j[:2]] = best[1] >> k & 1
    bins = [[] for _ in range(32)]
    for j in jobs:
        bins[j[0]].append((j[2], hh[j[:2]], j[3]))
    return bins


SCHED = "B2+C4 B2+C4 B2+C4 B2+C4 B2+C4 B2+H4 E2+F4 G2+F4 G2+F4 G2+F4 A3+C3 A3+C3 A3+C3 A3+C3 B4+G4 H2+G4 H2+G4 H2+H3 H2+H3 H2+H3 E3+H3 E3+H3 E3+H3 E3+D4 D3+D4 D3+D4 D3+E4 D3+E4 G3+F3 G3+F3 F3+A4 F3+A4"


def build(o, sched=SCHED):
    g = Gen(o)
    body = g.kernel(make_table(parse_bins(sched)))
    return HEADER % (LDS_BYTES, KNAME, KNAME, KNAME) + "\n".join(body) + "\n" + FOOTER % KNAME


if __name__ == "__main__":
    o = Opt()
    path = sys.argv[1]
    for a in sys.argv[2:]:
        k, v = a.split("=")
        setattr(o, k, eval(v))
    open(path, "w").write(build(o))
```

```python
import sys, struct, math
from isa import I, check

KNAME = "standalone__varlen_attn_packed__ragged_kernel"
CU = [0, 580, 1085, 2082, 2797, 3498, 4341, 5079, 6042]

R = 9
SLOT = 16640
WREG = 4160
K1OFF, V0OFF, V1OFF = 1056, 2080, 3136
FLAG = R * SLOT
LDS_BYTES = FLAG + 1280

vT0 = 0
vKa, vVa, vo0, vo1, vo3, vOst, vQd, vPub, vChk, vOne, vFlag, vBad = range(1, 13)
vT1, vT2, vT3 = 13, 14, 15
vMask = 16
vS = 24
vP = 40
vL = 48
vWr, vRr = 56, 57
vT4 = 58
vO = 64
aK = 0
aV = 64
aOnes = 128
aL = 132
aQ = 160
sA, sB, sO_ = 4, 8, 12
sQp, sKp, sVp, sQp2 = 16, 18, 20, 22
sSoff, sStride, sCnt, sSeg = 24, 25, 26, 27
sWb, sMlim, sRc, sDelta, sLoop, sThr, sPos, sNeg = 28, 29, 30, 31, 32, 33, 34, 35
sJ = 36
sJ2 = 41
sC = 46
sJ1 = 52
sHave2, sLink, sCc, sNext, sTmp, sTab, sTd, sW = 57, 58, 60, 62, 63, 66, 68, 72
sT2, sT3 = 64, 65
sSt = 73
sExtra, sRem = 85, 51
EMIN, EMAX = 3, R - 4
SCALE = math.log2(math.e) / math.sqrt(128.0)
SCALE_BITS = struct.unpack("<I", struct.pack("<f", SCALE))[0]
LO_BITS = (127 - 40) << 23
HI_BITS = (127 + 40) << 23


class Opt:
    sync = "flags"
    ntkv = ""
    nto = ""
    nqs = (2, 3, 4, 5)
    ones = {1: 1, 2: 2, 3: 3, 4: 2, 5: 2, 6: 2}
    stamp = False
    padto = 0
    codepf = True
    deep = 1
    fpos = 13
    nq2max = 4
    drop = ()


def vr(b, n=1):
    return "v%d" % b if n == 1 else "v[%d:%d]" % (b, b + n - 1)


def ar(b, n=1):
    return "a%d" % b if n == 1 else "a[%d:%d]" % (b, b + n - 1)


def sr(b, n=1):
    return "s%d" % b if n == 1 else "s[%d:%d]" % (b, b + n - 1)


def qreg(nq, i, ks):
    free = (256 - (vO + 32 * nq)) // 16
    if i < free:
        return "v", vO + 32 * nq + 16 * i + 4 * ks
    return "a", aQ + 16 * (i - free) + 4 * ks


def qop(nq, i, ks):
    f, b = qreg(nq, i, ks)
    return vr(b, 4) if f == "v" else ar(b, 4)


def ones_blocks(nq, k):
    if k >= nq:
        return list(range(nq))
    if k == 1:
        return [0]
    if k == 2:
        return [0, (nq + 1) // 2]
    return [0] + list(range(nq - k + 1, nq))


def mf(d, a, b, c):
    return I("v_mfma_f32_16x16x32_bf16 %s, %s, %s, %s" % (d, a, b, c))


def qk(nq, i, kbuf, sset, masked):
    out = []
    for b in range(2):
        d = vr(vS + 8 * sset + 4 * b, 4)
        for ks in range(4):
            c = d if ks else (vr(vMask + 4 * b, 4) if masked else "0")
            out.append(mf(d, ar(aK + 32 * kbuf + 16 * b + 4 * ks, 4), qop(nq, i, ks), c))
    return out


def pv(i, vbuf, pset, zero):
    out = []
    for db in range(8):
        d = vr(vO + 32 * i + 4 * db, 4)
        out.append(mf(d, ar(aV + 32 * vbuf + 4 * db, 4), vr(vP + 4 * pset, 4), "0" if zero else d))
    return out


def onesm(slot, pset, zero):
    d = ar(aL + 4 * slot, 4)
    return mf(d, ar(aOnes, 4), vr(vP + 4 * pset, 4), "0" if zero else d)


def EXP(sset, j):
    r = vS + 8 * sset + j
    return I("v_exp_f32 v%d, v%d" % (r, r))


def CVT(sset, j):
    r = vS + 8 * sset + 2 * j
    return I("v_cvt_pk_bf16_f32 v%d, v%d, v%d" % (vP + 4 * sset + j, r, r + 1))


def kread(buf, b, ks):
    return I("ds_read_b128 %s, v%d offset:%d" % (ar(aK + 32 * buf + 16 * b + 4 * ks, 4), vKa, b * 512 + ks * 64))


def vread(buf, db, jj):
    return I("ds_read_b64_tr_b16 %s, v%d offset:%d" % (ar(aV + 32 * buf + 4 * db + 2 * jj, 2), vVa,
                                                      jj * 512 + 32 * db))


def dmas(o):
    p = (" " + o.ntkv) if o.ntkv else ""
    return [I("buffer_load_dwordx4 v%d, %s, s%d offen%s lds" % (vo0, sr(sA, 4), sSoff, p)),
            I("buffer_load_dwordx4 v%d, %s, s%d offen offset:%d%s lds" % (vo1, sr(sA, 4), sSoff, K1OFF, p)),
            I("buffer_load_dwordx4 v%d, %s, s%d offen offset:%d%s lds" % (vo0, sr(sB, 4), sSoff, V0OFF, p)),
            I("buffer_load_dwordx4 v%d, %s, s%d offen offset:%d%s lds" % (vo1, sr(sB, 4), sSoff, V1OFF, p))]


class Gen:
    def __init__(self, o):
        self.o = o
        self.stubs = []
        self.nlab = 0

    def lab(self, p):
        self.nlab += 1
        return "L_%s_%d" % (p, self.nlab)

    def m0_adv(self):
        return [I("s_add_u32 m0, m0, s%d" % sPos), I("s_cmp_eq_u32 m0, s%d" % sMlim), I("s_cselect_b32 m0, s%d, m0" % sWb)]

    def item_adv(self):
        st, ret = self.lab("seg"), self.lab("segret")
        self.stubs += [I(st + ":"), I("s_call_b64 %s, L_segswitch" % sr(sLink, 2)), I("s_branch " + ret)]
        return [I("s_add_u32 s%d, s%d, s%d" % (sSoff, sSoff, sStride)),
                I("s_sub_u32 s%d, s%d, 1" % (sCnt, sCnt)),
                I("s_cbranch_scc1 " + st, tag=ret)]

    def ring_adv_s(self):
        return [I("s_sub_u32 s%d, s%d, 1" % (sRc, sRc)),
                I("s_cselect_b32 s%d, s%d, s%d" % (sDelta, sNeg, sPos)),
                I("s_cselect_b32 s%d, %d, s%d" % (sRc, R - 1, sRc))]

    def issue_item(self):
        out = dmas(self.o) + self.m0_adv() + self.item_adv()
        return self.expand(out)

    @staticmethod
    def expand(seq):
        out = []
        for x in seq:
            out.append(x)
            if x.kind == "branch" and x.tag:
                out.append(I(x.tag + ":"))
        return out

    def ring_adv(self):
        return self.ring_adv_s() + [I("v_add_u32 v%d, s%d, v%d" % (vKa, sDelta, vKa)), I("v_add_u32 v%d, s%d, v%d" % (vVa, sDelta, vVa))]

    def body(self, nq, par, first=False, last=False, tail=None):
        o = self.o
        k = o.ones[nq]
        ob = ones_blocks(nq, k)
        addb = [i for i in range(nq) if i not in ob]
        syncb = (first or par == 1) and not last
        sset = lambda t, i: ((par ^ t) * nq + i) & 1
        gaps = []
        vstart = []
        flex = []

        def gap(m, E=None, fixed=None):
            gaps.append(dict(m=m, E=E, fixed=fixed or [], scal=[], flex=[]))
            return len(gaps) - 1

        lcount = {}

        def ADD(i, ss, j):
            n = lcount.get(i, 0)
            lcount[i] = n + 1
            l = vL + 2 * addb.index(i) + (n & 1)
            r = vS + 8 * ss + j
            if first and n < 2:
                return I("v_mov_b32 v%d, v%d" % (l, r))
            return I("v_add_f32 v%d, v%d, v%d" % (l, l, r))

        adds = []
        for v in range(nq):
            vstart.append(len(gaps))
            nxt_t, nxt_i = (0, v + 1) if v < nq - 1 else (1, 0)
            has_qk = not (last and v == nq - 1)
            sc, sn = sset(0, v), sset(nxt_t, nxt_i)
            qm = qk(nq, nxt_i, par ^ nxt_t, sn, first and nxt_t == 0) if has_qk else [None] * 8
            pm = pv(v, par, sc, first)
            for g in range(16):
                m = qm[g] if g < 8 else pm[g - 8]
                E, fixed = None, []
                if g in (1, 3, 5):
                    E = (v, sc, 5 + g // 2)
                elif g in (7, 9, 11, 13, 15) and has_qk:
                    E = (nxt_i if nxt_t == 0 else -1, sn, (g - 7) // 2)
                if g == 2:
                    fixed = [CVT(sc, 2)]
                if g == 6:
                    fixed = [CVT(sc, 3)]
                if g == 10 and has_qk:
                    fixed = [CVT(sn, 0)]
                if g == 14 and has_qk:
                    fixed = [CVT(sn, 1)]
                gi = gap(m, EXP(E[1], E[2]) if E else None, fixed)
                if E and E[0] in addb:
                    adds.append((E[0], gi, E[1], E[2]))
            if v in ob:
                gap(onesm(ob.index(v), sc, first))
        ng = len(gaps)
        vstart.append(ng)
        for (i, gi, ss, j) in adds:
            dl = ng - 1
            if i + 1 < nq:
                dl = vstart[i + 1] - 1 + (4 if j >= 4 else 0)
            flex.append([gi + 1, dl, 1, 5, ("add", i, ss, j)])
        lastE = max(i for i, g in enumerate(gaps) if g["E"] is not None)
        endwait = None
        if not last:
            kdl = vstart[nq - 1] - 5
            for b in range(2):
                for ks in range(4):
                    flex.append([0, kdl, 1, 1, kread(par ^ 1, b, ks)])
            vdl = ng - 9
            for db in range(8):
                for jj in range(2):
                    flex.append([0, vdl, 1, 2, vread(par ^ 1, db, jj)])
        ddl = max(ng // 2 - 4, 6) if nq > 2 else 19
        for d in dmas(o):
            flex.append([0, ddl, 2, 0, d])
        pend = sorted(flex, key=lambda f: (f[1], f[3]))
        order_ds = []
        placed = {}
        slotgaps = [i for i, g in enumerate(gaps) if g["E"] is None]

        def remaining_cap(gi, upto):
            return sum(2 - len(gaps[x]["fixed"]) for x in slotgaps if gi <= x <= upto)

        bonus = set()
        if not last:
            nfl = 3 if (o.sync == "flags" and syncb) else 0
            need_ = sum(f[2] for f in flex if f[1] <= vdl) + nfl
            ov = need_ - remaining_cap(0, vdl)
            cand = [x for x in slotgaps if x <= vdl]
            for j in range(max(0, ov)):
                bonus.add(cand[(j * len(cand)) // ov] if ov <= len(cand) else cand[j % len(cand)])
        extra = []
        flags = o.sync == "flags" and syncb
        state = dict(kdone=None, vdone=None, ddone=None)
        nk = nv = nd = 0
        for gi in range(ng):
            g = gaps[gi]
            cap = 0 if g["E"] is not None else 2 - len(g["fixed"]) + (1 if gi in bonus else 0)
            while True:
                ready = [f for f in pend if f[0] <= gi]
                if not ready:
                    break
                pick = None
                for f in ready:
                    if f[2] <= cap:
                        pick = f
                        break
                    if f[2] == 2 and cap == 1 and f[1] - gi < 4:
                        continue
                forced = [f for f in ready if f[1] <= gi]
                if pick is None and forced:
                    pick = forced[0]
                if pick is None:
                    break
                if pick[2] == 1 and cap >= 2:
                    two = [f for f in ready if f[2] == 2]
                    urgent = [f for f in pend if f[2] == 1 and f[1] < two[0][1]] if two else []
                    if two and (not urgent or remaining_cap(gi + 1, urgent[-1][1]) + sum(1 for x in bonus if gi < x <= urgent[-1][1]) >= len(urgent)):
                        pick = two[0]
                pend.remove(pick)
                cap -= pick[2]
                ins = pick[4]
                if isinstance(ins, tuple) and ins[0] == "add":
                    ins = ADD(ins[1], ins[2], ins[3])
                g["flex"].append(ins)
                if ins.op == "ds_read_b128":
                    nk += 1
                    if nk == 8:
                        state["kdone"] = gi
                        pend.append([gi + 1, ng - 1, 1, 6, I("v_add_u32 v%d, s%d, v%d" % (vKa, sDelta, vKa))])
                elif ins.op == "ds_read_b64_tr_b16":
                    nv += 1
                    if nv == 16:
                        state["vdone"] = gi
                        pend.append([gi + 1, ng - 1, 1, 6, I("v_add_u32 v%d, s%d, v%d" % (vVa, sDelta, vVa))])
                elif ins.kind == "dma":
                    nd += 1
                    if nd == 4:
                        state["ddone"] = gi
                        if flags:
                            pg = max(gi + 2, ng // 2 - 2)
                            assert pg + 2 < ng - o.fpos - 3 or nq == 2
                            pend.append([pg, pg + 4, 1, 0, I("ds_add_u32 v%d, v%d" % (vPub, vOne))])
                            pend.append([ng - o.fpos - 3, ng - o.fpos, 1, 0, I("ds_read_b32 v%d, v%d" % (vFlag, vChk))])
                pend.sort(key=lambda f: (f[1], f[3]))
        assert not pend, pend
        egaps = [i for i, g in enumerate(gaps) if g["E"] is not None]
        used = set()

        def put(chain, lo, hi=None):
            gi = lo - 1
            for ins in chain:
                cand = [x for x in egaps if x > gi and x not in used]
                if not cand:
                    cand = [x for x in range(ng) if x > gi and x not in used] or [ng - 1]
                gi = cand[0]
                used.add(gi)
                gaps[gi]["scal"].append(ins)
            if hi is not None:
                assert gi <= hi, (gi, hi, chain)
            return gi

        vm = "vmcnt(%d)" % (4 * (EMIN if first else EMIN - 1 + o.deep))
        if not last:
            e_last = egaps[-1]
            e_prev = egaps[-2]
            used.add(e_last)
            used.add(e_prev)
            kw = max(x for x in egaps if x < vstart[nq - 1])
            used.add(kw)
            nds = sum(1 for x in range(kw) for f in gaps[x]["flex"] if f.kind == "ds")
            seq = [f for x in range(kw) for f in gaps[x]["flex"] if f.kind == "ds"]
            lastk = max(i for i, f in enumerate(seq) if f.op == "ds_read_b128")
            gaps[kw]["scal"].append(I("s_waitcnt lgkmcnt(%d)" % min(15, len(seq) - 1 - lastk)))
            firstupd = min(x for x in range(ng) for f in gaps[x]["flex"] if f.op == "v_add_u32")
            p = put(self.ring_adv_s(), 0, firstupd - 1)
            if flags:
                pubg = [x for x in range(ng) for f in gaps[x]["flex"] if f.op == "ds_add_u32"][0]
                w = max(x for x in egaps if x < pubg and x not in used)
                assert w > state["ddone"], (w, state)
                used.add(w)
                gaps[w]["scal"].append(I("s_waitcnt " + vm))
                spin, ret = self.lab("spin"), self.lab("spinret")
                self.stubs += [I(spin + ":"), I("ds_read_b32 v%d, v%d" % (vFlag, vChk)), I("s_waitcnt lgkmcnt(0)"),
                               I("v_cmp_gt_u32 vcc, s%d, v%d" % (sThr, vFlag)), I("s_nop 4"),
                               I("s_cbranch_vccnz " + spin), I("s_branch " + ret)]
                fg = [x for x in range(ng) for f in gaps[x]["flex"] if f.op == "ds_read_b32"][0]
                wg = min(x for x in egaps if x >= fg + 5 and x not in used)
                used.add(wg)
                seq2 = [f for x in range(wg) for f in gaps[x]["flex"] if f.kind == "ds"]
                fi = [i for i, f in enumerate(seq2) if f.op == "ds_read_b32"][0]
                gaps[wg]["scal"].append(I("s_waitcnt lgkmcnt(%d)" % (len(seq2) - 1 - fi)))
                cg = min((x for x in range(wg + 1, e_prev) if gaps[x]["E"] is None),
                         key=lambda x: (len(gaps[x]["flex"]) + len(gaps[x]["fixed"]) >= 2, x))
                gaps[cg]["flex"].append(I("v_cmp_gt_u32 vcc, s%d, v%d" % (sThr, vFlag)))
                gaps[e_prev]["scal"].append(I("s_waitcnt lgkmcnt(0)"))
                gaps[e_last]["scal"].append(I("s_cbranch_vccnz " + spin, tag=ret))
                put([I("s_add_u32 s%d, s%d, 1" % (sThr, sThr))], p + 1, cg)
            elif syncb:
                gaps[e_last]["scal"].append(I("s_waitcnt %s lgkmcnt(0)" % vm))
                gaps[e_last]["scal"].append(I("s_barrier"))
            else:
                gaps[e_prev]["scal"].append(I("s_waitcnt lgkmcnt(0)"))
        p = put(self.m0_adv(), state["ddone"] + 1)
        p = put(self.item_adv(), p + 1)
        tail = tail or []
        if tail:
            lastscc = max(x for x in used if any(s.kind == "salu" for s in gaps[x]["scal"]))
            cand = [x for x in egaps if x > lastscc and x not in used]
            if cand:
                gaps[cand[0]]["scal"].append(tail[0])
                tail = tail[1:]
        out = []
        over = 0
        for gi, g in enumerate(gaps):
            if g["m"] is not None:
                out.append(g["m"])
            out += g["scal"]
            mem = [f for f in g["flex"] if f.kind in ("ds", "dma")]
            oth = [f for f in g["flex"] if f.kind not in ("ds", "dma")]
            out += mem
            if g["E"] is not None:
                out.append(g["E"])
            out += g["fixed"] + oth
            c = sum(2 if f.kind == "dma" else 1 for f in g["flex"]) + len(g["fixed"]) + (2 if g["E"] is not None else 0)
            over += max(0, c - 2)
        out += tail
        if o.drop and not last:
            def keep(x):
                for d in o.drop:
                    if first and d != "flag": continue
                    if d == "dma" and x.kind == "dma": return False
                    if d == "flag" and (x.op in ("ds_add_u32", "ds_read_b32", "s_cbranch_vccnz") or x.op.startswith("v_cmp")): return False
                    if d == "br" and x.op == "s_cbranch_vccnz": return False
                    if d == "vm" and "vmcnt" in x.text: return False
                    if d == "lg" and "lgkmcnt" in x.text: return False
                    if d == "kv" and x.op in ("ds_read_b128", "ds_read_b64_tr_b16"): return False
                    if d == "salu" and x.kind == "salu" and x.writes != {("s", sLoop)}: return False
                    if d == "salu" and x.op == "s_cbranch_scc1" and x.tag: return False
                return True
            out = [x if keep(x) else (I(x.tag + ":") if x.kind == "branch" and x.tag else None) for x in out]
            out = [x for x in out if x is not None]
        sys.stderr.write("body nq=%d par=%d first=%d last=%d gaps=%d overflow=%d\n" % (nq, par, first, last, ng, over))
        return self.expand(out)

    def prescale(self, nq, i, raw):
        out = []
        for ks in range(4):
            f, dst = qreg(nq, i, ks)
            for j in range(4):
                x = raw + 4 * ks + j
                t = vS + 2 * ((4 * ks + j) % 8)
                out.append([I("v_lshlrev_b32 v%d, 16, v%d" % (t, x)),
                            I("v_and_b32 v%d, 0xffff0000, v%d" % (t + 1, x)),
                            I("v_pk_mul_f32 %s, %s, %s" % (vr(t, 2), vr(t, 2), sr(sCc, 2)))] +
                           ([I("v_cvt_pk_bf16_f32 v%d, v%d, v%d" % (dst + j, t, t + 1))] if f == "v" else
                            [I("v_cvt_pk_bf16_f32 v%d, v%d, v%d" % (t, t, t + 1)),
                             I("v_accvgpr_write_b32 a%d, v%d" % (dst + j, t))]))
        res = []
        for base in range(0, 16, 4):
            grp = out[base:base + 4]
            for s in range(max(len(c) for c in grp)):
                for c in grp:
                    if s < len(c):
                        res.append(c[s])
        return res

    def masks(self):
        out = [I("v_mbcnt_lo_u32_b32 v%d, -1, 0" % vT1), I("v_mbcnt_hi_u32_b32 v%d, -1, v%d" % (vT1, vT1)),
               I("v_lshrrev_b32 v%d, 4, v%d" % (vT1, vT1)), I("v_lshlrev_b32 v%d, 2, v%d" % (vT1, vT1)),
               I("v_subrev_u32 v%d, s%d, v%d" % (vT1, sC + 4, vT1)),
               I("v_mov_b32 v%d, 0xff800000" % vT2)]
        for j in range(8):
            kv = (j & 3) + 16 * (j >> 2)
            out.append(I("v_add_u32 v%d, %d, v%d" % (vMask + j, kv, vT1)))
        for j in range(8):
            out.append(I("v_ashrrev_i32 v%d, 31, v%d" % (vMask + j, vMask + j)))
        for j in range(8):
            out.append(I("v_bfi_b32 v%d, v%d, 0, v%d" % (vMask + j, vMask + j, vT2)))
        return out

    def jobstart(self, nq, first):
        out = []
        raw = lambda i: vO + 16 * i
        qrd = lambda i: ([I("v_add_u32 v%d, v%d, v%d" % (vT3, vKa, vQd))] +
                         [I("ds_read_b128 %s, v%d offset:%d" % (vr(raw(i) + 4 * ks, 4), vT3, 64 * ks)) for ks in range(4)] +
                         self.ring_adv())
        kv = [kread(0, b, ks) for b in range(2) for ks in range(4)] + [vread(0, db, jj) for db in range(8) for jj in range(2)]
        if first:
            out += self.masks()
            for i in range(nq):
                out += [I("s_waitcnt vmcnt(8)"), I("s_barrier")]
                out += qrd(i) + self.issue_item() + [I("s_waitcnt lgkmcnt(0)")] + self.prescale(nq, i, raw(i))
            out += [I("s_waitcnt vmcnt(8)"), I("s_barrier")]
            out += kv + self.ring_adv() + self.issue_item()
            out += [I("s_waitcnt lgkmcnt(15)")]
        else:
            for i in range(nq):
                out += qrd(i)
            out += self.fstamp(8) + self.masks() + self.fstamp(9)
            for i in range(nq):
                if i == 0:
                    out += [I("s_waitcnt lgkmcnt(%d)" % min(15, 4 * (nq - 1)))]
                    out += self.prescale(nq, i, raw(i)) + self.fstamp(10)
                    out += [I("s_waitcnt lgkmcnt(0)")] + kv + self.ring_adv() + self.fstamp(11)
                else:
                    out += self.prescale(nq, i, raw(i)) + self.fstamp(11 + i)
            out += [I("s_waitcnt lgkmcnt(15)")]
        out += qk(nq, 0, 0, 0, True)
        if first:
            out += [I("s_waitcnt vmcnt(8) lgkmcnt(0)"), I("s_barrier")] + self.issue_item()
        else:
            out += self.fstamp(15) + [I("s_waitcnt lgkmcnt(0)"), I("s_barrier")] + self.fstamp(16)
            for i in range(max(0, nq + EMIN - EMAX)):
                out += self.issue_item()
        out += [EXP(0, 0), EXP(0, 1), EXP(0, 2), EXP(0, 3), EXP(0, 4), CVT(0, 0), CVT(0, 1)]
        out += [I("s_sub_u32 s%d, s%d, 3" % (sLoop, sC + 3))]
        return out

    def epilogue(self, nq):
        o = self.o
        ob = ones_blocks(nq, o.ones[nq])
        addb = [i for i in range(nq) if i not in ob]
        out = []
        rl = lambda i: vS + 2 * i
        out += self.fstamp(20)
        for i in range(nq):
            if i in ob:
                out.append(I("v_accvgpr_read_b32 v%d, a%d" % (rl(i), aL + 4 * ob.index(i))))
        for i in addb:
            l = vL + 2 * addb.index(i)
            out.append(I("v_add_f32 v%d, v%d, v%d" % (rl(i), l, l + 1)))
        for sw in ("v_permlane16_swap_b32", "v_permlane32_swap_b32"):
            for i in addb:
                out.append(I("v_mov_b32 v%d, v%d" % (rl(i) + 1, rl(i))))
            for i in addb:
                out.append(I("%s v%d, v%d" % (sw, rl(i), rl(i) + 1)))
            for i in addb:
                out.append(I("v_add_f32 v%d, v%d, v%d" % (rl(i), rl(i), rl(i) + 1)))
        for i in range(nq):
            out.append(I("v_subrev_u32 v%d, 0x%x, v%d" % (rl(i) + 1, LO_BITS, rl(i))))
        for i in range(nq):
            out.append(I("v_rcp_f32 v%d, v%d" % (rl(i), rl(i))))
        for i in range(nq):
            out.append(I("v_max_u32 v%d, v%d, v%d" % (vBad, vBad, rl(i) + 1)))
        out += self.fstamp(21)
        out.append(I("s_mov_b32 s%d, s%d" % (sSt, sC)))
        out.append(I("s_mov_b32 s%d, s%d" % (sO_ + 2, sC + 1)))
        w0, r0, r1 = vP, vT1, vT2
        out += [I("s_sub_u32 s%d, %d, s%d" % (sT2, R - 2, sRc)), I("s_cselect_b32 s%d, %d, s%d" % (sT2, R - 1, sT2)),
                I("s_mul_i32 s%d, s%d, %d" % (sT2, sT2, SLOT)), I("s_add_u32 s%d, s%d, s%d" % (sT2, sT2, sWb)),
                I("v_add_u32 v%d, s%d, v%d" % (w0, sT2, vWr)), I("v_xad_u32 v%d, v%d, 32, s%d" % (w0 + 1, vWr, sT2)),
                I("v_xad_u32 v%d, v%d, 64, s%d" % (w0 + 2, vWr, sT2)), I("v_xor_b32 v%d, 0x60, v%d" % (w0 + 3, vWr)),
                I("v_add_u32 v%d, s%d, v%d" % (w0 + 3, sT2, w0 + 3)),
                I("v_add_u32 v%d, s%d, v%d" % (r0, sT2, vRr)), I("v_xad_u32 v%d, v%d, 64, s%d" % (r1, vRr, sT2))]
        p = (" " + o.nto) if o.nto else ""

        def store(i, e):
            b = vO + 32 * i + 8 * e + 4
            res = [I("buffer_store_dwordx4 %s, v%d, %s, s%d offen%s" % (vr(b, 4), vOst, sr(sO_, 4), sSt, p))]
            if not (i == nq - 1 and e == 3):
                res.append(I("s_add_u32 s%d, s%d, %d" % (sSt, sSt, 4 * 4096 if e < 3 else 52 * 4096)))
            return res
        for i in range(nq):
            for db in range(8):
                b = vO + 32 * i + 4 * db
                for j in range(2):
                    out.append(I("v_pk_mul_f32 %s, %s, %s op_sel_hi:[1,0]" % (vr(b + 2 * j, 2), vr(b + 2 * j, 2), vr(rl(i), 2))))
                if i > 0 and db == 3:
                    out.append(I("s_waitcnt lgkmcnt(3)"))
                if i > 0 and db in (3, 4, 6, 7):
                    out += store(i - 1, (3, 4, 6, 7).index(db))
                for j in range(2):
                    out.append(I("v_cvt_pk_bf16_f32 v%d, v%d, v%d" % (b + j, b + 2 * j, b + 2 * j + 1)))
                out.append(I("ds_write_b64 v%d, %s offset:%d" % (w0 + (db & 3), vr(b, 2), 128 * (db >> 2))))
            for e in range(4):
                b = vO + 32 * i + 8 * e + 4
                out.append(I("ds_read_b128 %s, v%d offset:%d" % (vr(b, 4), r1 if e & 1 else r0, 1024 * e)))
            out += self.fstamp(22 + i)
        for e in range(4):
            out += [I("s_waitcnt lgkmcnt(%d)" % (3 - e))] + store(nq - 1, e)
        return out

    def addr_setup(self):
        t1, t2, t3, ln = vT1, vT2, vT3, vT4
        o = []
        A = lambda s: o.append(I(s))
        A("v_lshrrev_b32 v%d, 6, v0" % t1)
        A("v_and_b32 v%d, 63, v0" % ln)
        A("v_readfirstlane_b32 s%d, v%d" % (sW, t1))
        A("v_lshrrev_b32 v%d, 4, v%d" % (t2, ln))
        A("v_and_b32 v%d, 15, v%d" % (t3, ln))
        A("v_lshlrev_b32 v%d, 13, v%d" % (vo0, t1))
        A("v_lshl_add_u32 v%d, v%d, 15, v%d" % (vo0, t2, vo0))
        A("v_lshl_add_u32 v%d, v%d, 4, v%d" % (vo0, t3, vo0))
        A("v_add_u32 v%d, %d, v%d" % (vo1, 4096 - K1OFF, vo0))
        A("v_lshl_add_u32 v%d, v%d, 4, v%d" % (vOst, t1, t2))
        A("v_lshlrev_b32 v%d, 12, v%d" % (vOst, vOst))
        A("v_lshl_add_u32 v%d, v%d, 4, v%d" % (vOst, t3, vOst))
        A("v_and_b32 v%d, 7, v%d" % (vWr, t3))
        A("v_lshrrev_b32 v%d, 1, v%d" % (vRr, t2))
        A("v_xor_b32 v%d, v%d, v%d" % (vWr, vWr, vRr))
        A("v_lshlrev_b32 v%d, 4, v%d" % (vWr, vWr))
        A("v_and_b32 v%d, 1, v%d" % (vRr, t2))
        A("v_lshl_add_u32 v%d, v%d, 3, v%d" % (vWr, vRr, vWr))
        A("v_lshl_add_u32 v%d, v%d, 8, v%d" % (vWr, t3, vWr))
        A("v_xor_b32 v%d, v%d, v%d" % (vRr, t3, t2))
        A("v_lshlrev_b32 v%d, 4, v%d" % (vRr, vRr))
        A("v_lshl_add_u32 v%d, v%d, 8, v%d" % (vRr, t2, vRr))
        A("v_bfe_u32 v%d, v%d, 1, 2" % (vKa, ln))
        A("v_mul_u32_u24 v%d, %d, v%d" % (vKa, WREG, vKa))
        A("v_and_b32 v%d, 1, v%d" % (vT4 + 1, ln))
        A("v_mul_u32_u24 v%d, %d, v%d" % (vT4 + 2, K1OFF, vT4 + 1))
        A("v_add_u32 v%d, v%d, v%d" % (vKa, vKa, vT4 + 2))
        A("v_bfe_u32 v%d, v%d, 3, 1" % (vT4 + 2, ln))
        A("v_lshl_add_u32 v%d, v%d, 8, v%d" % (vKa, vT4 + 2, vKa))
        A("v_lshl_add_u32 v%d, v%d, 4, v%d" % (vKa, t2, vKa))
        A("v_lshrrev_b32 v%d, 1, v%d" % (vT4 + 3, t1))
        A("v_mul_u32_u24 v%d, %d, v%d" % (vQd, V0OFF, vT4 + 3))
        A("v_and_b32 v%d, 1, v%d" % (vT4 + 3, t1))
        A("v_lshl_add_u32 v%d, v%d, 9, v%d" % (vQd, vT4 + 3, vQd))
        A("v_bfe_u32 v%d, v%d, 3, 2" % (vVa, ln))
        A("v_mul_u32_u24 v%d, %d, v%d" % (vVa, WREG, vVa))
        A("v_bfe_u32 v%d, v%d, 2, 1" % (vT4 + 2, ln))
        A("v_mul_u32_u24 v%d, %d, v%d" % (vT4 + 2, V1OFF - V0OFF, vT4 + 2))
        A("v_add_u32 v%d, v%d, v%d" % (vVa, vVa, vT4 + 2))
        A("v_lshrrev_b32 v%d, 5, v%d" % (vT4 + 2, ln))
        A("v_lshl_add_u32 v%d, v%d, 8, v%d" % (vVa, vT4 + 2, vVa))
        A("v_and_b32 v%d, 3, v%d" % (vT4 + 2, ln))
        A("v_lshl_add_u32 v%d, v%d, 3, v%d" % (vVa, vT4 + 2, vVa))
        A("v_add_u32 v%d, %d, v%d" % (vVa, V0OFF, vVa))
        A("v_mul_u32_u24 v%d, 260, v%d" % (vChk, vT4 + 2))
        A("v_add_u32 v%d, %d, v%d" % (vChk, FLAG, vChk))
        A("v_lshlrev_b32 v%d, 2, v0" % vPub)
        A("v_add_u32 v%d, %d, v%d" % (vPub, FLAG, vPub))
        A("v_mov_b32 v%d, 1" % vOne)
        return o

    def decode_job(self, d0, d1, dst):
        o = []
        A = lambda s: o.append(I(s))
        A("s_bfe_u32 s%d, s%d, 0x10010" % (sT2, d0))
        A("s_lshl_b32 s%d, s%d, 8" % (sT2, sT2))
        A("s_add_u32 s%d, s%d, s%d" % (sT2, sT2, sTmp))
        A("s_and_b32 s%d, s%d, 0x1fff" % (dst, d0))
        A("s_lshl_b32 s%d, s%d, 12" % (dst, dst))
        A("s_add_u32 s%d, s%d, s%d" % (dst, dst, sT2))
        A("s_and_b32 s%d, s%d, 0x1fff" % (dst + 1, d1))
        A("s_lshl_b32 s%d, s%d, 12" % (dst + 1, dst + 1))
        A("s_add_u32 s%d, s%d, s%d" % (dst + 1, dst + 1, sT2))
        A("s_lshr_b32 s%d, s%d, 13" % (dst + 2, d1))
        A("s_lshl_b32 s%d, s%d, 12" % (dst + 2, dst + 2))
        A("s_bfe_u32 s%d, s%d, 0x3000d" % (dst + 3, d0))
        A("s_lshr_b32 s%d, s%d, 20" % (dst + 4, d0))
        return o

    def set_compute(self, j):
        o = []
        A = lambda s: o.append(I(s))
        A("s_mov_b32 s%d, s%d" % (sC, j))
        A("s_mov_b32 s%d, s%d" % (sC + 1, j + 2))
        A("s_mov_b32 s%d, s%d" % (sC + 2, j + 3))
        A("s_mov_b32 s%d, s%d" % (sC + 3, j + 4))
        A("s_lshr_b32 s%d, s%d, 12" % (sT2, j + 2))
        A("s_lshr_b32 s%d, s%d, 12" % (sT3, j + 1))
        A("s_sub_u32 s%d, s%d, s%d" % (sT2, sT2, sT3))
        A("s_lshl_b32 s%d, s%d, 5" % (sT3, j + 4))
        A("s_sub_u32 s%d, s%d, s%d" % (sT2, sT2, sT3))
        A("s_add_u32 s%d, s%d, 32" % (sC + 4, sT2))
        return o

    def seg_q(self):
        o = []
        A = lambda s: o.append(I(s))
        A("s_mov_b32 s%d, s%d" % (sA, sQp))
        A("s_mov_b32 s%d, s%d" % (sA + 1, sQp + 1))
        A("s_mov_b32 s%d, s%d" % (sA + 2, sJ + 2))
        A("s_mov_b32 s%d, s%d" % (sB, sQp2))
        A("s_mov_b32 s%d, s%d" % (sB + 1, sQp2 + 1))
        A("s_sub_u32 s%d, s%d, %d" % (sB + 2, sJ + 2, 32 * 4096 - V0OFF))
        A("s_mov_b32 s%d, s%d" % (sSoff, sJ))
        A("s_mov_b32 s%d, %d" % (sStride, 64 * 4096))
        A("s_sub_u32 s%d, s%d, 1" % (sCnt, sJ + 3))
        A("s_mov_b32 s%d, 0" % sSeg)
        return o

    def segswitch(self):
        o = []
        A = lambda s: o.append(I(s))
        A("L_segswitch:")
        A("s_cmp_lg_u32 s%d, 0" % sExtra)
        A("s_cbranch_scc1 L_seg_extra")
        A("s_add_u32 s%d, s%d, 1" % (sSeg, sSeg))
        A("s_cmp_eq_u32 s%d, 2" % sSeg)
        A("s_cbranch_scc1 L_seg_main")
        A("s_cmp_eq_u32 s%d, 1" % sSeg)
        A("s_cbranch_scc1 L_seg_tail")
        A("s_cmp_eq_u32 s%d, 0" % sHave2)
        A("s_cbranch_scc1 L_seg_none")
        A("s_mov_b32 s%d, 0" % sHave2)
        for j in range(5):
            A("s_mov_b32 s%d, s%d" % (sJ + j, sJ2 + j))
        o += self.seg_q()
        A("s_setpc_b64 %s" % sr(sLink, 2))
        A("L_seg_none:")
        A("s_mov_b32 s%d, 0" % (sA + 2))
        A("s_mov_b32 s%d, 0" % (sB + 2))
        A("s_mov_b32 s%d, 0" % sSoff)
        A("s_mov_b32 s%d, 0" % sStride)
        A("s_mov_b32 s%d, 0x7fffffff" % sCnt)
        A("s_setpc_b64 %s" % sr(sLink, 2))
        A("L_seg_tail:")
        A("s_mov_b32 s%d, s%d" % (sA, sKp))
        A("s_mov_b32 s%d, s%d" % (sA + 1, sKp + 1))
        A("s_mov_b32 s%d, s%d" % (sB, sVp))
        A("s_mov_b32 s%d, s%d" % (sB + 1, sVp + 1))
        A("s_add_u32 s%d, s%d, %d" % (sB + 2, sJ + 2, V0OFF))
        A("s_sub_u32 s%d, s%d, 1" % (sSoff, sJ + 4))
        A("s_lshl_b32 s%d, s%d, 17" % (sSoff, sSoff))
        A("s_add_u32 s%d, s%d, s%d" % (sSoff, sSoff, sJ + 1))
        A("s_mov_b32 s%d, %d" % (sStride, 32 * 4096))
        A("s_mov_b32 s%d, 0" % sCnt)
        A("s_setpc_b64 %s" % sr(sLink, 2))
        A("L_seg_main:")
        A("s_mov_b32 s%d, s%d" % (sSoff, sJ + 1))
        A("s_sub_u32 s%d, s%d, 2" % (sCnt, sJ + 4))
        A("s_cmp_eq_u32 s%d, 0" % sHave2)
        A("s_cbranch_scc1 L_seg_ret")
        A("s_sub_u32 s%d, s%d, %d" % (sRem, sCnt, 9 + 2 * (EMAX - EMIN - self.o.deep) - 1))
        A("s_mov_b32 s%d, 8" % sCnt)
        A("s_mov_b32 s%d, %d" % (sExtra, EMAX - EMIN - self.o.deep))
        A("L_seg_ret:")
        A("s_setpc_b64 %s" % sr(sLink, 2))
        A("L_seg_extra:")
        o += dmas(self.o) + self.m0_adv()
        A("s_add_u32 s%d, s%d, s%d" % (sSoff, sSoff, sStride))
        A("s_sub_u32 s%d, s%d, 1" % (sExtra, sExtra))
        A("s_cmp_eq_u32 s%d, 0" % sExtra)
        A("s_cselect_b32 s%d, s%d, 0" % (sCnt, sRem))
        A("s_setpc_b64 %s" % sr(sLink, 2))
        return o

    def dispatch(self, prefix):
        o = []
        nqs = self.o.nq1s if prefix == "L_first" else self.o.nq2s
        for nq in nqs[:-1]:
            o += [I("s_cmp_eq_u32 s%d, %d" % (sC + 2, nq)), I("s_cbranch_scc1 %s%d" % (prefix, nq))]
        o.append(I("s_branch %s%d" % (prefix, nqs[-1])))
        return o

    def slow(self):
        o = []
        A = lambda s: o.append(I(s))
        Qf, Kf, Vf, Oa, S, P = 192, 128, 160, 64, vS, vP
        m, l, al, t, u = vL, vL + 1, vL + 2, vL + 3, vL + 4
        vSrc, vG4 = vL + 5, vL + 6
        sJob, sBlk, sTile, sRow, sLeft, sBase = 74, 75, 76, 77, 78, 79
        sj = 80
        A("L_slow:")
        A("s_waitcnt vmcnt(0)")
        A("v_mbcnt_lo_u32_b32 v0, -1, 0")
        A("v_mbcnt_hi_u32_b32 v0, -1, v0")
        A("v_lshrrev_b32 v%d, 4, v0" % vG4)
        A("v_and_b32 v%d, 15, v0" % t)
        A("v_lshlrev_b32 v%d, 15, v%d" % (vSrc, vG4))
        A("v_lshl_add_u32 v%d, v%d, 4, v%d" % (vSrc, t, vSrc))
        A("v_lshlrev_b32 v%d, 2, v%d" % (vG4, vG4))
        A("s_lshl_b32 s%d, s%d, 6" % (sT2, sW))
        A("v_add_u32 v0, s%d, v0" % sT2)
        o += self.addr_setup()
        A("v_lshl_add_u32 v%d, v%d, 4, v%d" % (vOst, vT1, vT3))
        A("v_lshlrev_b32 v%d, 12, v%d" % (vOst, vOst))
        A("v_lshl_add_u32 v%d, v%d, 3, v%d" % (vo3, vT2, vOst))
        A("v_lshl_add_u32 v%d, v%d, 4, v%d" % (vOst, vT2, vOst))
        A("s_mul_i32 s%d, s%d, %d" % (sBase, sW, SLOT))
        A("v_add_u32 v%d, s%d, v%d" % (vKa, sBase, vKa))
        A("v_add_u32 v%d, s%d, v%d" % (vVa, sBase, vVa))
        A("s_mov_b32 s%d, 0" % sJob)
        for j in range(5):
            A("s_mov_b32 s%d, s%d" % (sj + j, sJ1 + j))
        A("L_slow_job:")
        A("s_mov_b32 s%d, 0" % sBlk)
        A("L_slow_blk:")
        A("s_mov_b32 s%d, s%d" % (sA, sQp))
        A("s_mov_b32 s%d, s%d" % (sA + 1, sQp + 1))
        A("s_mov_b32 s%d, s%d" % (sA + 2, sj + 2))
        A("s_lshl_b32 s%d, s%d, 18" % (sSt, sBlk))
        A("s_add_u32 s%d, s%d, s%d" % (sSt, sSt, sj))
        for ks in range(4):
            A("buffer_load_dwordx4 %s, v%d, %s, s%d offen offset:%d" % (vr(Kf + 4 * ks, 4), vOst, sr(sA, 4), sSt, 64 * ks))
        A("s_waitcnt vmcnt(0)")
        for j in range(16):
            A("v_lshlrev_b32 v%d, 16, v%d" % (t, Kf + j))
            A("v_and_b32 v%d, 0xffff0000, v%d" % (u, Kf + j))
            A("v_mul_f32 v%d, s%d, v%d" % (t, sCc, t))
            A("v_mul_f32 v%d, s%d, v%d" % (u, sCc, u))
            A("v_cvt_pk_bf16_f32 v%d, v%d, v%d" % (Qf + j, t, u))
        for j in range(32):
            A("v_mov_b32 v%d, 0" % (Oa + j))
        A("v_mov_b32 v%d, 0xff800000" % m)
        A("v_mov_b32 v%d, 0" % l)
        A("s_mov_b32 s%d, s%d" % (sA, sKp))
        A("s_mov_b32 s%d, s%d" % (sA + 1, sKp + 1))
        A("s_mov_b32 s%d, s%d" % (sB, sVp))
        A("s_mov_b32 s%d, s%d" % (sB + 1, sVp + 1))
        A("s_add_u32 s%d, s%d, %d" % (sB + 2, sj + 2, V0OFF))
        A("s_mov_b32 s%d, s%d" % (sRow, sj + 1))
        A("s_lshr_b32 s%d, s%d, 12" % (sLeft, sj + 2))
        A("s_lshr_b32 s%d, s%d, 12" % (sT2, sj + 1))
        A("s_sub_u32 s%d, s%d, s%d" % (sLeft, sLeft, sT2))
        A("s_mov_b32 s%d, s%d" % (sTile, sj + 4))
        A("L_slow_tile:")
        for sg in range(8):
            A("s_add_u32 s%d, s%d, %d" % (sT2, sRow, sg * 4096))
            A("s_add_u32 m0, s%d, %d" % (sBase, (sg >> 1) * WREG + (sg & 1) * K1OFF))
            A("buffer_load_dwordx4 v%d, %s, s%d offen lds" % (vSrc, sr(sA, 4), sT2))
            A("s_add_u32 m0, s%d, %d" % (sBase, (sg >> 1) * WREG + (sg & 1) * (V1OFF - V0OFF)))
            A("buffer_load_dwordx4 v%d, %s, s%d offen offset:%d lds" % (vSrc, sr(sB, 4), sT2, V0OFF))
        A("s_waitcnt vmcnt(0)")
        for b in range(2):
            for ks in range(4):
                A("ds_read_b128 %s, v%d offset:%d" % (vr(Kf + 16 * b + 4 * ks, 4), vKa, b * 512 + ks * 64))
        A("s_waitcnt lgkmcnt(0)")
        for db in range(8):
            for jj in range(2):
                A("ds_read_b64_tr_b16 %s, v%d offset:%d" % (vr(Vf + 4 * db + 2 * jj, 2), vVa, jj * 512 + 32 * db))
        for b in range(2):
            for ks in range(4):
                d = vr(S + 4 * b, 4)
                o.append(mf(d, vr(Kf + 16 * b + 4 * ks, 4), vr(Qf + 4 * ks, 4), d if ks else "0"))
        A("v_mov_b32 v%d, 0xff800000" % u)
        for j in range(8):
            A("v_add_u32 v%d, %d, v%d" % (t, (j & 3) + 16 * (j >> 2), vG4))
            A("v_cmp_gt_u32 vcc, s%d, v%d" % (sLeft, t))
            A("v_cndmask_b32 v%d, v%d, v%d, vcc" % (S + j, u, S + j))
        A("v_max3_f32 v%d, v%d, v%d, v%d" % (t, S, S + 1, S + 2))
        A("v_max3_f32 v%d, v%d, v%d, v%d" % (t, t, S + 3, S + 4))
        A("v_max3_f32 v%d, v%d, v%d, v%d" % (t, t, S + 5, S + 6))
        A("v_max3_f32 v%d, v%d, v%d, v%d" % (t, t, S + 7, m))
        for sw in ("v_permlane16_swap_b32", "v_permlane32_swap_b32"):
            A("v_mov_b32 v%d, v%d" % (u, t))
            A("%s v%d, v%d" % (sw, t, u))
            A("v_max_f32 v%d, v%d, v%d" % (t, t, u))
        A("v_sub_f32 v%d, v%d, v%d" % (al, m, t))
        A("v_exp_f32 v%d, v%d" % (al, al))
        A("v_mov_b32 v%d, v%d" % (m, t))
        for j in range(8):
            A("v_sub_f32 v%d, v%d, v%d" % (S + j, S + j, m))
        for j in range(8):
            A("v_exp_f32 v%d, v%d" % (S + j, S + j))
        A("v_mul_f32 v%d, v%d, v%d" % (l, l, al))
        for j in range(8):
            A("v_add_f32 v%d, v%d, v%d" % (l, l, S + j))
        for j in range(4):
            A("v_cvt_pk_bf16_f32 v%d, v%d, v%d" % (P + j, S + 2 * j, S + 2 * j + 1))
        for j in range(32):
            A("v_mul_f32 v%d, v%d, v%d" % (Oa + j, Oa + j, al))
        A("s_waitcnt lgkmcnt(0)")
        for db in range(8):
            d = vr(Oa + 4 * db, 4)
            o.append(mf(d, vr(Vf + 4 * db, 4), vr(P, 4), d))
        A("s_add_u32 s%d, s%d, %d" % (sRow, sRow, 32 * 4096))
        A("s_sub_u32 s%d, s%d, 32" % (sLeft, sLeft))
        A("s_nop 7")
        A("s_sub_u32 s%d, s%d, 1" % (sTile, sTile))
        A("s_cmp_lg_u32 s%d, 0" % sTile)
        A("s_cbranch_scc1 L_slow_tile")
        for sw in ("v_permlane16_swap_b32", "v_permlane32_swap_b32"):
            A("v_mov_b32 v%d, v%d" % (u, l))
            A("%s v%d, v%d" % (sw, l, u))
            A("v_add_f32 v%d, v%d, v%d" % (l, l, u))
        A("v_rcp_f32 v%d, v%d" % (l, l))
        A("s_mov_b32 s%d, s%d" % (sO_ + 2, sj + 2))
        for j in range(32):
            A("v_mul_f32 v%d, v%d, v%d" % (Oa + j, Oa + j, l))
        for db in range(8):
            b = Oa + 4 * db
            for j in range(2):
                A("v_cvt_pk_bf16_f32 v%d, v%d, v%d" % (b + j, b + 2 * j, b + 2 * j + 1))
            A("buffer_store_dwordx2 %s, v%d, %s, s%d offen offset:%d" % (vr(b, 2), vo3, sr(sO_, 4), sSt, 32 * db))
        A("s_waitcnt vmcnt(0)")
        A("s_add_u32 s%d, s%d, 1" % (sBlk, sBlk))
        A("s_cmp_lt_u32 s%d, s%d" % (sBlk, sj + 3))
        A("s_cbranch_scc1 L_slow_blk")
        A("s_cmp_lg_u32 s%d, 0" % sJob)
        A("s_cbranch_scc1 L_end")
        A("s_mov_b32 s%d, 1" % sJob)
        for j in range(5):
            A("s_mov_b32 s%d, s%d" % (sj + j, sJ2 + j))
        A("s_cmp_lg_u32 s%d, 0" % (sj + 3))
        A("s_cbranch_scc1 L_slow_job")
        A("s_branch L_end")
        return check(o, fix=True, name="slow")

    def fstamp(self, idx):
        return self.stamp(idx) if self.o.stamp >= 2 else []

    def stamp(self, idx):
        if not self.o.stamp:
            return []
        if self.o.stamp == 3 and idx not in (0, 7):
            return [I("s_memtime s[94:95]"), I("s_waitcnt lgkmcnt(0)"), I("v_writelane_b32 v62, s94, %d" % idx)]
        return [I("s_memtime s[94:95]"), I("s_memrealtime s[96:97]"), I("s_waitcnt lgkmcnt(0)"),
                I("v_writelane_b32 v62, s94, %d" % idx), I("v_writelane_b32 v63, s96, %d" % idx)]

    def kernel(self, table):
        o = self.o
        nqmax = max(o.nqs)
        out = []
        A = lambda s: out.append(I(s))
        A("s_cmp_ge_u32 s2, 256")
        A("s_cbranch_scc1 L_end")
        out += self.stamp(0)
        if o.padto:
            A("s_memrealtime s[98:99]")
        A("s_load_dwordx4 %s, s[0:1], 0" % sr(sQp, 4))
        A("s_load_dwordx2 %s, s[0:1], 16" % sr(sVp, 2))
        A("s_load_dwordx2 %s, s[0:1], 32" % sr(sO_, 2))
        A("s_getpc_b64 %s" % sr(sTab, 2))
        A("L_pc:")
        A("s_lshr_b32 s%d, s2, 3" % sTmp)
        A("s_lshl_b32 s%d, s%d, 4" % (sTmp, sTmp))
        A("s_add_u32 s%d, s%d, L_table-L_pc" % (sTmp, sTmp))
        A("s_add_u32 s%d, s%d, s%d" % (sTab, sTab, sTmp))
        A("s_addc_u32 s%d, s%d, 0" % (sTab + 1, sTab + 1))
        A("s_load_dwordx4 %s, %s, 0" % (sr(sTd, 4), sr(sTab, 2)))
        if o.codepf:
            A("s_lshr_b32 s%d, s2, 3" % sT2)
            A("s_lshl_b32 s%d, s%d, 11" % (sT2, sT2))
            A("v_lshl_add_u32 v%d, v0, 3, s%d" % (vT4, sT2))
            A("v_min_u32 v%d, L_slow-L_pc-8, v%d" % (vT4, vT4))
            A("s_getpc_b64 %s" % sr(sLink, 2))
            A("global_load_dwordx2 %s, v%d, %s" % (vr(vS, 2), vT4, sr(sLink, 2)))
        out += self.addr_setup()
        A("v_mov_b32 v%d, 0" % vBad)
        A("ds_write_b32 v%d, v%d" % (vPub, vBad))
        A("v_mov_b32 v%d, 0x3f803f80" % vT1)
        for j in range(4):
            A("v_accvgpr_write_b32 a%d, v%d" % (aOnes + j, vT1))
        A("s_mul_i32 s%d, s%d, %d" % (sWb, sW, WREG))
        A("s_add_u32 s%d, s%d, %d" % (sMlim, sWb, R * SLOT))
        A("s_mov_b32 m0, s%d" % sWb)
        A("s_mov_b32 s%d, %d" % (sRc, R - 1))
        A("s_mov_b32 s%d, 0" % sThr)
        A("s_mov_b32 s%d, 0" % sExtra)
        A("s_mov_b32 s%d, %d" % (sPos, SLOT))
        A("s_mov_b32 s%d, %d" % (sNeg, -(R - 1) * SLOT))
        A("s_mov_b32 s%d, 0x%x" % (sCc, SCALE_BITS))
        A("s_mov_b32 s%d, 0x%x" % (sCc + 1, SCALE_BITS))
        A("s_mov_b32 s%d, 0x20000" % (sA + 3))
        A("s_mov_b32 s%d, 0x20000" % (sB + 3))
        A("s_mov_b32 s%d, 0x20000" % (sO_ + 3))
        A("s_mov_b32 s%d, 0" % (sO_ + 2))
        A("s_and_b32 s%d, s2, 7" % sTmp)
        A("s_lshl_b32 s%d, s%d, 9" % (sTmp, sTmp))
        A("s_waitcnt lgkmcnt(0)")
        A("s_add_u32 s%d, s%d, %d" % (sQp2, sQp, 32 * 4096 - V0OFF))
        A("s_addc_u32 s%d, s%d, 0" % (sQp2 + 1, sQp + 1))
        A("s_sub_u32 s%d, s%d, %d" % (sVp, sVp, V0OFF))
        A("s_subb_u32 s%d, s%d, 0" % (sVp + 1, sVp + 1))
        out += self.decode_job(sTd, sTd + 1, sJ)
        out += self.seg_q()
        out += self.issue_item()
        out += self.decode_job(sTd + 2, sTd + 3, sJ2)
        for j in range(5):
            A("s_mov_b32 s%d, s%d" % (sJ1 + j, sJ + j))
        A("s_mov_b32 s%d, s%d" % (sHave2, sJ2 + 3))
        A("s_mov_b32 s%d, s%d" % (sNext, sJ2 + 3))
        out += self.set_compute(sJ)
        out += self.issue_item()
        out += self.issue_item()
        out += self.stamp(1)
        out += self.dispatch("L_first")
        out = check(out, fix=True, name="entry")
        for nq in o.nqs:
            js1 = check(self.jobstart(nq, True), fix=True, name="js1") if nq in o.nq1s else []
            js2 = check(self.jobstart(nq, False), fix=True, name="js2") if nq in o.nq2s else []
            dec = I("s_sub_u32 s%d, s%d, 1" % (sLoop, sLoop))
            b0 = self.body(nq, 0, first=True)
            for j in range(o.deep):
                b0 += self.issue_item()
            bA = self.body(nq, 1, tail=[dec, I("s_cbranch_scc1 L_lastB%d" % nq)])
            bB = self.body(nq, 0, tail=[dec, I("s_cbranch_scc0 L_loop%d" % nq)])
            lA = self.body(nq, 1, last=True)
            lB = self.body(nq, 0, last=True)
            pre = [I("s_waitcnt vmcnt(%d)" % (4 * (EMAX - o.nq2max))), I("s_barrier")]
            ep = self.epilogue(nq)
            lA = check(lA, fix=True, name="lastA")
            lB = check(lB, fix=True, name="lastB")
            for x, y, n in ((js1, b0, "js1-b0"), (js2, b0, "js2-b0"), (b0, bA, "b0-bA"), (bA, bB, "bA-bB"), (bB, bA, "bB-bA"),
                            (bA, lB, "bA-lB"), (bB, lA, "bB-lA")):
                if not o.drop:
                    check(x + y, name="%s nq=%d" % (n, nq))
            epA = check(lA + pre + ep, fix=True, name="ep")[len(lA):]
            check(lB + [I("s_nop 0")] + epA, name="lB-ep")
            if nq in o.nq2s:
                out += [I("L_second%d:" % nq)] + js2
                if nq in o.nq1s:
                    out += [I("s_branch L_body%d" % nq)]
            if nq in o.nq1s:
                out += [I("L_first%d:" % nq)] + js1
            out += [I("L_body%d:" % nq)] + self.stamp(2) + b0
            out += [I(".p2align 6"), I("L_loop%d:" % nq)] + bA + bB + lA + [I("L_epi%d:" % nq)] + self.stamp(3) + epA + self.stamp(4)
            out += [I("s_cmp_eq_u32 s%d, 0" % sNext), I("s_cbranch_scc1 L_fin%d" % nq), I("s_mov_b32 s%d, 0" % sNext)]
            if o.stamp:
                out += [I("v_mov_b32 v60, v62"), I("v_mov_b32 v61, v63")]
            out += self.set_compute(sJ2) + self.dispatch("L_second")
            out += [I("L_fin%d:" % nq), I("s_waitcnt vmcnt(%d)" % (4 * nq)), I("s_branch L_fin")]
            out += [I("L_lastB%d:" % nq)] + lB + [I("s_branch L_epi%d" % nq)]
        A = lambda s: out.append(I(s))
        A("L_fin:")
        A("s_barrier")
        if o.stamp:
            out += self.stamp(6)
            A("s_waitcnt vmcnt(0)")
            out += self.stamp(7)
            A("s_load_dwordx2 s[4:5], s[0:1], 48")
            A("s_waitcnt lgkmcnt(0)")
            A("s_mov_b32 s6, 0x1000000")
            A("s_lshl_b32 s3, s2, 2")
            A("s_add_u32 s3, s3, s%d" % sW)
            A("s_lshl_b32 s3, s3, 10")
            A("v_mbcnt_lo_u32_b32 v70, -1, 0")
            A("v_mbcnt_hi_u32_b32 v70, -1, v70")
            A("v_lshlrev_b32 v70, 4, v70")
            A("buffer_store_dwordx4 v[60:63], v70, s[4:7], s3 offen")
        if o.padto:
            A("s_waitcnt vmcnt(0)")
            A("L_pad:")
            A("s_memrealtime s[100:101]")
            A("s_waitcnt lgkmcnt(0)")
            A("s_sub_u32 s100, s100, s98")
            A("s_cmp_lt_u32 s100, %d" % (o.padto * 100))
            A("s_cbranch_scc1 L_pad")
        A("v_cmp_lt_u32 vcc, 0x%x, v%d" % (HI_BITS - LO_BITS, vBad))
        A("s_nop 4")
        A("s_cbranch_vccnz L_slow")
        A("L_end:")
        A("s_endpgm")
        out += self.segswitch()
        out += self.stubs
        out += self.slow()
        txt = [x.text for x in out]
        txt.append(".p2align 4")
        txt.append("L_table:")
        for e in table:
            txt.append(".long 0x%x, 0x%x, 0x%x, 0x%x" % tuple(e))
        return txt


def make_table(bins):
    nxt = {}
    tab = []
    for jobs in bins:
        e = []
        for (s, hh, nq) in jobs:
            u = nxt.get((s, hh), 0)
            nxt[(s, hh)] = u + nq
            q0 = CU[s] + 64 * u
            n = (CU[s + 1] - CU[s] + 31) // 32
            e += [q0 | nq << 13 | hh << 16 | n << 20, CU[s] | CU[s + 1] << 13]
        e += [0, 0] * (2 - len(jobs))
        tab.append(e)
    for s in range(8):
        for hh in range(2):
            assert nxt[(s, hh)] == (CU[s + 1] - CU[s] + 63) // 64, (s, hh, nxt)
    assert len(tab) == 32
    return tab


HEADER = """; varlen (packed, ragged) non-causal attention forward, bf16, T=6042 H=16 D=128, 8 sequences (cu is a constant of the problem)
; @launch grid=(256,1,1) block=(256,1,1) lds=%d
.amdgcn_target "amdgcn-amd-amdhsa--gfx950"
.text
.globl %s
.p2align 8
.type %s,@function
%s:
"""
FOOTER = """.section .rodata,"a"
.p2align 6
.amdhsa_kernel %s
  .amdhsa_next_free_vgpr 512
  .amdhsa_next_free_sgpr 102
  .amdhsa_accum_offset 256
  .amdhsa_group_segment_fixed_size 0
  .amdhsa_kernarg_size 56
  .amdhsa_user_sgpr_count 2
  .amdhsa_user_sgpr_kernarg_segment_ptr 1
  .amdhsa_system_sgpr_workgroup_id_x 1
.end_amdhsa_kernel
"""


def parse_bins(s):
    U = [(CU[i + 1] - CU[i] + 63) // 64 for i in range(8)]
    jobs = []
    for bi, b in enumerate(s.split()):
        for ji, j in enumerate(b.split("+")):
            if j[0] != "-":
                jobs.append((bi, ji, "ABCDEFGH".index(j[0]), int(j[1])))
    hh = {}
    for s_ in range(8):
        mine = [j for j in jobs if j[2] == s_]
        best = None
        for mask in range(1 << len(mine)):
            if sum(j[3] for k, j in enumerate(mine) if mask >> k & 1) == U[s_]:
                sc = 0
                for h in (0, 1):
                    ph = {j[1] for k, j in enumerate(mine) if (mask >> k & 1) == h}
                    sc += len(ph)
                if best is None or sc < best[0]:
                    best = (sc, mask)
        for k, j in enumerate(mine):
            hh[j[:2]] = best[1] >> k & 1
    bins = [[] for _ in range(32)]
    for j in jobs:
        bins[j[0]].append((j[2], hh[j[:2]], j[3]))
    return bins


SCHED3 = "C5 C5 C5 C5 H5 H5 H5 H5 F5 F5 C3+A3 C3+A3 C3+A3 C3+A3 G4+B4 G4+B4 G4+B4 H3+B4 H3+E3 H3+E3 H3+D3 D4+D3 D4+D3 D4+D3 E4+G3 E4+G3 E4+G3 E4+G3 F3+A4 F3+A4 F3+F3 F3+F3"
SCHED3B = "F6 F6 C5 C5 C5 C5 H5 H5 H5 H5 F5 F5 C3+A3 C3+A3 C3+A3 C3+A3 G4+B4 G4+B4 G4+B4 H3+B4 H3+E3 H3+E3 H3+D3 D4+D3 D4+D3 D4+D3 E4+G3 E4+G3 E4+G3 E4+G3 F3+A4 F3+A4"
SCHED = "B2+C4 B2+C4 B2+C4 B2+C4 B2+C4 B2+H4 E2+F4 G2+F4 G2+F4 G2+F4 A3+C3 A3+C3 A3+C3 A3+C3 B4+G4 H2+G4 H2+G4 H2+H3 H2+H3 H2+H3 E3+H3 E3+H3 E3+H3 E3+D4 D3+D4 D3+D4 D3+E4 D3+E4 G3+F3 G3+F3 F3+A4 F3+A4"


def build(o):
    bins = parse_bins(o.sched)
    o.nqs = tuple(sorted({j[2] for b in bins for j in b}))
    o.nq1s = tuple(sorted({b[0][2] for b in bins}))
    o.nq2s = tuple(sorted({b[1][2] for b in bins if len(b) > 1}))
    o.nq2max = max(b[1][2] for b in bins if len(b) > 1)
    assert o.nq2max <= EMAX
    g = Gen(o)
    body = g.kernel(make_table(bins))
    body.append("; sched " + o.sched)
    return HEADER % (LDS_BYTES, KNAME, KNAME, KNAME) + "\n".join(body) + "\n" + FOOTER % KNAME


Opt.sched = SCHED3

if __name__ == "__main__":
    o = Opt()
    path = sys.argv[1]
    for a in sys.argv[2:]:
        k, v = a.split("=")
        setattr(o, k, eval(v))
    open(path, "w").write(build(o))
```

```python
import sys
from isa import I, check, VAL

SCC_W = ("s_add_u32", "s_sub_u32", "s_addc_u32", "s_subb_u32", "s_cmp", "s_lshl", "s_lshr", "s_and", "s_or", "s_bfe", "s_min", "s_max")
SCC_R = ("s_cselect", "s_cmov", "s_cbranch_scc", "s_addc_u32", "s_subb_u32")

LDS_OCC = {"ds_write_b64": 34, "ds_write_b128": 56, "ds_read_b128": 16, "ds_read_b64_tr_b16": 8, "ds_read_b64": 8,
           "ds_read_b32": 8, "ds_write2st64_b64": 66, "ds_add_u32": 10, "ds_write_b32": 16}
TA_OCC = 64
PKFIRST = 12


class N:
    def __init__(self, ins, idx):
        self.i, self.idx = ins, idx
        self.preds, self.succs = [], []
        self.t = None
        self.done = None
        self.cp = 0


def rw(ins):
    r, w = set(ins.reads), set(ins.writes)
    r |= {("m", t) for t in getattr(ins, "mr", ())}
    w |= {("m", t) for t in getattr(ins, "mw", ())}
    return r, w


def raw_lat(p, c, reg):
    if reg[0] == "m":
        return 4
    k = p.kind
    if k == "mfma":
        if c.kind == "mfma" and p.D == c.C and not (set(p.D) & (set(c.A) | set(c.B))):
            return 16
        return 44
    if k == "ds":
        return None
    if k == "vmem":
        return 600
    if k == "trans":
        return 12
    if k in VAL:
        if c.kind in ("mfma", "perm"):
            return 12
        if reg[0] == "s":
            return 24
        return 4
    return 4


def cost(ins):
    k = ins.kind
    if k in ("trans", "perm"):
        return 8
    if k == "vmem":
        return 26
    if k == "dma":
        return 8
    if ins.op == "ds_write_b64":
        return 16
    if ins.op == "ds_write2st64_b64":
        return 24
    if ins.op == "ds_add_u32":
        return 8
    if k == "nop":
        return 4 * ins.states
    if ins.op == "s_barrier":
        return 90
    return 4


def schedule(prog, pre_vm=0, name="", verbose=True):
    nodes = [N(x, i) for i, x in enumerate(prog)]
    byins = {id(n.i): n for n in nodes}
    lastw, readers = {}, {}

    def edge(p, c, lat, ds=False):
        if p is c:
            return
        c.preds.append((p, lat, ds))
        p.succs.append((c, lat, ds))

    prevm = prevbr = prevvm = None
    sccw = None
    for n in nodes:
        n.sccw = n.i.op.startswith(SCC_W)
        n.sccr = n.i.op.startswith(SCC_R)
        n.users = 0
        if n.sccr:
            edge(sccw, n, 4)
            sccw.users += 1
            n.sccp = sccw
        if n.sccw:
            sccw = n
    for n in nodes:
        ins = n.i
        r, w = rw(ins)
        if ins.op.startswith("s_cmov"):
            r |= w
        for x in r:
            if x in lastw:
                p = lastw[x]
                lat = raw_lat(p.i, ins, x)
                edge(p, n, 0 if lat is None else lat, ds=lat is None)
        for x in w:
            if x in lastw:
                p = lastw[x]
                if p.i.kind == "mfma":
                    edge(p, n, 16 if ins.kind == "mfma" else 44)
                elif p.i.kind == "ds" and x[0] != "m":
                    edge(p, n, 0, ds=True)
                else:
                    edge(p, n, 4)
            for p in readers.get(x, ()):
                lat = 4
                if p.i.kind == "mfma" and x in p.i.C and ins.kind in VAL:
                    lat = 20
                if p.i.kind == "vmem":
                    lat = 16
                edge(p, n, lat)
        for x in r:
            readers.setdefault(x, []).append(n)
        for x in w:
            lastw[x] = n
            readers[x] = []
        for p in getattr(ins, "after", ()):
            edge(byins[id(p)], n, 4)
        for p in getattr(ins, "wait_ds", ()):
            edge(byins[id(p)], n, 0, ds=True)
        vm = getattr(ins, "vm", None)
        if isinstance(vm, list):
            for p in vm:
                edge(byins[id(p)], n, 4)
        if ins.kind == "mfma":
            if prevm:
                edge(prevm, n, 16)
            prevm = n
        if ins.kind == "dma":
            if prevvm:
                edge(prevvm, n, 4)
            prevvm = n
    for n in reversed(nodes):
        c = cost(n.i)
        for s, lat, ds in n.succs:
            c = max(c, (130 if ds else max(lat, cost(n.i))) + s.cp)
        n.cp = c + getattr(n.i, "bias", 0)
    npred = {id(n): len(n.preds) for n in nodes}
    ready = [n for n in nodes if not n.preds]
    t = 0
    mfma_free = hold = lds_free = ta_free = 0
    order = []
    just_mfma = False
    last_pk = False
    rem_fill = sum(cost(n.i) for n in nodes if n.i.kind not in ("mfma",) and n.i.op != "s_barrier")
    rem_mfma = sum(1 for n in nodes if n.i.kind == "mfma")
    scc_open = 0
    allready = ready
    while allready:
        ready = [n for n in allready if not (scc_open and n.sccw and not n.sccr)]
        ready = [n for n in ready if not n.users or all(npred[id(s_)] == sum(1 for p, _, _ in s_.preds if p is n or (p.t is None and getattr(p, "sccp", None) is n))
                                                          for s_, _, _ in n.succs if getattr(s_, "sccp", None) is n)] or ready
        assert ready

        def start(n):
            s = t
            for p, lat, ds in n.preds:
                s = max(s, p.done if ds else p.t + lat)
            k = n.i.kind
            if k == "mfma":
                s = max(s, mfma_free)
            elif n.i.op.startswith("v_pk_"):
                s = max(s, mfma_free)
            elif k in VAL:
                s = max(s, hold)
            elif k == "ds":
                s = max(s, hold, lds_free - 40)
            elif k in ("vmem", "dma"):
                s = max(s, hold, ta_free - 64)
            s = max(s, getattr(n.i, "start", 0))
            return s
        st = {id(n): start(n) for n in ready}
        m = [n for n in ready if n.i.kind == "mfma"]
        m = m[0] if m else None
        pick = None
        pks = [n for n in ready if n.i.op.startswith("v_pk_") and st[id(n)] <= t]
        if m and last_pk and pks:
            pick = max(pks, key=lambda n: (n.cp, -n.idx))
        elif m and st[id(m)] <= t and not (PKFIRST and len([n for n in ready if n.i.op.startswith("v_pk_") and st[id(n)] <= max(t, mfma_free)]) >= PKFIRST):
            pick = m
        else:
            scal = [n for n in ready if n.i.kind in ("salu", "branch", "wait") and st[id(n)] <= t and n.i.op != "s_barrier"]
            if just_mfma and scal:
                pick = max(scal, key=lambda n: (n.cp, -n.idx))
            else:
                now = max(t, hold)
                cand = [n for n in ready if n is not m and st[id(n)] <= now]
                if m:
                    npk = [n for n in ready if n.i.op.startswith("v_pk_") and st[id(n)] <= max(now, mfma_free)]
                    if len(npk) >= PKFIRST:
                        cand = npk
                    else:
                        cand = [n for n in cand if not n.i.op.startswith("v_pk_")]
                if cand:
                    if m and rem_fill <= 8 * rem_mfma:
                        fit = [n for n in cand if max(st[id(n)], t) + cost(n.i) <= st[id(m)]]
                    else:
                        fit = cand
                    if fit:
                        mem = [n for n in fit if n.i.kind in ("ds", "vmem", "dma")]
                        best = max(fit, key=lambda n: (n.cp, -n.idx))
                        if mem and (hold > t or just_mfma):
                            bm = max(mem, key=lambda n: (n.cp, -n.idx))
                            if bm.cp >= best.cp - 400:
                                best = bm
                        pick = best
                if pick is None:
                    pick = min(ready, key=lambda n: (st[id(n)], -n.cp, n.idx))
        s = st[id(pick)]
        last_pk = pick.i.op.startswith("v_pk_")
        pick.t = s
        k = pick.i.kind
        if k == "mfma":
            mfma_free = s + 16
            hold = s + 8
            t = s + 4
            rem_mfma -= 1
            just_mfma = True
        else:
            c = cost(pick.i)
            t = s + c
            if pick.i.op != "s_barrier":
                rem_fill -= c
            just_mfma = False
            if k == "ds":
                lds_free = max(lds_free, s) + LDS_OCC[pick.i.op]
                pick.done = max(lds_free, s + 40) + 80
            elif k in ("vmem", "dma"):
                ta_free = max(ta_free, s) + TA_OCC
        if pick.done is None:
            pick.done = t
        order.append(pick)
        allready.remove(pick)
        if pick.sccr:
            scc_open -= 1
        if pick.users:
            assert scc_open == 0
            scc_open = pick.users
        for sc, lat, ds in pick.succs:
            npred[id(sc)] -= 1
            if npred[id(sc)] == 0:
                allready.append(sc)
    assert len(order) == len(nodes)
    out = []
    dsq = []
    ds_done = 0
    vmq = []
    for n in order:
        need = -1
        for p, lat, ds in n.preds:
            if ds:
                need = max(need, dsq.index(p))
        if need >= ds_done:
            cnt = min(15, len(dsq) - 1 - need)
            out.append(I("s_waitcnt lgkmcnt(%d)" % cnt))
            ds_done = len(dsq) - cnt
        ins = n.i
        vm = getattr(ins, "vm", None)
        if vm is not None:
            if isinstance(vm, list):
                cnt = len(vmq) - 1 - max(vmq.index(byins[id(p)]) for p in vm)
            else:
                cnt = vm + len(vmq)
            if ins.op == "s_barrier":
                out.append(I("s_waitcnt vmcnt(%d)" % min(63, cnt)))
            else:
                ins = I("s_waitcnt vmcnt(%d)" % min(63, cnt))
        out.append(ins)
        if ins.kind == "branch" and ins.tag:
            out.append(I(ins.tag + ":"))
        if ins.kind == "ds":
            dsq.append(n)
        if ins.kind in ("vmem", "dma"):
            vmq.append(n)
    pending_ds = len(dsq) - ds_done
    out = check(out, fix=True, name=name)
    if verbose:
        sys.stderr.write("sched %s: %d instrs, model %d cycles, %d ds pending at exit\n" % (name, len(out), t, pending_ds))
    return out, t
```

```python
import sys, struct, math
from isa import I, check
from lsched import schedule

KNAME = "standalone__varlen_attn_packed__ragged_kernel"
CU = [0, 580, 1085, 2082, 2797, 3498, 4341, 5079, 6042]

R = 8
SLOT = 16640
WREG = 4160
K1OFF, V0OFF, V1OFF = 1056, 2080, 3136
FLAG = R * SLOT
STAGE = FLAG + 1280
TRACE = STAGE + 16384
LDS_BYTES = TRACE + 1024

vKa, vVa, vo0, vo1, vR, vOst, vQd, vPub, vChk, vOne, vFlag, vBad = range(1, 13)
vT1, vT2, vT3 = 13, 14, 15
vMask = 16
vS = 24
vP = 40
vL = 48
vT5 = 54
vW = 56
vO = 64
vT4 = 64
aK = 0
aV = 64
aOnes = 128
aL = 132
aQ = 160
sA, sB, sO_ = 4, 8, 12
sQp, sKp, sVp, sQp2 = 16, 18, 20, 22
sSoff, sStride, sCnt, sQoff = 24, 25, 26, 27
sWb, sMlim, sRc, sDelta, sLoop, sThr, sPos, sNeg = 28, 29, 30, 31, 32, 33, 34, 35
sJ1, sJ2 = 36, 41
sC = 46
sN, sM = 52, 62
sW, sNext, sCc, sTmp, sT2, sT3 = 72, 73, 74, 76, 77, 78
sTab, sTd = 80, 84
sSts = list(range(80, 92))
LEAD = 4
SCALE = math.log2(math.e) / math.sqrt(128.0)
SCALE_BITS = struct.unpack("<I", struct.pack("<f", SCALE))[0]
LO_BITS = (127 - 40) << 23
HI_BITS = (127 + 40) << 23


class Opt:
    ntkv = ""
    nto = "sc1"
    ones = {3: 3, 4: 2, 5: 2, 6: 2}
    codepf = True
    stbias = 300
    fpos = {3: 9, 4: 9, 5: 9, 6: 9}
    a0, dq, dkv = 700, 800, 300
    s1at = 1400
    ppos = {3: 2, 4: 8, 5: 8, 6: 8}
    s2at = 2200
    hlead = 3
    stamp = False
    trace = False
    padto = 0


def vr(b, n=1):
    return "v%d" % b if n == 1 else "v[%d:%d]" % (b, b + n - 1)


def ar(b, n=1):
    return "a%d" % b if n == 1 else "a[%d:%d]" % (b, b + n - 1)


def sr(b, n=1):
    return "s%d" % b if n == 1 else "s[%d:%d]" % (b, b + n - 1)


def qreg(nq, i, ks):
    if nq <= 4:
        return "v", 192 + 16 * i + 4 * ks
    free = (256 - (vO + 32 * nq)) // 16
    if i < free:
        return "v", vO + 32 * nq + 16 * i + 4 * ks
    return "a", aQ + 16 * (i - free) + 4 * ks


def qop(nq, i, ks):
    f, b = qreg(nq, i, ks)
    return vr(b, 4) if f == "v" else ar(b, 4)


def ones_blocks(nq, k):
    if k >= nq:
        return list(range(nq))
    if k == 1:
        return [0]
    if k == 2:
        return [0, (nq + 1) // 2]
    return [0] + list(range(nq - k + 1, nq))


def mf(d, a, b, c):
    return I("v_mfma_f32_16x16x32_bf16 %s, %s, %s, %s" % (d, a, b, c))


def qk(nq, i, kbuf, sset, masked):
    out = []
    for b in range(2):
        d = vr(vS + 8 * sset + 4 * b, 4)
        for ks in range(4):
            c = d if ks else (vr(vMask + 4 * b, 4) if masked else "0")
            out.append(mf(d, ar(aK + 32 * kbuf + 16 * b + 4 * ks, 4), qop(nq, i, ks), c))
    return out


def pv(i, vbuf, pset, zero):
    out = []
    for db in range(8):
        d = vr(vO + 32 * i + 4 * db, 4)
        out.append(mf(d, ar(aV + 32 * vbuf + 4 * db, 4), vr(vP + 4 * pset, 4), "0" if zero else d))
    return out


def onesm(slot, pset, zero):
    d = ar(aL + 4 * slot, 4)
    return mf(d, ar(aOnes, 4), vr(vP + 4 * pset, 4), "0" if zero else d)


def EXP(sset, j):
    r = vS + 8 * sset + j
    return I("v_exp_f32 v%d, v%d" % (r, r))


def CVT(sset, j):
    r = vS + 8 * sset + 2 * j
    return I("v_cvt_pk_bf16_f32 v%d, v%d, v%d" % (vP + 4 * sset + j, r, r + 1))


def kread(buf, b, ks):
    return I("ds_read_b128 %s, v%d offset:%d" % (ar(aK + 32 * buf + 16 * b + 4 * ks, 4), vKa, b * 512 + ks * 64))


def vread(buf, db, jj):
    return I("ds_read_b64_tr_b16 %s, v%d offset:%d" % (ar(aV + 32 * buf + 4 * db + 2 * jj, 2), vVa, jj * 512 + 32 * db))


def kvreads(buf):
    return [kread(buf, b, ks) for b in range(2) for ks in range(4)] + [vread(buf, db, jj) for db in range(8) for jj in range(2)]


def dmas(o, soff=sSoff):
    p = (" " + o.ntkv) if o.ntkv else ""
    return [I("buffer_load_dwordx4 v%d, %s, s%d offen%s lds" % (vo0, sr(sA, 4), soff, p)),
            I("buffer_load_dwordx4 v%d, %s, s%d offen offset:%d%s lds" % (vo1, sr(sA, 4), soff, K1OFF, p)),
            I("buffer_load_dwordx4 v%d, %s, s%d offen offset:%d%s lds" % (vo0, sr(sB, 4), soff, V0OFF, p)),
            I("buffer_load_dwordx4 v%d, %s, s%d offen offset:%d%s lds" % (vo1, sr(sB, 4), soff, V1OFF, p))]


def m0_adv():
    return [I("s_add_u32 m0, m0, s%d" % sPos), I("s_cmp_eq_u32 m0, s%d" % sMlim), I("s_cselect_b32 m0, s%d, m0" % sWb)]


def item_adv():
    t = ["s_add_u32 s%d, s%d, s%d" % (sSoff, sSoff, sStride), "s_sub_u32 s%d, s%d, 1" % (sCnt, sCnt),
         "s_cmov_b64 %s, %s" % (sr(sA, 2), sr(sN, 2)), "s_cmov_b64 %s, %s" % (sr(sB, 2), sr(sN + 2, 2)),
         "s_cmov_b64 %s, %s" % (sr(sSoff, 2), sr(sN + 4, 2)), "s_cmov_b32 s%d, s%d" % (sA + 2, sN + 6),
         "s_cmov_b32 s%d, s%d" % (sB + 2, sN + 7), "s_cmov_b32 s%d, s%d" % (sCnt, sN + 8)]
    for j in range(4):
        t.append("s_cmov_b64 %s, %s" % (sr(sN + 2 * j, 2), sr(sM + 2 * j, 2)))
    t += ["s_cmov_b32 s%d, s%d" % (sN + 8, sM + 8), "s_cmov_b64 %s, 0" % sr(sM + 6, 2), "s_cmov_b32 s%d, 0x7fffffff" % (sM + 8)]
    return [I(x) for x in t]


def ring_adv_s():
    return [I("s_sub_u32 s%d, s%d, 1" % (sRc, sRc)),
            I("s_cselect_b32 s%d, s%d, s%d" % (sDelta, sNeg, sPos)),
            I("s_cselect_b32 s%d, %d, s%d" % (sRc, R - 1, sRc))]


def ring_adv():
    return ring_adv_s() + [I("v_add_u32 v%d, s%d, v%d" % (vKa, sDelta, vKa)), I("v_add_u32 v%d, s%d, v%d" % (vVa, sDelta, vVa))]


class Gen:
    def __init__(self, o):
        self.o = o
        self.stubs = []
        self.nlab = 0

    def lab(self, p):
        self.nlab += 1
        return "L_%s_%d" % (p, self.nlab)

    def issue_item(self):
        return dmas(self.o) + m0_adv() + item_adv()[:2]

    def spin(self):
        spin, ret = self.lab("spin"), self.lab("spinret")
        self.stubs += [I(spin + ":"), I("ds_read_b32 v%d, v%d" % (vFlag, vChk)), I("s_waitcnt lgkmcnt(0)"),
                       I("v_cmp_gt_u32 vcc, s%d, v%d" % (sThr, vFlag)), I("s_nop 4"),
                       I("s_cbranch_vccnz " + spin), I("s_branch " + ret)]
        return I("s_cbranch_vccnz " + spin, tag=ret)

    def body(self, nq, par, first=False, entry=False, tail=None, vmextra=0):
        o = self.o
        ob = ones_blocks(nq, o.ones[nq])
        addb = [i for i in range(nq) if i not in ob]
        flags = entry or par == 1
        sset = lambda t, i: ((par ^ t) * nq + i) & 1
        gaps, vstart, flex = [], [], []

        def gap(m, E=None, fixed=None):
            gaps.append(dict(m=m, E=E, fixed=fixed or [], scal=[], flex=[]))
            return len(gaps) - 1

        lcount = {}

        def ADD(i, ss, j):
            n = lcount.get(i, 0)
            lcount[i] = n + 1
            l = vL + 2 * addb.index(i) + (n & 1)
            r = vS + 8 * ss + j
            if first and n < 2:
                return I("v_mov_b32 v%d, v%d" % (l, r))
            return I("v_add_f32 v%d, v%d, v%d" % (l, l, r))

        adds = []
        for v in range(nq):
            vstart.append(len(gaps))
            nxt_t, nxt_i = (0, v + 1) if v < nq - 1 else (1, 0)
            sc, sn = sset(0, v), sset(nxt_t, nxt_i)
            qm = qk(nq, nxt_i, par ^ nxt_t, sn, first and nxt_t == 0)
            pm = pv(v, par, sc, first)
            for g in range(16):
                m = qm[g] if g < 8 else pm[g - 8]
                E, fixed = None, []
                if g in (1, 3, 5):
                    E = (v, sc, 5 + g // 2)
                elif g in (7, 9, 11, 13, 15):
                    E = (nxt_i if nxt_t == 0 else -1, sn, (g - 7) // 2)
                if g in (2, 6):
                    fixed = [CVT(sc, 2 + g // 4)]
                if g in (10, 14):
                    fixed = [CVT(sn, (g - 10) // 4)]
                gi = gap(m, EXP(E[1], E[2]) if E else None, fixed)
                if E and E[0] in addb:
                    adds.append((E[0], gi, E[1], E[2]))
            if v in ob:
                gap(onesm(ob.index(v), sc, first))
        ng = len(gaps)
        vstart.append(ng)
        for (i, gi, ss, j) in adds:
            dl = ng - 1
            if i + 1 < nq:
                dl = vstart[i + 1] - 1 + (4 if j >= 4 else 0)
            flex.append([gi + 1, dl, 1, 5, ("add", i, ss, j)])
        kdl = vstart[nq - 1] - 5
        vdl = ng - 9
        for x in kvreads(par ^ 1):
            flex.append([0, kdl, 1, 1, x] if x.op == "ds_read_b128" else [0, vdl, 1, 2, x])
        ddl = max(ng // 2 - 4, 6)
        for d in dmas(o):
            flex.append([0, ddl, 2, 0, d])
        pend = sorted(flex, key=lambda f: (f[1], f[3]))
        slotgaps = [i for i, g in enumerate(gaps) if g["E"] is None]

        def remaining_cap(gi, upto):
            return sum(2 - len(gaps[x]["fixed"]) for x in slotgaps if gi <= x <= upto)

        bonus = set()
        ov = sum(f[2] for f in flex if f[1] <= vdl) + (3 if flags else 0) - remaining_cap(0, vdl)
        cand = [x for x in slotgaps if x <= vdl]
        for j in range(max(0, ov)):
            bonus.add(cand[(j * len(cand)) // ov] if ov <= len(cand) else cand[j % len(cand)])
        nk = nv = nd = 0
        ddone = None
        for gi in range(ng):
            g = gaps[gi]
            cap = 0 if g["E"] is not None else 2 - len(g["fixed"]) + (1 if gi in bonus else 0)
            while True:
                ready = [f for f in pend if f[0] <= gi]
                pick = next((f for f in ready if f[2] <= cap), None)
                forced = [f for f in ready if f[1] <= gi]
                if pick is None and forced:
                    pick = forced[0]
                if pick is None:
                    break
                if pick[2] == 1 and cap >= 2:
                    two = [f for f in ready if f[2] == 2]
                    urgent = [f for f in pend if f[2] == 1 and f[1] < two[0][1]] if two else []
                    if two and (not urgent or remaining_cap(gi + 1, urgent[-1][1]) + sum(1 for x in bonus if gi < x <= urgent[-1][1]) >= len(urgent)):
                        pick = two[0]
                pend.remove(pick)
                cap -= pick[2]
                ins = pick[4]
                if isinstance(ins, tuple):
                    ins = ADD(ins[1], ins[2], ins[3])
                g["flex"].append(ins)
                if ins.op == "ds_read_b128":
                    nk += 1
                    if nk == 8:
                        pend.append([gi + 1, ng - 1, 1, 6, I("v_add_u32 v%d, s%d, v%d" % (vKa, sDelta, vKa))])
                elif ins.op == "ds_read_b64_tr_b16":
                    nv += 1
                    if nv == 16:
                        pend.append([gi + 1, ng - 1, 1, 6, I("v_add_u32 v%d, s%d, v%d" % (vVa, sDelta, vVa))])
                elif ins.kind == "dma":
                    nd += 1
                    if nd == 4:
                        ddone = gi
                        if flags:
                            pg = max(gi + 2, ng // 2 - o.ppos[nq])
                            assert pg + 2 < ng - o.fpos[nq] - 3
                            pend.append([pg, pg + 4, 1, 0, I("ds_add_u32 v%d, v%d" % (vPub, vOne))])
                            pend.append([ng - o.fpos[nq] - 3, ng - o.fpos[nq], 1, 0, I("ds_read_b32 v%d, v%d" % (vFlag, vChk))])
                pend.sort(key=lambda f: (f[1], f[3]))
        assert not pend, pend
        sgaps = [i for i, g in enumerate(gaps) if not any(f.kind == "dma" for f in g["flex"])]
        used = set()

        def put(chain, lo, hi=None):
            gi = lo - 1
            for ins in chain:
                gi = min(x for x in sgaps if x > gi and x not in used)
                used.add(gi)
                gaps[gi]["scal"].append(ins)
            assert hi is None or gi <= hi, (gi, hi, chain)
            return gi

        def ds_after(pos, pred):
            seq = [f for x in range(pos) for f in gaps[x]["flex"] if f.kind == "ds"]
            return min(15, len(seq) - 1 - max(i for i, f in enumerate(seq) if pred(f)))

        find = lambda op: [x for x in range(ng) for f in gaps[x]["flex"] if f.op == op]
        kw = vstart[nq - 1] - 1
        put([I("s_waitcnt lgkmcnt(%d)" % ds_after(kw, lambda f: f.op == "ds_read_b128"))], kw, kw)
        put([I("s_waitcnt lgkmcnt(0)")], ng - 3, ng - 3)
        if flags:
            pubg = find("ds_add_u32")[0]
            assert pubg - 1 > ddone
            put([I("s_waitcnt vmcnt(%d)" % (4 * (LEAD - 1) + vmextra))], pubg - 1, pubg)
            wg = find("ds_read_b32")[0] + 5
            wg = put([I("s_waitcnt lgkmcnt(%d)" % ds_after(wg, lambda f: f.op == "ds_read_b32"))], wg, wg + 1)
            cg = min((x for x in range(wg, ng - 3) if gaps[x]["E"] is None),
                     key=lambda x: (len(gaps[x]["flex"]) + len(gaps[x]["fixed"]) >= 2, x))
            gaps[cg]["flex"].append(I("v_cmp_gt_u32 vcc, s%d, v%d" % (sThr, vFlag)))
            put([self.spin()], ng - 1, ng - 1)
        p = put(ring_adv_s(), 0, min(find("v_add_u32")) - 1)
        if flags:
            p = put([I("s_add_u32 s%d, s%d, 1" % (sThr, sThr))], p + 1, cg - 1)
        p = put(m0_adv(), max(p, ddone) + 1)
        p = put(item_adv()[:2] if entry else item_adv(), p + 1)
        tail = tail or []
        if tail:
            put(tail[:1], p + 1)
            tail = tail[1:]
        out = []
        over = 0
        for gi, g in enumerate(gaps):
            out.append(g["m"])
            for x in g["scal"]:
                out.append(x)
                if x.kind == "branch" and x.tag:
                    out.append(I(x.tag + ":"))
            out += [f for f in g["flex"] if f.kind in ("ds", "dma")]
            if g["E"] is not None:
                out.append(g["E"])
            out += g["fixed"] + [f for f in g["flex"] if f.kind not in ("ds", "dma")]
            c = sum(2 if f.kind == "dma" else 1 for f in g["flex"]) + len(g["fixed"]) + (2 if g["E"] is not None else 0)
            over += max(0, c - 2)
        out += tail
        if entry:
            out += self.issue_item()
        sys.stderr.write("body nq=%d par=%d first=%d entry=%d gaps=%d overflow=%d\n" % (nq, par, first, entry, ng, over))
        return check(out, fix=True, name="body")

    def masks(self):
        out = [I("v_mbcnt_lo_u32_b32 v%d, -1, 0" % vT1), I("v_mbcnt_hi_u32_b32 v%d, -1, v%d" % (vT1, vT1)),
               I("v_lshrrev_b32 v%d, 2, v%d" % (vT1, vT1)), I("v_and_b32 v%d, 12, v%d" % (vT1, vT1)),
               I("v_subrev_u32 v%d, s%d, v%d" % (vT1, sC + 4, vT1)),
               I("v_mov_b32 v0, 0xff800000")]
        for j in range(8):
            out += [I("v_add_u32 v%d, %d, v%d" % (vMask + j, (j & 3) + 16 * (j >> 2), vT1)),
                    I("v_ashrrev_i32 v%d, 31, v%d" % (vMask + j, vMask + j)),
                    I("v_bfi_b32 v%d, v%d, 0, v0" % (vMask + j, vMask + j))]
        return out

    def p_softmax(self, nq, i, ss, js, first, lcount):
        ob = ones_blocks(nq, self.o.ones[nq])
        addb = [x for x in range(nq) if x not in ob]
        out = []
        for j in js:
            out.append(EXP(ss, j))
            if i in addb:
                n = lcount.get(i, 0)
                lcount[i] = n + 1
                l = vL + 2 * addb.index(i) + (n & 1)
                r = vS + 8 * ss + j
                out.append(I("v_mov_b32 v%d, v%d" % (l, r)) if first and n < 2 else I("v_add_f32 v%d, v%d, v%d" % (l, l, r)))
            if j & 1:
                out.append(CVT(ss, j >> 1))
        return out

    def p_epi(self, nq, i):
        o = self.o
        ob = ones_blocks(nq, o.ones[nq])
        addb = [x for x in range(nq) if x not in ob]
        out = []
        A = lambda t: out.append(I(t))
        if i in ob:
            r = vMask + 2 * ob.index(i)
            A("v_accvgpr_read_b32 v%d, a%d" % (r, aL + 4 * ob.index(i)))
        else:
            r = vL + 2 * addb.index(i)
            A("v_add_f32 v%d, v%d, v%d" % (r, r, r + 1))
            for sw in ("v_permlane16_swap_b32", "v_permlane32_swap_b32"):
                A("v_mov_b32 v%d, v%d" % (r + 1, r))
                A("%s v%d, v%d" % (sw, r, r + 1))
                A("v_add_f32 v%d, v%d, v%d" % (r, r, r + 1))
        A("v_subrev_u32 v%d, 0x%x, v%d" % (vT1, LO_BITS, r))
        A("v_rcp_f32 v%d, v%d" % (r, r))
        A("v_max_u32 v%d, v%d, v%d" % (vBad, vBad, vT1))
        p = (" " + o.nto) if o.nto else ""
        b0 = vO + 32 * i
        for d4 in range(4):
            for db in (d4, d4 + 4):
                b = b0 + 4 * db
                for j in range(2):
                    A("v_pk_mul_f32 %s, %s, %s op_sel_hi:[1,0]" % (vr(b + 2 * j, 2), vr(b + 2 * j, 2), vr(r, 2)))
                    out[-1].reads.discard(("v", r + 1))
                for j in range(2):
                    A("v_cvt_pk_bf16_f32 v%d, v%d, v%d" % (b + j, b + 2 * j, b + 2 * j + 1))
            A("ds_write2st64_b64 v%d, %s, %s offset1:4" % (vW + d4, vr(b0 + 4 * d4, 2), vr(b0 + 4 * d4 + 16, 2)))
            out[-1].mw = ["stage%d" % d4]
        for k in range(4):
            A("ds_read_b128 %s, v%d offset:%d" % (vr(b0 + 8 * k, 4), vR, 1024 * k))
            out[-1].mr = ["stage%d" % x for x in range(4)]
        for k in range(4):
            A("buffer_store_dwordx4 %s, v%d, %s, s%d offen offset:%d%s" % (vr(b0 + 8 * k, 4), vOst, sr(sO_, 4), sSts[2 * i + (k & 1)], 128 * (k >> 1), p))
            out[-1].bias = o.stbias + 64 * (4 * (nq - 1 - i) + 3 - k)
        return out

    def p_last(self, nq, par, issue):
        ob = ones_blocks(nq, self.o.ones[nq])
        sset = lambda i: (par * nq + i) & 1
        out = [I("s_mov_b32 s%d, s%d" % (sO_ + 2, sC + 1))]
        for i in range(nq):
            for e in range(2):
                out.append(I("s_add_u32 s%d, s%d, %d" % (sSts[2 * i + e], sC, (64 * i + 8 * e) * 4096)))
        out += issue
        lc = {}
        for v in range(nq):
            if v < nq - 1:
                out += qk(nq, v + 1, par, sset(v + 1), False)
            out += self.p_softmax(nq, v, sset(v), (5, 6, 7), False, lc)
            out += pv(v, par, sset(v), False)
            if v in ob:
                out.append(onesm(ob.index(v), sset(v), False))
            if v < nq - 1:
                out += self.p_softmax(nq, v + 1, sset(v + 1), (0, 1, 2, 3, 4), False, lc)
            out += self.p_epi(nq, v)
        return out

    def p_sync(self, vm, wait_ds, start):
        w = I("s_waitcnt vmcnt(0)")
        w.vm = vm
        w.start = start
        pub = I("ds_add_u32 v%d, v%d" % (vPub, vOne))
        pub.after = [w]
        pub.wait_ds = wait_ds
        pub.mw = ["flag"]
        pub.bias = 300
        thr = I("s_add_u32 s%d, s%d, 1" % (sThr, sThr))
        rd = I("ds_read_b32 v%d, v%d" % (vFlag, vChk))
        rd.mr = ["flag"]
        rd.start = start + 260
        cmp_ = I("v_cmp_gt_u32 vcc, s%d, v%d" % (sThr, vFlag))
        br = self.spin()
        br.reads |= {("s", sThr), ("v", vFlag)}
        br.writes |= {("v", vFlag), ("s", "vcc")}
        return [w, pub, thr, rd, cmp_, br]

    def p_prescale(self, nq, i, raw, temps):
        out = []
        for ks in range(4):
            f, dst = qreg(nq, i, ks)
            for j in range(4):
                x = raw + 4 * ks + j
                t = temps[j % len(temps)]
                out += [I("v_lshlrev_b32 v%d, 16, v%d" % (t, x)), I("v_and_b32 v%d, 0xffff0000, v%d" % (t + 1, x)),
                        I("v_pk_mul_f32 %s, %s, %s" % (vr(t, 2), vr(t, 2), sr(sCc, 2)))]
                if f == "v":
                    out.append(I("v_cvt_pk_bf16_f32 v%d, v%d, v%d" % (dst + j, t, t + 1)))
                else:
                    out += [I("v_cvt_pk_bf16_f32 v%d, v%d, v%d" % (t, t, t + 1)), I("v_accvgpr_write_b32 a%d, v%d" % (dst + j, t))]
        return out

    def t_final(self, nq, par):
        out, t = schedule(self.p_last(nq, par, []), name="final nq=%d par=%d" % (nq, par))
        out.append(I("s_waitcnt vmcnt(%d)" % sum(1 for x in out if x.kind == "vmem")))
        return out

    def t_mid(self, nq1, par, nq):
        assert nq <= LEAD
        lastissue = self.issue_item()
        s1 = self.p_sync(4 * (LEAD - nq), [], self.o.s1at)
        prog = []
        for i in range(nq):
            prog.append(I("v_add_u32 v%d, v%d, v%d" % (vMask + 1 + 2 * i, vKa, vQd)))
            prog += ring_adv()
        prog += s1
        last = self.p_last(nq1, par, lastissue)
        js, reads = [], []
        for i in range(nq):
            reads += [I("ds_read_b128 %s, v%d offset:%d" % (qop(nq, i, ks), vMask + 1 + 2 * i, 64 * ks)) for ks in range(4)]
        reads += kvreads(0)
        js += reads + ring_adv()
        for x in reads:
            x.after = [s1[-1]]
        for j in range(min(nq - 1, 2)):
            it = self.issue_item()
            it[0].after = [s1[-1]]
            js += it
        s2 = self.p_sync(lastissue[:4] if nq == LEAD else 4 * (LEAD - nq - 1), reads, 0)
        s2[0].after = list(reads)
        s2[0].start = self.o.s2at
        for x in js + lastissue:
            if x.kind == "dma":
                x.bias = 2000
        js += s2[:3]
        for i in range(nq):
            js += self.p_prescale(nq, i, qreg(nq, i, 0)[1], (vT2, vT5))
        js += self.set_compute(sJ2) + [I("s_mov_b32 s%d, 0" % sNext)]
        js += self.masks()
        js += qk(nq, 0, 0, 0, True)
        js += self.p_softmax(nq, 0, 0, (0, 1, 2, 3, 4), True, {})
        js += [I("s_sub_u32 s%d, s%d, 3" % (sLoop, sC + 3))]
        s2[3].after = [[x for x in js if x.op == "v_cvt_pk_bf16_f32"][-12]]
        js += s2[3:]
        for j in range(2, nq - 1):
            it = self.issue_item()
            it[0].after = [s2[-1]]
            js += it
        out, t = schedule(prog + last + js, name="mid %d(par %d)->%d" % (nq1, par, nq))
        return out

    def srd_kv(self):
        return [I("s_mov_b64 %s, %s" % (sr(sA, 2), sr(sKp, 2))), I("s_mov_b64 %s, %s" % (sr(sB, 2), sr(sVp, 2))),
                I("s_add_u32 s%d, s%d, %d" % (sB + 2, sJ1 + 2, V0OFF))]

    def srd_q(self):
        return [I("s_mov_b64 %s, %s" % (sr(sA, 2), sr(sQp, 2))), I("s_mov_b64 %s, %s" % (sr(sB, 2), sr(sQp2, 2))),
                I("s_sub_u32 s%d, s%d, %d" % (sB + 2, sJ1 + 2, 32 * 4096 - V0OFF))]

    def head(self, nq):
        o = self.o
        ob = ones_blocks(nq, o.ones[nq])
        kind = ["q", "kv", "kv"] + ["q"] * (nq - 1) + ["kv"] * 5
        groups = {}
        state = ["q"]

        def issue(k):
            out = []
            if kind[k] != state[0]:
                out += self.srd_q() if kind[k] == "q" else self.srd_kv()
                state[0] = kind[k]
            so = sQoff if kind[k] == "q" else sSoff
            d = dmas(o, so)
            groups[k] = d
            for x in d:
                x.bias = 3000
            return out + d + m0_adv() + [I("s_add_u32 s%d, s%d, %d" % (so, so, 64 * 4096) if kind[k] == "q" else
                                           "s_add_u32 s%d, s%d, s%d" % (so, so, sStride))]

        prog = []
        for k in range(1, o.hlead):
            prog += issue(k)
        prog += self.masks()
        t = o.a0
        prev_reads, prev_bar = [], None
        lc = {}
        work = []
        visit = [0]
        pend = [None]

        def flush_pv():
            if pend[0] is None:
                return []
            i, tile, ss = pend[0]
            pend[0] = None
            out = pv(i, tile, ss, tile == 0)
            if i in ob:
                out.append(onesm(ob.index(i), ss, tile == 0))
            return out

        def do_visit(i, tile):
            ss = (visit[0] + 2 * nq) & 1
            visit[0] += 1
            out = qk(nq, i, tile, ss, tile == 0) + flush_pv()
            out += self.p_softmax(nq, i, ss, range(8), tile == 0, lc)
            pend[0] = (i, tile, ss)
            return out

        qi = 0
        nkv = 0
        for k in range(nq + 4):
            bar = I("s_barrier")
            bar.vm = 0 if k == 0 else groups[k]
            bar.start = t
            bar.after = [prev_bar] if prev_bar else []
            bar.wait_ds = prev_reads
            prog += [bar]
            prev_bar = bar
            t += o.dq if (k + 1 < len(kind) and kind[k + 1] == "q") else o.dkv
            if k + o.hlead <= nq + 6:
                it = issue(k + o.hlead)
                [x for x in it if x.kind == "dma"][0].after = [bar]
                prog += it
            if k == nq + 3:
                break
            if kind[k] == "q":
                f, r0 = qreg(nq, qi, 0)
                raw = r0 if f == "v" else vO + 32 * qi
                rd = [I("ds_read_b128 %s, v%d offset:%d" % (vr(raw + 4 * ks, 4), vT3 + 45, 64 * ks)) for ks in range(4)]
                prog += [I("v_add_u32 v%d, v%d, v%d" % (vT3 + 45, vKa, vQd))] + rd + ring_adv()
                prog += self.p_prescale(nq, qi, raw, (vT2,) if nq > 5 else (vT2, vT5))
                if qi > 0:
                    prog += do_visit(qi, 0) + do_visit(qi, 1)
                qi += 1
            else:
                rd = kvreads(nkv & 1)
                if nkv == 2:
                    prog += rd + ring_adv()
                    prog += qk(nq, 0, 0, 0, False) + flush_pv() + self.p_softmax(nq, 0, 0, range(5), False, lc)
                else:
                    prog += rd + ring_adv() + do_visit(0, nkv)
                nkv += 1
            for x in rd:
                x.after = [bar]
            prev_reads = rd
        prog += [I("s_sub_u32 s%d, s%d, 8" % (sCnt, sJ1 + 4)), I("s_sub_u32 s%d, s%d, 5" % (sLoop, sC + 3))]
        out, t = schedule(prog, name="head nq=%d" % nq)
        if o.stamp == 2:
            res, k = [], 0
            for x in out:
                if x.op == "s_barrier":
                    w = res.pop()
                    res += [I("s_memrealtime s[92:93]"), w, x, I("s_memrealtime s[96:97]"), I("s_waitcnt lgkmcnt(0)"),
                            I("v_writelane_b32 v63, s92, %d" % (8 + 2 * k)), I("v_writelane_b32 v63, s96, %d" % (9 + 2 * k))]
                    k += 1
                else:
                    res.append(x)
            out = res
        return out

    def addr_setup(self):
        t1, t2, t3, ln = vT1, vT2, vT3, vT4
        o = []
        A = lambda s: o.append(I(s))
        A("v_lshrrev_b32 v%d, 6, v0" % t1)
        A("v_and_b32 v%d, 63, v0" % ln)
        A("v_readfirstlane_b32 s%d, v%d" % (sW, t1))
        A("v_lshrrev_b32 v%d, 4, v%d" % (t2, ln))
        A("v_and_b32 v%d, 15, v%d" % (t3, ln))
        A("v_lshlrev_b32 v%d, 13, v%d" % (vo0, t1))
        A("v_lshl_add_u32 v%d, v%d, 15, v%d" % (vo0, t2, vo0))
        A("v_lshl_add_u32 v%d, v%d, 4, v%d" % (vo0, t3, vo0))
        A("v_add_u32 v%d, %d, v%d" % (vo1, 4096 - K1OFF, vo0))
        A("v_lshrrev_b32 v%d, 3, v%d" % (vR, ln))
        A("v_lshl_add_u32 v%d, v%d, 4, v%d" % (vOst, t1, vR))
        A("v_lshlrev_b32 v%d, 12, v%d" % (vOst, vOst))
        A("v_and_b32 v%d, 7, v%d" % (vW, ln))
        A("v_lshl_add_u32 v%d, v%d, 4, v%d" % (vOst, vW, vOst))
        A("v_xor_b32 v%d, v%d, v%d" % (vW + 1, vW, vR))
        A("v_lshlrev_b32 v%d, 4, v%d" % (vW + 1, vW + 1))
        A("v_lshl_add_u32 v%d, v%d, 7, v%d" % (vR, vR, vW + 1))
        A("v_lshlrev_b32 v%d, 12, v%d" % (vW + 3, t1))
        A("v_add_u32 v%d, %d, v%d" % (vW + 3, STAGE, vW + 3))
        A("v_add_u32 v%d, v%d, v%d" % (vR, vR, vW + 3))
        A("v_lshrrev_b32 v%d, 1, v%d" % (vW + 1, t2))
        A("v_xor_b32 v%d, v%d, v%d" % (vW, vW, vW + 1))
        A("v_lshlrev_b32 v%d, 4, v%d" % (vW, vW))
        A("v_and_b32 v%d, 1, v%d" % (vW + 1, t2))
        A("v_lshl_add_u32 v%d, v%d, 3, v%d" % (vW, vW + 1, vW))
        A("v_lshl_add_u32 v%d, v%d, 7, v%d" % (vW, t3, vW))
        A("v_add_u32 v%d, v%d, v%d" % (vW, vW, vW + 3))
        A("v_xor_b32 v%d, 32, v%d" % (vW + 1, vW))
        A("v_xor_b32 v%d, 64, v%d" % (vW + 2, vW))
        A("v_xor_b32 v%d, 0x60, v%d" % (vW + 3, vW))
        A("v_bfe_u32 v%d, v%d, 1, 2" % (vKa, ln))
        A("v_mul_u32_u24 v%d, %d, v%d" % (vKa, WREG, vKa))
        A("v_and_b32 v%d, 1, v%d" % (vT4 + 1, ln))
        A("v_mul_u32_u24 v%d, %d, v%d" % (vT4 + 2, K1OFF, vT4 + 1))
        A("v_add_u32 v%d, v%d, v%d" % (vKa, vKa, vT4 + 2))
        A("v_bfe_u32 v%d, v%d, 3, 1" % (vT4 + 2, ln))
        A("v_lshl_add_u32 v%d, v%d, 8, v%d" % (vKa, vT4 + 2, vKa))
        A("v_lshl_add_u32 v%d, v%d, 4, v%d" % (vKa, t2, vKa))
        A("v_lshrrev_b32 v%d, 1, v%d" % (vT4 + 3, t1))
        A("v_mul_u32_u24 v%d, %d, v%d" % (vQd, V0OFF, vT4 + 3))
        A("v_and_b32 v%d, 1, v%d" % (vT4 + 3, t1))
        A("v_lshl_add_u32 v%d, v%d, 9, v%d" % (vQd, vT4 + 3, vQd))
        A("v_bfe_u32 v%d, v%d, 3, 2" % (vVa, ln))
        A("v_mul_u32_u24 v%d, %d, v%d" % (vVa, WREG, vVa))
        A("v_bfe_u32 v%d, v%d, 2, 1" % (vT4 + 2, ln))
        A("v_mul_u32_u24 v%d, %d, v%d" % (vT4 + 2, V1OFF - V0OFF, vT4 + 2))
        A("v_add_u32 v%d, v%d, v%d" % (vVa, vVa, vT4 + 2))
        A("v_lshrrev_b32 v%d, 5, v%d" % (vT4 + 2, ln))
        A("v_lshl_add_u32 v%d, v%d, 8, v%d" % (vVa, vT4 + 2, vVa))
        A("v_and_b32 v%d, 3, v%d" % (vT4 + 2, ln))
        A("v_lshl_add_u32 v%d, v%d, 3, v%d" % (vVa, vT4 + 2, vVa))
        A("v_add_u32 v%d, %d, v%d" % (vVa, V0OFF, vVa))
        A("v_mul_u32_u24 v%d, 260, v%d" % (vChk, vT4 + 2))
        A("v_add_u32 v%d, %d, v%d" % (vChk, FLAG, vChk))
        A("v_lshlrev_b32 v%d, 2, v0" % vPub)
        A("v_add_u32 v%d, %d, v%d" % (vPub, FLAG, vPub))
        A("v_mov_b32 v%d, 1" % vOne)
        return o

    def decode_job(self, d0, d1, dst):
        o = []
        A = lambda s: o.append(I(s))
        A("s_bfe_u32 s%d, s%d, 0x10010" % (sT2, d0))
        A("s_lshl_b32 s%d, s%d, 8" % (sT2, sT2))
        A("s_add_u32 s%d, s%d, s%d" % (sT2, sT2, sTmp))
        A("s_and_b32 s%d, s%d, 0x1fff" % (dst, d0))
        A("s_lshl_b32 s%d, s%d, 12" % (dst, dst))
        A("s_add_u32 s%d, s%d, s%d" % (dst, dst, sT2))
        A("s_lshr_b32 s%d, s%d, 13" % (dst + 2, d1))
        A("s_lshl_b32 s%d, s%d, 12" % (dst + 2, dst + 2))
        p2 = []
        B = lambda s: p2.append(I(s))
        B("s_and_b32 s%d, s%d, 0x1fff" % (dst + 1, d1))
        B("s_lshl_b32 s%d, s%d, 12" % (dst + 1, dst + 1))
        B("s_add_u32 s%d, s%d, s%d" % (dst + 1, dst + 1, sT2))
        B("s_bfe_u32 s%d, s%d, 0x3000d" % (dst + 3, d0))
        B("s_lshr_b32 s%d, s%d, 20" % (dst + 4, d0))
        return o, p2

    def set_compute(self, j):
        o = []
        A = lambda s: o.append(I(s))
        A("s_mov_b32 s%d, s%d" % (sC, j))
        A("s_mov_b32 s%d, s%d" % (sC + 1, j + 2))
        A("s_mov_b32 s%d, s%d" % (sC + 3, j + 4))
        A("s_lshr_b32 s%d, s%d, 12" % (sT2, j + 2))
        A("s_lshr_b32 s%d, s%d, 12" % (sT3, j + 1))
        A("s_sub_u32 s%d, s%d, s%d" % (sT2, sT2, sT3))
        A("s_lshl_b32 s%d, s%d, 5" % (sT3, j + 4))
        A("s_sub_u32 s%d, s%d, s%d" % (sT2, sT2, sT3))
        A("s_add_u32 s%d, s%d, 32" % (sC + 4, sT2))
        return o

    def queue_setup(self):
        o = []
        A = lambda s: o.append(I(s))
        j = sJ2
        A("s_mov_b64 %s, %s" % (sr(sN, 2), sr(sQp, 2)))
        A("s_mov_b64 %s, %s" % (sr(sN + 2, 2), sr(sQp2, 2)))
        A("s_mov_b32 s%d, s%d" % (sN + 4, j))
        A("s_mov_b32 s%d, %d" % (sN + 5, 64 * 4096))
        A("s_mov_b64 %s, %s" % (sr(sM, 2), sr(sKp, 2)))
        A("s_mov_b64 %s, %s" % (sr(sM + 2, 2), sr(sVp, 2)))
        A("s_sub_u32 s%d, s%d, 1" % (sM + 8, j + 4))
        A("s_lshl_b32 s%d, s%d, 17" % (sM + 4, sM + 8))
        A("s_add_u32 s%d, s%d, s%d" % (sM + 4, sM + 4, j + 1))
        A("s_mov_b32 s%d, %d" % (sM + 5, -32 * 4096))
        A("s_mov_b32 s%d, s%d" % (sN + 6, j + 2))
        A("s_sub_u32 s%d, s%d, %d" % (sN + 7, j + 2, 32 * 4096 - V0OFF))
        A("s_sub_u32 s%d, s%d, 1" % (sN + 8, j + 3))
        A("s_mov_b32 s%d, s%d" % (sM + 6, j + 2))
        A("s_add_u32 s%d, s%d, %d" % (sM + 7, j + 2, V0OFF))
        A("s_cmp_eq_u32 s%d, 0" % (j + 3))
        A("s_cmov_b64 %s, 0" % sr(sN + 6, 2))
        A("s_cmov_b32 s%d, 0x7fffffff" % (sN + 8))
        A("s_sub_u32 s%d, s%d, 1" % (sSoff, sJ1 + 4))
        A("s_lshl_b32 s%d, s%d, 17" % (sSoff, sSoff))
        A("s_add_u32 s%d, s%d, s%d" % (sSoff, sSoff, sJ1 + 1))
        A("s_mov_b32 s%d, %d" % (sStride, -32 * 4096))
        return o

    def slow(self):
        o = []
        A = lambda s: o.append(I(s))
        Qf, Kf, Vf, Oa, S, P = 192, 128, 160, 64, vS, vP
        m, l, al, t, u = vL, vL + 1, vL + 2, vL + 3, vL + 4
        vSrc, vG4, vSt = vL + 5, vL + 6, vL + 7
        sJob, sBlk, sTile, sRow, sLeft, sBase, sSt = range(sN, sN + 7)
        sj = sM
        A("L_slow:")
        A("s_waitcnt vmcnt(0)")
        A("v_mbcnt_lo_u32_b32 v0, -1, 0")
        A("v_mbcnt_hi_u32_b32 v0, -1, v0")
        A("v_lshrrev_b32 v%d, 4, v0" % vG4)
        A("v_and_b32 v%d, 15, v0" % t)
        A("v_lshlrev_b32 v%d, 15, v%d" % (vSrc, vG4))
        A("v_lshl_add_u32 v%d, v%d, 4, v%d" % (vSrc, t, vSrc))
        A("v_lshlrev_b32 v%d, 2, v%d" % (vG4, vG4))
        A("s_lshl_b32 s%d, s%d, 6" % (sT2, sW))
        A("v_add_u32 v0, s%d, v0" % sT2)
        o += self.addr_setup()
        A("v_lshl_add_u32 v%d, v%d, 4, v%d" % (vOst, vT1, vT3))
        A("v_lshlrev_b32 v%d, 12, v%d" % (vOst, vOst))
        A("v_lshl_add_u32 v%d, v%d, 3, v%d" % (vSt, vT2, vOst))
        A("v_lshl_add_u32 v%d, v%d, 4, v%d" % (vOst, vT2, vOst))
        A("s_mul_i32 s%d, s%d, %d" % (sBase, sW, SLOT))
        A("v_add_u32 v%d, s%d, v%d" % (vKa, sBase, vKa))
        A("v_add_u32 v%d, s%d, v%d" % (vVa, sBase, vVa))
        A("s_mov_b32 s%d, 0" % sJob)
        for j in range(5):
            A("s_mov_b32 s%d, s%d" % (sj + j, sJ1 + j))
        A("L_slow_job:")
        A("s_mov_b32 s%d, 0" % sBlk)
        A("L_slow_blk:")
        A("s_mov_b64 %s, %s" % (sr(sA, 2), sr(sQp, 2)))
        A("s_mov_b32 s%d, s%d" % (sA + 2, sj + 2))
        A("s_lshl_b32 s%d, s%d, 18" % (sSt, sBlk))
        A("s_add_u32 s%d, s%d, s%d" % (sSt, sSt, sj))
        for ks in range(4):
            A("buffer_load_dwordx4 %s, v%d, %s, s%d offen offset:%d" % (vr(Kf + 4 * ks, 4), vOst, sr(sA, 4), sSt, 64 * ks))
        A("s_waitcnt vmcnt(0)")
        for j in range(16):
            A("v_lshlrev_b32 v%d, 16, v%d" % (t, Kf + j))
            A("v_and_b32 v%d, 0xffff0000, v%d" % (u, Kf + j))
            A("v_mul_f32 v%d, s%d, v%d" % (t, sCc, t))
            A("v_mul_f32 v%d, s%d, v%d" % (u, sCc, u))
            A("v_cvt_pk_bf16_f32 v%d, v%d, v%d" % (Qf + j, t, u))
        for j in range(32):
            A("v_mov_b32 v%d, 0" % (Oa + j))
        A("v_mov_b32 v%d, 0xff800000" % m)
        A("v_mov_b32 v%d, 0" % l)
        A("s_mov_b64 %s, %s" % (sr(sA, 2), sr(sKp, 2)))
        A("s_mov_b64 %s, %s" % (sr(sB, 2), sr(sVp, 2)))
        A("s_add_u32 s%d, s%d, %d" % (sB + 2, sj + 2, V0OFF))
        A("s_mov_b32 s%d, s%d" % (sRow, sj + 1))
        A("s_lshr_b32 s%d, s%d, 12" % (sLeft, sj + 2))
        A("s_lshr_b32 s%d, s%d, 12" % (sT2, sj + 1))
        A("s_sub_u32 s%d, s%d, s%d" % (sLeft, sLeft, sT2))
        A("s_mov_b32 s%d, s%d" % (sTile, sj + 4))
        A("L_slow_tile:")
        for sg in range(8):
            A("s_add_u32 s%d, s%d, %d" % (sT2, sRow, sg * 4096))
            A("s_add_u32 m0, s%d, %d" % (sBase, (sg >> 1) * WREG + (sg & 1) * K1OFF))
            A("buffer_load_dwordx4 v%d, %s, s%d offen lds" % (vSrc, sr(sA, 4), sT2))
            A("buffer_load_dwordx4 v%d, %s, s%d offen offset:%d lds" % (vSrc, sr(sB, 4), sT2, V0OFF))
        A("s_waitcnt vmcnt(0)")
        for b in range(2):
            for ks in range(4):
                A("ds_read_b128 %s, v%d offset:%d" % (vr(Kf + 16 * b + 4 * ks, 4), vKa, b * 512 + ks * 64))
        A("s_waitcnt lgkmcnt(0)")
        for db in range(8):
            for jj in range(2):
                A("ds_read_b64_tr_b16 %s, v%d offset:%d" % (vr(Vf + 4 * db + 2 * jj, 2), vVa, jj * 512 + 32 * db))
        for b in range(2):
            for ks in range(4):
                d = vr(S + 4 * b, 4)
                o.append(mf(d, vr(Kf + 16 * b + 4 * ks, 4), vr(Qf + 4 * ks, 4), d if ks else "0"))
        A("v_mov_b32 v%d, 0xff800000" % u)
        for j in range(8):
            A("v_add_u32 v%d, %d, v%d" % (t, (j & 3) + 16 * (j >> 2), vG4))
            A("v_cmp_gt_u32 vcc, s%d, v%d" % (sLeft, t))
            A("v_cndmask_b32 v%d, v%d, v%d, vcc" % (S + j, u, S + j))
        A("v_max3_f32 v%d, v%d, v%d, v%d" % (t, S, S + 1, S + 2))
        A("v_max3_f32 v%d, v%d, v%d, v%d" % (t, t, S + 3, S + 4))
        A("v_max3_f32 v%d, v%d, v%d, v%d" % (t, t, S + 5, S + 6))
        A("v_max3_f32 v%d, v%d, v%d, v%d" % (t, t, S + 7, m))
        for sw in ("v_permlane16_swap_b32", "v_permlane32_swap_b32"):
            A("v_mov_b32 v%d, v%d" % (u, t))
            A("%s v%d, v%d" % (sw, t, u))
            A("v_max_f32 v%d, v%d, v%d" % (t, t, u))
        A("v_sub_f32 v%d, v%d, v%d" % (al, m, t))
        A("v_exp_f32 v%d, v%d" % (al, al))
        A("v_mov_b32 v%d, v%d" % (m, t))
        for j in range(8):
            A("v_sub_f32 v%d, v%d, v%d" % (S + j, S + j, m))
        for j in range(8):
            A("v_exp_f32 v%d, v%d" % (S + j, S + j))
        A("v_mul_f32 v%d, v%d, v%d" % (l, l, al))
        for j in range(8):
            A("v_add_f32 v%d, v%d, v%d" % (l, l, S + j))
        for j in range(4):
            A("v_cvt_pk_bf16_f32 v%d, v%d, v%d" % (P + j, S + 2 * j, S + 2 * j + 1))
        for j in range(32):
            A("v_mul_f32 v%d, v%d, v%d" % (Oa + j, Oa + j, al))
        A("s_waitcnt lgkmcnt(0)")
        for db in range(8):
            d = vr(Oa + 4 * db, 4)
            o.append(mf(d, vr(Vf + 4 * db, 4), vr(P, 4), d))
        A("s_add_u32 s%d, s%d, %d" % (sRow, sRow, 32 * 4096))
        A("s_sub_u32 s%d, s%d, 32" % (sLeft, sLeft))
        A("s_nop 7")
        A("s_sub_u32 s%d, s%d, 1" % (sTile, sTile))
        A("s_cmp_lg_u32 s%d, 0" % sTile)
        A("s_cbranch_scc1 L_slow_tile")
        for sw in ("v_permlane16_swap_b32", "v_permlane32_swap_b32"):
            A("v_mov_b32 v%d, v%d" % (u, l))
            A("%s v%d, v%d" % (sw, l, u))
            A("v_add_f32 v%d, v%d, v%d" % (l, l, u))
        A("v_rcp_f32 v%d, v%d" % (l, l))
        A("s_mov_b32 s%d, s%d" % (sO_ + 2, sj + 2))
        for j in range(32):
            A("v_mul_f32 v%d, v%d, v%d" % (Oa + j, Oa + j, l))
        for db in range(8):
            b = Oa + 4 * db
            for j in range(2):
                A("v_cvt_pk_bf16_f32 v%d, v%d, v%d" % (b + j, b + 2 * j, b + 2 * j + 1))
            A("buffer_store_dwordx2 %s, v%d, %s, s%d offen offset:%d" % (vr(b, 2), vSt, sr(sO_, 4), sSt, 32 * db))
        A("s_waitcnt vmcnt(0)")
        A("s_add_u32 s%d, s%d, 1" % (sBlk, sBlk))
        A("s_cmp_lt_u32 s%d, s%d" % (sBlk, sj + 3))
        A("s_cbranch_scc1 L_slow_blk")
        A("s_cmp_lg_u32 s%d, 0" % sJob)
        A("s_cbranch_scc1 L_end")
        A("s_mov_b32 s%d, 1" % sJob)
        for j in range(5):
            A("s_mov_b32 s%d, s%d" % (sj + j, sJ2 + j))
        A("s_cmp_lg_u32 s%d, 0" % (sj + 3))
        A("s_cbranch_scc1 L_slow_job")
        A("s_branch L_end")
        return check(o, fix=True, name="slow")

    def stamp(self, idx):
        if not self.o.stamp:
            return []
        return [I("s_memtime s[94:95]"), I("s_memrealtime s[96:97]"), I("s_waitcnt lgkmcnt(0)"),
                I("v_writelane_b32 v62, s94, %d" % idx), I("v_writelane_b32 v63, s96, %d" % idx)]

    def kernel(self, table):
        o = self.o
        out = []
        A = lambda s: out.append(I(s))
        A("s_cmp_ge_u32 s2, 256")
        A("s_cbranch_scc1 L_end")
        out += self.stamp(0)
        if o.padto:
            A("s_memrealtime s[98:99]")
        A("s_load_dwordx4 %s, s[0:1], 0" % sr(sQp, 4))
        A("s_load_dwordx2 %s, s[0:1], 16" % sr(sVp, 2))
        A("s_load_dwordx2 %s, s[0:1], 32" % sr(sO_, 2))
        A("s_getpc_b64 %s" % sr(sTab, 2))
        A("L_pc:")
        A("s_lshr_b32 s%d, s2, 3" % sTmp)
        if o.codepf:
            A("s_mul_i32 s%d, s%d, 3072" % (sT2, sTmp))
            A("v_min_u32 v%d, 23, v0" % vT4)
            A("v_lshl_add_u32 v%d, v%d, 7, s%d" % (vT4, vT4, sT2))
            A("v_min_u32 v%d, L_slow-L_pc-8, v%d" % (vT4, vT4))
            A("global_load_dword v%d, v%d, %s" % (vT4 + 4, vT4, sr(sTab, 2)))
        A("s_lshl_b32 s%d, s%d, 4" % (sTmp, sTmp))
        A("s_add_u32 s%d, s%d, L_table-L_pc" % (sTmp, sTmp))
        A("s_add_u32 s%d, s%d, s%d" % (sTab + 2, sTab, sTmp))
        A("s_addc_u32 s%d, s%d, 0" % (sTab + 3, sTab + 1))
        A("s_load_dwordx4 %s, %s, 0" % (sr(sTd, 4), sr(sTab + 2, 2)))
        out += self.addr_setup()
        A("v_mov_b32 v%d, 0" % vBad)
        if o.trace:
            A("v_lshrrev_b32 v61, 6, v0")
            A("v_lshlrev_b32 v61, 8, v61")
            A("v_add_u32 v61, %d, v61" % TRACE)
            A("v_lshlrev_b32 v60, 2, v0")
            A("v_add_u32 v60, %d, v60" % TRACE)
            A("ds_write_b32 v60, v%d" % vBad)
        A("ds_write_b32 v%d, v%d" % (vPub, vBad))
        A("v_mov_b32 v%d, 0x3f803f80" % vT1)
        for j in range(4):
            A("v_accvgpr_write_b32 a%d, v%d" % (aOnes + j, vT1))
        A("s_mul_i32 s%d, s%d, %d" % (sWb, sW, WREG))
        A("s_add_u32 s%d, s%d, %d" % (sMlim, sWb, R * SLOT))
        A("s_mov_b32 m0, s%d" % sWb)
        A("s_mov_b32 s%d, %d" % (sRc, R - 1))
        A("s_mov_b32 s%d, 0" % sThr)
        A("s_mov_b32 s%d, %d" % (sPos, SLOT))
        A("s_mov_b32 s%d, %d" % (sNeg, -(R - 1) * SLOT))
        A("s_mov_b32 s%d, 0x%x" % (sCc, SCALE_BITS))
        A("s_mov_b32 s%d, 0x%x" % (sCc + 1, SCALE_BITS))
        A("s_mov_b32 s%d, 0x20000" % (sA + 3))
        A("s_mov_b32 s%d, 0x20000" % (sB + 3))
        A("s_mov_b32 s%d, 0x20000" % (sO_ + 3))
        A("s_mov_b32 s%d, 0" % (sO_ + 2))
        A("s_and_b32 s%d, s2, 7" % sTmp)
        A("s_lshl_b32 s%d, s%d, 9" % (sTmp, sTmp))
        A("s_waitcnt lgkmcnt(0)")
        A("s_add_u32 s%d, s%d, %d" % (sQp2, sQp, 32 * 4096 - V0OFF))
        A("s_addc_u32 s%d, s%d, 0" % (sQp2 + 1, sQp + 1))
        d1a, d1b = self.decode_job(sTd, sTd + 1, sJ1)
        out += d1a + self.srd_q() + [I("s_mov_b32 s%d, s%d" % (sA + 2, sJ1 + 2))]
        out += dmas(o, sJ1) + m0_adv() + [I("s_add_u32 s%d, s%d, %d" % (sQoff, sJ1, 64 * 4096))]
        A("s_sub_u32 s%d, s%d, %d" % (sVp, sVp, V0OFF))
        A("s_subb_u32 s%d, s%d, 0" % (sVp + 1, sVp + 1))
        out += d1b
        d2a, d2b = self.decode_job(sTd + 2, sTd + 3, sJ2)
        out += d2a + d2b + self.queue_setup() + self.set_compute(sJ1)
        A("s_mov_b32 s%d, s%d" % (sNext, sJ2 + 3))
        out += self.stamp(1)
        for nq in o.nq1s[:-1]:
            out += [I("s_cmp_eq_u32 s%d, %d" % (sJ1 + 3, nq)), I("s_cbranch_scc1 L_first%d" % nq)]
        A("s_branch L_first%d" % o.nq1s[-1])
        out = check(out, fix=True, name="entry")
        b0s, tails = {}, []
        mids = {k: self.t_mid(*k) for k in sorted(o.trans) if k[2]}

        def stores_behind(k):
            d = [i for i, x in enumerate(mids[k]) if x.kind == "dma"][4 * (k[2] - LEAD + 1) + 3]
            return sum(1 for x in mids[k][d:] if x.kind == "vmem")
        for nq in o.nqs:
            dec = I("s_sub_u32 s%d, s%d, 1" % (sLoop, sLoop))
            bA = self.body(nq, 1, tail=[dec, I("s_cbranch_scc1 L_last0_%d" % nq)])
            bB = self.body(nq, 0, tail=[dec, I("s_cbranch_scc0 L_loop%d" % nq)])
            check(bA + bB + bA, name="loop")
            if nq in o.nq2s:
                b0s[nq] = self.body(nq, 0, first=True, entry=True, vmextra=min(stores_behind(k) for k in mids if k[2] == nq))
                check(b0s[nq] + bA, name="b0-bA")
                out += [I("L_body%d:" % nq)] + self.stamp(2) + b0s[nq] + self.stamp(5)
                if nq in o.nq1s:
                    out += [I("s_branch L_loop%d" % nq)]
            if nq in o.nq1s:
                h = self.head(nq)
                b2 = self.body(nq, 0, entry=True)
                check(h + b2 + bA, name="head-b2-bA")
                out += [I("L_first%d:" % nq)] + h + self.stamp(2) + b2 + self.stamp(5)
            if o.trace:
                tr0 = [I("s_memtime s[98:99]")]
                tr1 = [I("v_mov_b32 v60, s98"), I("ds_write_b32 v61, v60"), I("v_add_u32 v61, 4, v61")]
                bA = tr0 + bA[:-1] + tr1 + bA[-1:]
                bB = tr0 + bB[:-1] + tr1 + bB[-1:]
            out += [I(".p2align 6"), I("L_loop%d:" % nq)] + bA + bB
            for par in (1, 0):
                prev = bB if par else bA
                out += [I("L_last%d_%d:" % (par, nq))] + self.stamp(3)
                nxt = sorted({b for (a, p_, b) in o.trans if a == nq and p_ == par})
                for b in nxt[:-1]:
                    out += [I("s_cmp_eq_u32 s%d, %d" % (sNext, b)), I("s_cbranch_scc1 L_t%d_%d_%d" % (nq, par, b))]
                for b in reversed(nxt):
                    t = mids[(nq, par, b)] if b else self.t_final(nq, par)
                    check(prev + t, name="loop-t")
                    out += [I("L_t%d_%d_%d:" % (nq, par, b))] + t + self.stamp(4)
                    if b:
                        tails.append((t, b))
                        if o.stamp:
                            out += [I("v_mov_b32 v60, v62"), I("v_mov_b32 v61, v63")]
                        out += [I("s_branch L_body%d" % b)]
                    else:
                        out += [I("s_branch L_fin")]
                if not nxt:
                    out += [I("s_branch L_fin")]
        for t, b in tails:
            check(t + b0s[b], name="t-b0")
        A = lambda s: out.append(I(s))
        A("L_fin:")
        A("s_barrier")
        if o.stamp or o.trace:
            out += self.stamp(6)
            A("s_waitcnt vmcnt(0)")
            out += self.stamp(7)
            A("s_load_dwordx2 s[4:5], s[0:1], 48")
            A("v_mbcnt_lo_u32_b32 v70, -1, 0")
            A("v_mbcnt_hi_u32_b32 v70, -1, v70")
            A("s_mov_b32 s6, 0x1000000")
            A("s_lshl_b32 s3, s2, 2")
            A("s_add_u32 s3, s3, s%d" % sW)
            if o.stamp:
                A("s_lshl_b32 s3, s3, 10")
                A("v_lshlrev_b32 v70, 4, v70")
                A("s_waitcnt lgkmcnt(0)")
                A("buffer_store_dwordx4 v[60:63], v70, s[4:7], s3 offen")
            else:
                A("s_lshl_b32 s3, s3, 8")
                A("v_lshlrev_b32 v70, 2, v70")
                A("s_lshl_b32 s92, s%d, 8" % sW)
                A("s_add_u32 s92, s92, %d" % TRACE)
                A("v_add_u32 v71, s92, v70")
                A("ds_read_b32 v72, v71")
                A("s_waitcnt lgkmcnt(0)")
                A("buffer_store_dword v72, v70, s[4:7], s3 offen")
        if o.padto:
            A("s_waitcnt vmcnt(0)")
            A("L_pad:")
            A("s_memrealtime s[100:101]")
            A("s_waitcnt lgkmcnt(0)")
            A("s_sub_u32 s100, s100, s98")
            A("s_cmp_lt_u32 s100, %d" % (o.padto * 100))
            A("s_cbranch_scc1 L_pad")
        A("v_cmp_lt_u32 vcc, 0x%x, v%d" % (HI_BITS - LO_BITS, vBad))
        A("s_nop 4")
        A("s_cbranch_vccnz L_slow")
        A("L_end:")
        A("s_endpgm")
        out += self.stubs
        out += self.slow()
        txt = [x.text for x in out]
        txt.append(".p2align 4")
        txt.append("L_table:")
        for e in table:
            txt.append(".long 0x%x, 0x%x, 0x%x, 0x%x" % tuple(e))
        return txt


def make_table(bins):
    nxt = {}
    tab = []
    for jobs in bins:
        e = []
        for (s, hh, nq) in jobs:
            u = nxt.get((s, hh), 0)
            nxt[(s, hh)] = u + nq
            q0 = CU[s] + 64 * u
            n = (CU[s + 1] - CU[s] + 31) // 32
            e += [q0 | nq << 13 | hh << 16 | n << 20, CU[s] | CU[s + 1] << 13]
        e += [0, 0] * (2 - len(jobs))
        tab.append(e)
    for s in range(8):
        for hh in range(2):
            assert nxt[(s, hh)] == (CU[s + 1] - CU[s] + 63) // 64, (s, hh, nxt)
    assert len(tab) == 32
    return tab


HEADER = """; varlen (packed, ragged) non-causal attention forward, bf16, T=6042 H=16 D=128, 8 sequences (cu is a constant of the problem)
; @launch grid=(256,1,1) block=(256,1,1) lds=%d
.amdgcn_target "amdgcn-amd-amdhsa--gfx950"
.text
.globl %s
.p2align 8
.type %s,@function
%s:
"""
FOOTER = """.section .rodata,"a"
.p2align 6
.amdhsa_kernel %s
  .amdhsa_next_free_vgpr 512
  .amdhsa_next_free_sgpr 102
  .amdhsa_accum_offset 256
  .amdhsa_group_segment_fixed_size 0
  .amdhsa_kernarg_size 56
  .amdhsa_user_sgpr_count 2
  .amdhsa_user_sgpr_kernarg_segment_ptr 1
  .amdhsa_system_sgpr_workgroup_id_x 1
.end_amdhsa_kernel
"""


def parse_bins(s):
    U = [(CU[i + 1] - CU[i] + 63) // 64 for i in range(8)]
    jobs = []
    for bi, b in enumerate(s.split()):
        for ji, j in enumerate(b.split("+")):
            if j[0] != "-":
                jobs.append((bi, ji, "ABCDEFGH".index(j[0]), int(j[1]), "ab".index(j[2]) if len(j) > 2 else None))
    hh = {}
    for s_ in range(8):
        mine = [j for j in jobs if j[2] == s_]
        best = None
        for mask in range(1 << len(mine)):
            if any(j[4] is not None and j[4] != (mask >> k & 1) for k, j in enumerate(mine)):
                continue
            if sum(j[3] for k, j in enumerate(mine) if mask >> k & 1) == U[s_]:
                sc = 0
                for h in (0, 1):
                    sc += len({j[1] for k, j in enumerate(mine) if (mask >> k & 1) == h})
                if best is None or sc < best[0]:
                    best = (sc, mask)
        for k, j in enumerate(mine):
            hh[j[:2]] = best[1] >> k & 1
    bins = [[] for _ in range(32)]
    for j in jobs:
        bins[j[0]].append((j[2], hh[j[:2]], j[3]))
    return bins


SCHED3 = "C5 C5 C5 C5 H5 H5 H5 H5 F5 F5 C3+A3 C3+A3 C3+A3 C3+A3 G4+B4 G4+B4 G4+B4 H3+B4 H3+E3 H3+E3 H3+D3 D4+D3 D4+D3 D4+D3 E4+G3 E4+G3 E4+G3 E4+G3 F3+A4 F3+A4 F3+F3 F3+F3"
SCHED3B = "F6 F6 C5 C5 C5 C5 H5 H5 H5 H5 F5 F5 C3+A3 C3+A3 C3+A3 C3+A3 G4+B4 G4+B4 G4+B4 H3+B4 H3+E3 H3+E3 H3+D3 D4+D3 D4+D3 D4+D3 E4+G3 E4+G3 E4+G3 E4+G3 F3+A4 F3+A4"
Opt.sched = SCHED3


def build(o):
    bins = parse_bins(o.sched)
    o.nqs = tuple(sorted({j[2] for b in bins for j in b}))
    o.nq1s = tuple(sorted({b[0][2] for b in bins}))
    o.nq2s = tuple(sorted({b[1][2] for b in bins if len(b) > 1}))
    o.trans = set()
    for b in bins:
        for k, (s_, hh, nq) in enumerate(b):
            n = (CU[s_ + 1] - CU[s_] + 31) // 32
            o.trans.add((nq, (n - 1) & 1, b[k + 1][2] if k + 1 < len(b) else 0))
    g = Gen(o)
    body = g.kernel(make_table(bins))
    body.append("; sched " + o.sched)
    return HEADER % (LDS_BYTES, KNAME, KNAME, KNAME) + "\n".join(body) + "\n" + FOOTER % KNAME


if __name__ == "__main__":
    o = Opt()
    path = sys.argv[1]
    for a in sys.argv[2:]:
        k, v = a.split("=")
        setattr(o, k, eval(v))
    src = build(o)
    open(path, "w").write(src)
```

```python
import sys, struct, math
from isa import I, check
from lsched import schedule

KNAME = "standalone__varlen_attn_packed__ragged_kernel"
CU = [0, 580, 1085, 2082, 2797, 3498, 4341, 5079, 6042]

R = 8
SLOT = 16640
WREG = 4160
K1OFF, V0OFF, V1OFF = 1056, 2080, 3136
FLAG = R * SLOT
STAGE = FLAG + 1280
TRACE = STAGE + 16384
LDS_BYTES = TRACE + 1024

vKa, vVa, vo0, vo1, vR, vOst, vQd, vPub, vChk, vOne, vFlag, vBad = range(1, 13)
vT1, vT2, vT3 = 13, 14, 15
vMask = 16
vS = 24
vP = 40
vL = 48
vT5 = 54
vW = 56
vO = 64
vT4 = 64
aK = 0
aV = 64
aOnes = 128
aL = 132
aQ = 160
sA, sB, sO_ = 4, 8, 12
sQp, sKp, sVp, sQp2 = 16, 18, 20, 22
sSoff, sStride, sCnt, sQoff = 24, 25, 26, 27
sWb, sMlim, sRc, sDelta, sLoop, sThr, sPos, sNeg = 28, 29, 30, 31, 32, 33, 34, 35
sJ1, sJ2 = 36, 41
sC = 46
sN, sM = 52, 62
sW, sNext, sCc, sTmp, sT2, sT3 = 72, 73, 74, 76, 77, 78
sTab, sTd = 80, 84
sSts = list(range(80, 92))
LEAD = 4
SCALE = math.log2(math.e) / math.sqrt(128.0)
SCALE_BITS = struct.unpack("<I", struct.pack("<f", SCALE))[0]
LO_BITS = (127 - 40) << 23
HI_BITS = (127 + 40) << 23


class Opt:
    ntkv = ""
    nto = "sc1"
    ones = {3: 3, 4: 2, 5: 2, 6: 2}
    codepf = True
    stbias = 300
    fpos = {3: 9, 4: 9, 5: 9, 6: 9}
    a0, dq, dkv = 700, 800, 300
    s1at = 1400
    ppos = {3: 2, 4: 8, 5: 8, 6: 8}
    s2at = 2200
    hlead = 3
    stamp = False
    trace = False
    padto = 0
    padat = 0


def vr(b, n=1):
    return "v%d" % b if n == 1 else "v[%d:%d]" % (b, b + n - 1)


def ar(b, n=1):
    return "a%d" % b if n == 1 else "a[%d:%d]" % (b, b + n - 1)


def sr(b, n=1):
    return "s%d" % b if n == 1 else "s[%d:%d]" % (b, b + n - 1)


def qreg(nq, i, ks):
    if nq <= 4:
        return "v", 192 + 16 * i + 4 * ks
    free = (256 - (vO + 32 * nq)) // 16
    if i < free:
        return "v", vO + 32 * nq + 16 * i + 4 * ks
    return "a", aQ + 16 * (i - free) + 4 * ks


def qop(nq, i, ks):
    f, b = qreg(nq, i, ks)
    return vr(b, 4) if f == "v" else ar(b, 4)


def ones_blocks(nq, k):
    if k >= nq:
        return list(range(nq))
    if k == 1:
        return [0]
    if k == 2:
        return [0, (nq + 1) // 2]
    return [0] + list(range(nq - k + 1, nq))


def mf(d, a, b, c):
    return I("v_mfma_f32_16x16x32_bf16 %s, %s, %s, %s" % (d, a, b, c))


def qk(nq, i, kbuf, sset, masked):
    out = []
    for b in range(2):
        d = vr(vS + 8 * sset + 4 * b, 4)
        for ks in range(4):
            c = d if ks else (vr(vMask + 4 * b, 4) if masked else "0")
            out.append(mf(d, ar(aK + 32 * kbuf + 16 * b + 4 * ks, 4), qop(nq, i, ks), c))
    return out


def pv(i, vbuf, pset, zero):
    out = []
    for db in range(8):
        d = vr(vO + 32 * i + 4 * db, 4)
        out.append(mf(d, ar(aV + 32 * vbuf + 4 * db, 4), vr(vP + 4 * pset, 4), "0" if zero else d))
    return out


def onesm(slot, pset, zero):
    d = ar(aL + 4 * slot, 4)
    return mf(d, ar(aOnes, 4), vr(vP + 4 * pset, 4), "0" if zero else d)


def EXP(sset, j):
    r = vS + 8 * sset + j
    return I("v_exp_f32 v%d, v%d" % (r, r))


def CVT(sset, j):
    r = vS + 8 * sset + 2 * j
    return I("v_cvt_pk_bf16_f32 v%d, v%d, v%d" % (vP + 4 * sset + j, r, r + 1))


def kread(buf, b, ks):
    return I("ds_read_b128 %s, v%d offset:%d" % (ar(aK + 32 * buf + 16 * b + 4 * ks, 4), vKa, b * 512 + ks * 64))


def vread(buf, db, jj):
    return I("ds_read_b64_tr_b16 %s, v%d offset:%d" % (ar(aV + 32 * buf + 4 * db + 2 * jj, 2), vVa, jj * 512 + 32 * db))


def kvreads(buf):
    return [kread(buf, b, ks) for b in range(2) for ks in range(4)] + [vread(buf, db, jj) for db in range(8) for jj in range(2)]


def dmas(o, soff=sSoff):
    p = (" " + o.ntkv) if o.ntkv else ""
    return [I("buffer_load_dwordx4 v%d, %s, s%d offen%s lds" % (vo0, sr(sA, 4), soff, p)),
            I("buffer_load_dwordx4 v%d, %s, s%d offen offset:%d%s lds" % (vo1, sr(sA, 4), soff, K1OFF, p)),
            I("buffer_load_dwordx4 v%d, %s, s%d offen offset:%d%s lds" % (vo0, sr(sB, 4), soff, V0OFF, p)),
            I("buffer_load_dwordx4 v%d, %s, s%d offen offset:%d%s lds" % (vo1, sr(sB, 4), soff, V1OFF, p))]


def m0_adv():
    return [I("s_add_u32 m0, m0, s%d" % sPos), I("s_cmp_eq_u32 m0, s%d" % sMlim), I("s_cselect_b32 m0, s%d, m0" % sWb)]


def item_adv():
    t = ["s_add_u32 s%d, s%d, s%d" % (sSoff, sSoff, sStride), "s_sub_u32 s%d, s%d, 1" % (sCnt, sCnt),
         "s_cmov_b64 %s, %s" % (sr(sA, 2), sr(sN, 2)), "s_cmov_b64 %s, %s" % (sr(sB, 2), sr(sN + 2, 2)),
         "s_cmov_b64 %s, %s" % (sr(sSoff, 2), sr(sN + 4, 2)), "s_cmov_b32 s%d, s%d" % (sA + 2, sN + 6),
         "s_cmov_b32 s%d, s%d" % (sB + 2, sN + 7), "s_cmov_b32 s%d, s%d" % (sCnt, sN + 8)]
    for j in range(4):
        t.append("s_cmov_b64 %s, %s" % (sr(sN + 2 * j, 2), sr(sM + 2 * j, 2)))
    t += ["s_cmov_b32 s%d, s%d" % (sN + 8, sM + 8), "s_cmov_b64 %s, 0" % sr(sM + 6, 2), "s_cmov_b32 s%d, 0x7fffffff" % (sM + 8)]
    return [I(x) for x in t]


def ring_adv_s():
    return [I("s_sub_u32 s%d, s%d, 1" % (sRc, sRc)),
            I("s_cselect_b32 s%d, s%d, s%d" % (sDelta, sNeg, sPos)),
            I("s_cselect_b32 s%d, %d, s%d" % (sRc, R - 1, sRc))]


def ring_adv():
    return ring_adv_s() + [I("v_add_u32 v%d, s%d, v%d" % (vKa, sDelta, vKa)), I("v_add_u32 v%d, s%d, v%d" % (vVa, sDelta, vVa))]


class Gen:
    def __init__(self, o):
        self.o = o
        self.stubs = []
        self.nlab = 0

    def lab(self, p):
        self.nlab += 1
        return "L_%s_%d" % (p, self.nlab)

    def issue_item(self):
        return dmas(self.o) + m0_adv() + item_adv()[:2]

    def spin(self):
        spin, ret = self.lab("spin"), self.lab("spinret")
        self.stubs += [I(spin + ":"), I("ds_read_b32 v%d, v%d" % (vFlag, vChk)), I("s_waitcnt lgkmcnt(0)"),
                       I("v_cmp_gt_u32 vcc, s%d, v%d" % (sThr, vFlag)), I("s_nop 4"),
                       I("s_cbranch_vccnz " + spin), I("s_branch " + ret)]
        return I("s_cbranch_vccnz " + spin, tag=ret)

    def body(self, nq, par, first=False, entry=False, tail=None, vmextra=0):
        o = self.o
        ob = ones_blocks(nq, o.ones[nq])
        addb = [i for i in range(nq) if i not in ob]
        flags = entry or par == 1
        sset = lambda t, i: ((par ^ t) * nq + i) & 1
        gaps, vstart, flex = [], [], []

        def gap(m, E=None, fixed=None):
            gaps.append(dict(m=m, E=E, fixed=fixed or [], scal=[], flex=[]))
            return len(gaps) - 1

        lcount = {}

        def ADD(i, ss, j):
            n = lcount.get(i, 0)
            lcount[i] = n + 1
            l = vL + 2 * addb.index(i) + (n & 1)
            r = vS + 8 * ss + j
            if first and n < 2:
                return I("v_mov_b32 v%d, v%d" % (l, r))
            return I("v_add_f32 v%d, v%d, v%d" % (l, l, r))

        adds = []
        for v in range(nq):
            vstart.append(len(gaps))
            nxt_t, nxt_i = (0, v + 1) if v < nq - 1 else (1, 0)
            sc, sn = sset(0, v), sset(nxt_t, nxt_i)
            qm = qk(nq, nxt_i, par ^ nxt_t, sn, first and nxt_t == 0)
            pm = pv(v, par, sc, first)
            for g in range(16):
                m = qm[g] if g < 8 else pm[g - 8]
                E, fixed = None, []
                if g in (1, 3, 5):
                    E = (v, sc, 5 + g // 2)
                elif g in (7, 9, 11, 13, 15):
                    E = (nxt_i if nxt_t == 0 else -1, sn, (g - 7) // 2)
                if g in (2, 6):
                    fixed = [CVT(sc, 2 + g // 4)]
                if g in (10, 14):
                    fixed = [CVT(sn, (g - 10) // 4)]
                gi = gap(m, EXP(E[1], E[2]) if E else None, fixed)
                if E and E[0] in addb:
                    adds.append((E[0], gi, E[1], E[2]))
            if v in ob:
                gap(onesm(ob.index(v), sc, first))
        ng = len(gaps)
        vstart.append(ng)
        for (i, gi, ss, j) in adds:
            dl = ng - 1
            if i + 1 < nq:
                dl = vstart[i + 1] - 1 + (4 if j >= 4 else 0)
            flex.append([gi + 1, dl, 1, 5, ("add", i, ss, j)])
        kdl = vstart[nq - 1] - 5
        vdl = ng - 9
        for x in kvreads(par ^ 1):
            flex.append([0, kdl, 1, 1, x] if x.op == "ds_read_b128" else [0, vdl, 1, 2, x])
        ddl = max(ng // 2 - 4, 6)
        for d in dmas(o):
            flex.append([0, ddl, 2, 0, d])
        pend = sorted(flex, key=lambda f: (f[1], f[3]))
        slotgaps = [i for i, g in enumerate(gaps) if g["E"] is None]

        def remaining_cap(gi, upto):
            return sum(2 - len(gaps[x]["fixed"]) for x in slotgaps if gi <= x <= upto)

        bonus = set()
        ov = sum(f[2] for f in flex if f[1] <= vdl) + (3 if flags else 0) - remaining_cap(0, vdl)
        cand = [x for x in slotgaps if x <= vdl]
        for j in range(max(0, ov)):
            bonus.add(cand[(j * len(cand)) // ov] if ov <= len(cand) else cand[j % len(cand)])
        nk = nv = nd = 0
        ddone = None
        for gi in range(ng):
            g = gaps[gi]
            cap = 0 if g["E"] is not None else 2 - len(g["fixed"]) + (1 if gi in bonus else 0)
            while True:
                ready = [f for f in pend if f[0] <= gi]
                pick = next((f for f in ready if f[2] <= cap), None)
                forced = [f for f in ready if f[1] <= gi]
                if pick is None and forced:
                    pick = forced[0]
                if pick is None:
                    break
                if pick[2] == 1 and cap >= 2:
                    two = [f for f in ready if f[2] == 2]
                    urgent = [f for f in pend if f[2] == 1 and f[1] < two[0][1]] if two else []
                    if two and (not urgent or remaining_cap(gi + 1, urgent[-1][1]) + sum(1 for x in bonus if gi < x <= urgent[-1][1]) >= len(urgent)):
                        pick = two[0]
                pend.remove(pick)
                cap -= pick[2]
                ins = pick[4]
                if isinstance(ins, tuple):
                    ins = ADD(ins[1], ins[2], ins[3])
                g["flex"].append(ins)
                if ins.op == "ds_read_b128":
                    nk += 1
                    if nk == 8:
                        pend.append([gi + 1, ng - 1, 1, 6, I("v_add_u32 v%d, s%d, v%d" % (vKa, sDelta, vKa))])
                elif ins.op == "ds_read_b64_tr_b16":
                    nv += 1
                    if nv == 16:
                        pend.append([gi + 1, ng - 1, 1, 6, I("v_add_u32 v%d, s%d, v%d" % (vVa, sDelta, vVa))])
                elif ins.kind == "dma":
                    nd += 1
                    if nd == 4:
                        ddone = gi
                        if flags:
                            pg = max(gi + 2, ng // 2 - o.ppos[nq])
                            assert pg + 2 < ng - o.fpos[nq] - 3
                            pend.append([pg, pg + 4, 1, 0, I("ds_add_u32 v%d, v%d" % (vPub, vOne))])
                            pend.append([ng - o.fpos[nq] - 3, ng - o.fpos[nq], 1, 0, I("ds_read_b32 v%d, v%d" % (vFlag, vChk))])
                pend.sort(key=lambda f: (f[1], f[3]))
        assert not pend, pend
        sgaps = [i for i, g in enumerate(gaps) if not any(f.kind == "dma" for f in g["flex"])]
        used = set()

        def put(chain, lo, hi=None):
            gi = lo - 1
            for ins in chain:
                gi = min(x for x in sgaps if x > gi and x not in used)
                used.add(gi)
                gaps[gi]["scal"].append(ins)
            assert hi is None or gi <= hi, (gi, hi, chain)
            return gi

        def ds_after(pos, pred):
            seq = [f for x in range(pos) for f in gaps[x]["flex"] if f.kind == "ds"]
            return min(15, len(seq) - 1 - max(i for i, f in enumerate(seq) if pred(f)))

        find = lambda op: [x for x in range(ng) for f in gaps[x]["flex"] if f.op == op]
        kw = vstart[nq - 1] - 1
        put([I("s_waitcnt lgkmcnt(%d)" % ds_after(kw, lambda f: f.op == "ds_read_b128"))], kw, kw)
        put([I("s_waitcnt lgkmcnt(0)")], ng - 3, ng - 3)
        if flags:
            pubg = find("ds_add_u32")[0]
            assert pubg - 1 > ddone
            put([I("s_waitcnt vmcnt(%d)" % (4 * (LEAD - 1) + vmextra))], pubg - 1, pubg)
            wg = find("ds_read_b32")[0] + 5
            wg = put([I("s_waitcnt lgkmcnt(%d)" % ds_after(wg, lambda f: f.op == "ds_read_b32"))], wg, wg + 1)
            cg = min((x for x in range(wg, ng - 3) if gaps[x]["E"] is None),
                     key=lambda x: (len(gaps[x]["flex"]) + len(gaps[x]["fixed"]) >= 2, x))
            gaps[cg]["flex"].append(I("v_cmp_gt_u32 vcc, s%d, v%d" % (sThr, vFlag)))
            put([self.spin()], ng - 1, ng - 1)
        p = put(ring_adv_s(), 0, min(find("v_add_u32")) - 1)
        if flags:
            p = put([I("s_add_u32 s%d, s%d, 1" % (sThr, sThr))], p + 1, cg - 1)
        p = put(m0_adv(), max(p, ddone) + 1)
        p = put(item_adv()[:2] if entry else item_adv(), p + 1)
        tail = tail or []
        if tail:
            put(tail[:1], p + 1)
            tail = tail[1:]
        out = []
        over = 0
        for gi, g in enumerate(gaps):
            out.append(g["m"])
            for x in g["scal"]:
                out.append(x)
                if x.kind == "branch" and x.tag:
                    out.append(I(x.tag + ":"))
            out += [f for f in g["flex"] if f.kind in ("ds", "dma")]
            if g["E"] is not None:
                out.append(g["E"])
            out += g["fixed"] + [f for f in g["flex"] if f.kind not in ("ds", "dma")]
            c = sum(2 if f.kind == "dma" else 1 for f in g["flex"]) + len(g["fixed"]) + (2 if g["E"] is not None else 0)
            over += max(0, c - 2)
        out += tail
        if entry:
            out += self.issue_item()
        sys.stderr.write("body nq=%d par=%d first=%d entry=%d gaps=%d overflow=%d\n" % (nq, par, first, entry, ng, over))
        return check(out, fix=True, name="body")

    def masks(self):
        out = [I("v_mbcnt_lo_u32_b32 v%d, -1, 0" % vT1), I("v_mbcnt_hi_u32_b32 v%d, -1, v%d" % (vT1, vT1)),
               I("v_lshrrev_b32 v%d, 2, v%d" % (vT1, vT1)), I("v_and_b32 v%d, 12, v%d" % (vT1, vT1)),
               I("v_subrev_u32 v%d, s%d, v%d" % (vT1, sC + 4, vT1)),
               I("v_mov_b32 v0, 0xff800000")]
        for j in range(8):
            out += [I("v_add_u32 v%d, %d, v%d" % (vMask + j, (j & 3) + 16 * (j >> 2), vT1)),
                    I("v_ashrrev_i32 v%d, 31, v%d" % (vMask + j, vMask + j)),
                    I("v_bfi_b32 v%d, v%d, 0, v0" % (vMask + j, vMask + j))]
        return out

    def p_softmax(self, nq, i, ss, js, first, lcount):
        ob = ones_blocks(nq, self.o.ones[nq])
        addb = [x for x in range(nq) if x not in ob]
        out = []
        for j in js:
            out.append(EXP(ss, j))
            if i in addb:
                n = lcount.get(i, 0)
                lcount[i] = n + 1
                l = vL + 2 * addb.index(i) + (n & 1)
                r = vS + 8 * ss + j
                out.append(I("v_mov_b32 v%d, v%d" % (l, r)) if first and n < 2 else I("v_add_f32 v%d, v%d, v%d" % (l, l, r)))
            if j & 1:
                out.append(CVT(ss, j >> 1))
        return out

    def p_epi(self, nq, i):
        o = self.o
        ob = ones_blocks(nq, o.ones[nq])
        addb = [x for x in range(nq) if x not in ob]
        out = []
        A = lambda t: out.append(I(t))
        if i in ob:
            r = vMask + 2 * ob.index(i)
            A("v_accvgpr_read_b32 v%d, a%d" % (r, aL + 4 * ob.index(i)))
        else:
            r = vL + 2 * addb.index(i)
            A("v_add_f32 v%d, v%d, v%d" % (r, r, r + 1))
            for sw in ("v_permlane16_swap_b32", "v_permlane32_swap_b32"):
                A("v_mov_b32 v%d, v%d" % (r + 1, r))
                A("%s v%d, v%d" % (sw, r, r + 1))
                A("v_add_f32 v%d, v%d, v%d" % (r, r, r + 1))
        A("v_subrev_u32 v%d, 0x%x, v%d" % (vT1, LO_BITS, r))
        A("v_rcp_f32 v%d, v%d" % (r, r))
        A("v_max_u32 v%d, v%d, v%d" % (vBad, vBad, vT1))
        p = (" " + o.nto) if o.nto else ""
        b0 = vO + 32 * i
        for d4 in range(4):
            for db in (d4, d4 + 4):
                b = b0 + 4 * db
                for j in range(2):
                    A("v_pk_mul_f32 %s, %s, %s op_sel_hi:[1,0]" % (vr(b + 2 * j, 2), vr(b + 2 * j, 2), vr(r, 2)))
                    out[-1].reads.discard(("v", r + 1))
                for j in range(2):
                    A("v_cvt_pk_bf16_f32 v%d, v%d, v%d" % (b + j, b + 2 * j, b + 2 * j + 1))
            A("ds_write2st64_b64 v%d, %s, %s offset1:4" % (vW + d4, vr(b0 + 4 * d4, 2), vr(b0 + 4 * d4 + 16, 2)))
            out[-1].mw = ["stage%d" % d4]
        for k in range(4):
            A("ds_read_b128 %s, v%d offset:%d" % (vr(b0 + 8 * k, 4), vR, 1024 * k))
            out[-1].mr = ["stage%d" % x for x in range(4)]
        for k in range(4):
            A("buffer_store_dwordx4 %s, v%d, %s, s%d offen offset:%d%s" % (vr(b0 + 8 * k, 4), vOst, sr(sO_, 4), sSts[2 * i + (k & 1)], 128 * (k >> 1), p))
            out[-1].bias = o.stbias + 64 * (4 * (nq - 1 - i) + 3 - k)
        return out

    def p_last(self, nq, par, issue):
        ob = ones_blocks(nq, self.o.ones[nq])
        sset = lambda i: (par * nq + i) & 1
        out = [I("s_mov_b32 s%d, s%d" % (sO_ + 2, sC + 1))]
        for i in range(nq):
            for e in range(2):
                out.append(I("s_add_u32 s%d, s%d, %d" % (sSts[2 * i + e], sC, (64 * i + 8 * e) * 4096)))
        out += issue
        lc = {}
        for v in range(nq):
            if v < nq - 1:
                out += qk(nq, v + 1, par, sset(v + 1), False)
            out += self.p_softmax(nq, v, sset(v), (5, 6, 7), False, lc)
            out += pv(v, par, sset(v), False)
            if v in ob:
                out.append(onesm(ob.index(v), sset(v), False))
            if v < nq - 1:
                out += self.p_softmax(nq, v + 1, sset(v + 1), (0, 1, 2, 3, 4), False, lc)
            out += self.p_epi(nq, v)
        return out

    def p_sync(self, vm, wait_ds, start):
        w = I("s_waitcnt vmcnt(0)")
        w.vm = vm
        w.start = start
        pub = I("ds_add_u32 v%d, v%d" % (vPub, vOne))
        pub.after = [w]
        pub.wait_ds = wait_ds
        pub.mw = ["flag"]
        pub.bias = 300
        thr = I("s_add_u32 s%d, s%d, 1" % (sThr, sThr))
        rd = I("ds_read_b32 v%d, v%d" % (vFlag, vChk))
        rd.mr = ["flag"]
        rd.start = start + 260
        cmp_ = I("v_cmp_gt_u32 vcc, s%d, v%d" % (sThr, vFlag))
        br = self.spin()
        br.reads |= {("s", sThr), ("v", vFlag)}
        br.writes |= {("v", vFlag), ("s", "vcc")}
        return [w, pub, thr, rd, cmp_, br]

    def p_prescale(self, nq, i, raw, temps):
        out = []
        for ks in range(4):
            f, dst = qreg(nq, i, ks)
            for j in range(4):
                x = raw + 4 * ks + j
                t = temps[j % len(temps)]
                out += [I("v_lshlrev_b32 v%d, 16, v%d" % (t, x)), I("v_and_b32 v%d, 0xffff0000, v%d" % (t + 1, x)),
                        I("v_pk_mul_f32 %s, %s, %s" % (vr(t, 2), vr(t, 2), sr(sCc, 2)))]
                if f == "v":
                    out.append(I("v_cvt_pk_bf16_f32 v%d, v%d, v%d" % (dst + j, t, t + 1)))
                else:
                    out += [I("v_cvt_pk_bf16_f32 v%d, v%d, v%d" % (t, t, t + 1)), I("v_accvgpr_write_b32 a%d, v%d" % (dst + j, t))]
        return out

    def t_final(self, nq, par):
        out, t = schedule(self.p_last(nq, par, []), name="final nq=%d par=%d" % (nq, par))
        out.append(I("s_waitcnt vmcnt(%d)" % sum(1 for x in out if x.kind == "vmem")))
        return out

    def t_mid(self, nq1, par, nq):
        assert nq <= LEAD
        lastissue = self.issue_item()
        s1 = self.p_sync(4 * (LEAD - nq), [], self.o.s1at)
        prog = []
        for i in range(nq):
            prog.append(I("v_add_u32 v%d, v%d, v%d" % (vMask + 1 + 2 * i, vKa, vQd)))
            prog += ring_adv()
        prog += s1
        last = self.p_last(nq1, par, lastissue)
        js, reads = [], []
        for i in range(nq):
            reads += [I("ds_read_b128 %s, v%d offset:%d" % (qop(nq, i, ks), vMask + 1 + 2 * i, 64 * ks)) for ks in range(4)]
        reads += kvreads(0)
        js += reads + ring_adv()
        for x in reads:
            x.after = [s1[-1]]
        for j in range(min(nq - 1, 2)):
            it = self.issue_item()
            it[0].after = [s1[-1]]
            js += it
        s2 = self.p_sync(lastissue[:4] if nq == LEAD else 4 * (LEAD - nq - 1), reads, 0)
        s2[0].after = list(reads)
        s2[0].start = self.o.s2at
        for x in js + lastissue:
            if x.kind == "dma":
                x.bias = 2000
        js += s2[:3]
        for i in range(nq):
            js += self.p_prescale(nq, i, qreg(nq, i, 0)[1], (vT2, vT5))
        js += self.set_compute(sJ2) + [I("s_mov_b32 s%d, 0" % sNext)]
        js += self.masks()
        js += qk(nq, 0, 0, 0, True)
        js += self.p_softmax(nq, 0, 0, (0, 1, 2, 3, 4), True, {})
        js += [I("s_sub_u32 s%d, s%d, 3" % (sLoop, sC + 3))]
        s2[3].after = [[x for x in js if x.op == "v_cvt_pk_bf16_f32"][-12]]
        js += s2[3:]
        for j in range(2, nq - 1):
            it = self.issue_item()
            it[0].after = [s2[-1]]
            js += it
        out, t = schedule(prog + last + js, name="mid %d(par %d)->%d" % (nq1, par, nq))
        return out

    def srd_kv(self):
        return [I("s_mov_b64 %s, %s" % (sr(sA, 2), sr(sKp, 2))), I("s_mov_b64 %s, %s" % (sr(sB, 2), sr(sVp, 2))),
                I("s_add_u32 s%d, s%d, %d" % (sB + 2, sJ1 + 2, V0OFF))]

    def srd_q(self):
        return [I("s_mov_b64 %s, %s" % (sr(sA, 2), sr(sQp, 2))), I("s_mov_b64 %s, %s" % (sr(sB, 2), sr(sQp2, 2))),
                I("s_sub_u32 s%d, s%d, %d" % (sB + 2, sJ1 + 2, 32 * 4096 - V0OFF))]

    def head(self, nq):
        o = self.o
        ob = ones_blocks(nq, o.ones[nq])
        kind = ["q", "kv", "kv"] + ["q"] * (nq - 1) + ["kv"] * 5
        groups = {}
        state = ["q"]

        def issue(k):
            out = []
            if kind[k] != state[0]:
                out += self.srd_q() if kind[k] == "q" else self.srd_kv()
                state[0] = kind[k]
            so = sQoff if kind[k] == "q" else sSoff
            d = dmas(o, so)
            groups[k] = d
            for x in d:
                x.bias = 3000
            return out + d + m0_adv() + [I("s_add_u32 s%d, s%d, %d" % (so, so, 64 * 4096) if kind[k] == "q" else
                                           "s_add_u32 s%d, s%d, s%d" % (so, so, sStride))]

        prog = []
        for k in range(1, o.hlead):
            prog += issue(k)
        prog += self.masks()
        t = o.a0
        prev_reads, prev_bar = [], None
        lc = {}
        work = []
        visit = [0]
        pend = [None]

        def flush_pv():
            if pend[0] is None:
                return []
            i, tile, ss = pend[0]
            pend[0] = None
            out = pv(i, tile, ss, tile == 0)
            if i in ob:
                out.append(onesm(ob.index(i), ss, tile == 0))
            return out

        def do_visit(i, tile):
            ss = (visit[0] + 2 * nq) & 1
            visit[0] += 1
            out = qk(nq, i, tile, ss, tile == 0) + flush_pv()
            out += self.p_softmax(nq, i, ss, range(8), tile == 0, lc)
            pend[0] = (i, tile, ss)
            return out

        qi = 0
        nkv = 0
        for k in range(nq + 4):
            bar = I("s_barrier")
            bar.vm = 0 if k == 0 else groups[k]
            bar.start = t
            bar.after = [prev_bar] if prev_bar else []
            bar.wait_ds = prev_reads
            prog += [bar]
            prev_bar = bar
            t += o.dq if (k + 1 < len(kind) and kind[k + 1] == "q") else o.dkv
            if k + o.hlead <= nq + 6:
                it = issue(k + o.hlead)
                [x for x in it if x.kind == "dma"][0].after = [bar]
                prog += it
            if k == nq + 3:
                break
            if kind[k] == "q":
                f, r0 = qreg(nq, qi, 0)
                raw = r0 if f == "v" else vO + 32 * qi
                rd = [I("ds_read_b128 %s, v%d offset:%d" % (vr(raw + 4 * ks, 4), vT3 + 45, 64 * ks)) for ks in range(4)]
                prog += [I("v_add_u32 v%d, v%d, v%d" % (vT3 + 45, vKa, vQd))] + rd + ring_adv()
                prog += self.p_prescale(nq, qi, raw, (vT2,) if nq > 5 else (vT2, vT5))
                if qi > 0:
                    prog += do_visit(qi, 0) + do_visit(qi, 1)
                qi += 1
            else:
                rd = kvreads(nkv & 1)
                if nkv == 2:
                    prog += rd + ring_adv()
                    prog += qk(nq, 0, 0, 0, False) + flush_pv() + self.p_softmax(nq, 0, 0, range(5), False, lc)
                else:
                    prog += rd + ring_adv() + do_visit(0, nkv)
                nkv += 1
            for x in rd:
                x.after = [bar]
            prev_reads = rd
        prog += [I("s_sub_u32 s%d, s%d, 8" % (sCnt, sJ1 + 4)), I("s_sub_u32 s%d, s%d, 5" % (sLoop, sC + 3))]
        out, t = schedule(prog, name="head nq=%d" % nq)
        if o.stamp == 2:
            res, k = [], 0
            for x in out:
                if x.op == "s_barrier":
                    w = res.pop()
                    res += [I("s_memrealtime s[92:93]"), w, x, I("s_memrealtime s[96:97]"), I("s_waitcnt lgkmcnt(0)"),
                            I("v_writelane_b32 v63, s92, %d" % (8 + 2 * k)), I("v_writelane_b32 v63, s96, %d" % (9 + 2 * k))]
                    k += 1
                else:
                    res.append(x)
            out = res
        return out

    def addr_setup(self):
        t1, t2, t3, ln = vT1, vT2, vT3, vT4
        o = []
        A = lambda s: o.append(I(s))
        A("v_lshrrev_b32 v%d, 6, v0" % t1)
        A("v_and_b32 v%d, 63, v0" % ln)
        A("v_readfirstlane_b32 s%d, v%d" % (sW, t1))
        A("v_lshrrev_b32 v%d, 4, v%d" % (t2, ln))
        A("v_and_b32 v%d, 15, v%d" % (t3, ln))
        A("v_lshlrev_b32 v%d, 13, v%d" % (vo0, t1))
        A("v_lshl_add_u32 v%d, v%d, 15, v%d" % (vo0, t2, vo0))
        A("v_lshl_add_u32 v%d, v%d, 4, v%d" % (vo0, t3, vo0))
        A("v_add_u32 v%d, %d, v%d" % (vo1, 4096 - K1OFF, vo0))
        A("v_lshrrev_b32 v%d, 3, v%d" % (vR, ln))
        A("v_lshl_add_u32 v%d, v%d, 4, v%d" % (vOst, t1, vR))
        A("v_lshlrev_b32 v%d, 12, v%d" % (vOst, vOst))
        A("v_and_b32 v%d, 7, v%d" % (vW, ln))
        A("v_lshl_add_u32 v%d, v%d, 4, v%d" % (vOst, vW, vOst))
        A("v_xor_b32 v%d, v%d, v%d" % (vW + 1, vW, vR))
        A("v_lshlrev_b32 v%d, 4, v%d" % (vW + 1, vW + 1))
        A("v_lshl_add_u32 v%d, v%d, 7, v%d" % (vR, vR, vW + 1))
        A("v_lshlrev_b32 v%d, 12, v%d" % (vW + 3, t1))
        A("v_add_u32 v%d, %d, v%d" % (vW + 3, STAGE, vW + 3))
        A("v_add_u32 v%d, v%d, v%d" % (vR, vR, vW + 3))
        A("v_lshrrev_b32 v%d, 1, v%d" % (vW + 1, t2))
        A("v_xor_b32 v%d, v%d, v%d" % (vW, vW, vW + 1))
        A("v_lshlrev_b32 v%d, 4, v%d" % (vW, vW))
        A("v_and_b32 v%d, 1, v%d" % (vW + 1, t2))
        A("v_lshl_add_u32 v%d, v%d, 3, v%d" % (vW, vW + 1, vW))
        A("v_lshl_add_u32 v%d, v%d, 7, v%d" % (vW, t3, vW))
        A("v_add_u32 v%d, v%d, v%d" % (vW, vW, vW + 3))
        A("v_xor_b32 v%d, 32, v%d" % (vW + 1, vW))
        A("v_xor_b32 v%d, 64, v%d" % (vW + 2, vW))
        A("v_xor_b32 v%d, 0x60, v%d" % (vW + 3, vW))
        A("v_bfe_u32 v%d, v%d, 1, 2" % (vKa, ln))
        A("v_mul_u32_u24 v%d, %d, v%d" % (vKa, WREG, vKa))
        A("v_and_b32 v%d, 1, v%d" % (vT4 + 1, ln))
        A("v_mul_u32_u24 v%d, %d, v%d" % (vT4 + 2, K1OFF, vT4 + 1))
        A("v_add_u32 v%d, v%d, v%d" % (vKa, vKa, vT4 + 2))
        A("v_bfe_u32 v%d, v%d, 3, 1" % (vT4 + 2, ln))
        A("v_lshl_add_u32 v%d, v%d, 8, v%d" % (vKa, vT4 + 2, vKa))
        A("v_lshl_add_u32 v%d, v%d, 4, v%d" % (vKa, t2, vKa))
        A("v_lshrrev_b32 v%d, 1, v%d" % (vT4 + 3, t1))
        A("v_mul_u32_u24 v%d, %d, v%d" % (vQd, V0OFF, vT4 + 3))
        A("v_and_b32 v%d, 1, v%d" % (vT4 + 3, t1))
        A("v_lshl_add_u32 v%d, v%d, 9, v%d" % (vQd, vT4 + 3, vQd))
        A("v_bfe_u32 v%d, v%d, 3, 2" % (vVa, ln))
        A("v_mul_u32_u24 v%d, %d, v%d" % (vVa, WREG, vVa))
        A("v_bfe_u32 v%d, v%d, 2, 1" % (vT4 + 2, ln))
        A("v_mul_u32_u24 v%d, %d, v%d" % (vT4 + 2, V1OFF - V0OFF, vT4 + 2))
        A("v_add_u32 v%d, v%d, v%d" % (vVa, vVa, vT4 + 2))
        A("v_lshrrev_b32 v%d, 5, v%d" % (vT4 + 2, ln))
        A("v_lshl_add_u32 v%d, v%d, 8, v%d" % (vVa, vT4 + 2, vVa))
        A("v_and_b32 v%d, 3, v%d" % (vT4 + 2, ln))
        A("v_lshl_add_u32 v%d, v%d, 3, v%d" % (vVa, vT4 + 2, vVa))
        A("v_add_u32 v%d, %d, v%d" % (vVa, V0OFF, vVa))
        A("v_mul_u32_u24 v%d, 260, v%d" % (vChk, vT4 + 2))
        A("v_add_u32 v%d, %d, v%d" % (vChk, FLAG, vChk))
        A("v_lshlrev_b32 v%d, 2, v0" % vPub)
        A("v_add_u32 v%d, %d, v%d" % (vPub, FLAG, vPub))
        A("v_mov_b32 v%d, 1" % vOne)
        return o

    def decode_job(self, d0, d1, dst):
        o = []
        A = lambda s: o.append(I(s))
        A("s_bfe_u32 s%d, s%d, 0x10010" % (sT2, d0))
        A("s_lshl_b32 s%d, s%d, 8" % (sT2, sT2))
        A("s_add_u32 s%d, s%d, s%d" % (sT2, sT2, sTmp))
        A("s_and_b32 s%d, s%d, 0x1fff" % (dst, d0))
        A("s_lshl_b32 s%d, s%d, 12" % (dst, dst))
        A("s_add_u32 s%d, s%d, s%d" % (dst, dst, sT2))
        A("s_lshr_b32 s%d, s%d, 13" % (dst + 2, d1))
        A("s_lshl_b32 s%d, s%d, 12" % (dst + 2, dst + 2))
        p2 = []
        B = lambda s: p2.append(I(s))
        B("s_and_b32 s%d, s%d, 0x1fff" % (dst + 1, d1))
        B("s_lshl_b32 s%d, s%d, 12" % (dst + 1, dst + 1))
        B("s_add_u32 s%d, s%d, s%d" % (dst + 1, dst + 1, sT2))
        B("s_bfe_u32 s%d, s%d, 0x3000d" % (dst + 3, d0))
        B("s_lshr_b32 s%d, s%d, 20" % (dst + 4, d0))
        return o, p2

    def set_compute(self, j):
        o = []
        A = lambda s: o.append(I(s))
        A("s_mov_b32 s%d, s%d" % (sC, j))
        A("s_mov_b32 s%d, s%d" % (sC + 1, j + 2))
        A("s_mov_b32 s%d, s%d" % (sC + 3, j + 4))
        A("s_lshr_b32 s%d, s%d, 12" % (sT2, j + 2))
        A("s_lshr_b32 s%d, s%d, 12" % (sT3, j + 1))
        A("s_sub_u32 s%d, s%d, s%d" % (sT2, sT2, sT3))
        A("s_lshl_b32 s%d, s%d, 5" % (sT3, j + 4))
        A("s_sub_u32 s%d, s%d, s%d" % (sT2, sT2, sT3))
        A("s_add_u32 s%d, s%d, 32" % (sC + 4, sT2))
        return o

    def queue_setup(self):
        o = []
        A = lambda s: o.append(I(s))
        j = sJ2
        A("s_mov_b64 %s, %s" % (sr(sN, 2), sr(sQp, 2)))
        A("s_mov_b64 %s, %s" % (sr(sN + 2, 2), sr(sQp2, 2)))
        A("s_mov_b32 s%d, s%d" % (sN + 4, j))
        A("s_mov_b32 s%d, %d" % (sN + 5, 64 * 4096))
        A("s_mov_b64 %s, %s" % (sr(sM, 2), sr(sKp, 2)))
        A("s_mov_b64 %s, %s" % (sr(sM + 2, 2), sr(sVp, 2)))
        A("s_sub_u32 s%d, s%d, 1" % (sM + 8, j + 4))
        A("s_lshl_b32 s%d, s%d, 17" % (sM + 4, sM + 8))
        A("s_add_u32 s%d, s%d, s%d" % (sM + 4, sM + 4, j + 1))
        A("s_mov_b32 s%d, %d" % (sM + 5, -32 * 4096))
        A("s_mov_b32 s%d, s%d" % (sN + 6, j + 2))
        A("s_sub_u32 s%d, s%d, %d" % (sN + 7, j + 2, 32 * 4096 - V0OFF))
        A("s_sub_u32 s%d, s%d, 1" % (sN + 8, j + 3))
        A("s_mov_b32 s%d, s%d" % (sM + 6, j + 2))
        A("s_add_u32 s%d, s%d, %d" % (sM + 7, j + 2, V0OFF))
        A("s_cmp_eq_u32 s%d, 0" % (j + 3))
        A("s_cmov_b64 %s, 0" % sr(sN + 6, 2))
        A("s_cmov_b32 s%d, 0x7fffffff" % (sN + 8))
        A("s_sub_u32 s%d, s%d, 1" % (sSoff, sJ1 + 4))
        A("s_lshl_b32 s%d, s%d, 17" % (sSoff, sSoff))
        A("s_add_u32 s%d, s%d, s%d" % (sSoff, sSoff, sJ1 + 1))
        A("s_mov_b32 s%d, %d" % (sStride, -32 * 4096))
        return o

    def slow(self):
        o = []
        A = lambda s: o.append(I(s))
        Qf, Kf, Vf, Oa, S, P = 192, 128, 160, 64, vS, vP
        m, l, al, t, u = vL, vL + 1, vL + 2, vL + 3, vL + 4
        vSrc, vG4, vSt = vL + 5, vL + 6, vL + 7
        sJob, sBlk, sTile, sRow, sLeft, sBase, sSt = range(sN, sN + 7)
        sj = sM
        A("L_slow:")
        A("s_waitcnt vmcnt(0)")
        A("v_mbcnt_lo_u32_b32 v0, -1, 0")
        A("v_mbcnt_hi_u32_b32 v0, -1, v0")
        A("v_lshrrev_b32 v%d, 4, v0" % vG4)
        A("v_and_b32 v%d, 15, v0" % t)
        A("v_lshlrev_b32 v%d, 15, v%d" % (vSrc, vG4))
        A("v_lshl_add_u32 v%d, v%d, 4, v%d" % (vSrc, t, vSrc))
        A("v_lshlrev_b32 v%d, 2, v%d" % (vG4, vG4))
        A("s_lshl_b32 s%d, s%d, 6" % (sT2, sW))
        A("v_add_u32 v0, s%d, v0" % sT2)
        o += self.addr_setup()
        A("v_lshl_add_u32 v%d, v%d, 4, v%d" % (vOst, vT1, vT3))
        A("v_lshlrev_b32 v%d, 12, v%d" % (vOst, vOst))
        A("v_lshl_add_u32 v%d, v%d, 3, v%d" % (vSt, vT2, vOst))
        A("v_lshl_add_u32 v%d, v%d, 4, v%d" % (vOst, vT2, vOst))
        A("s_mul_i32 s%d, s%d, %d" % (sBase, sW, SLOT))
        A("v_add_u32 v%d, s%d, v%d" % (vKa, sBase, vKa))
        A("v_add_u32 v%d, s%d, v%d" % (vVa, sBase, vVa))
        A("s_mov_b32 s%d, 0" % sJob)
        for j in range(5):
            A("s_mov_b32 s%d, s%d" % (sj + j, sJ1 + j))
        A("L_slow_job:")
        A("s_mov_b32 s%d, 0" % sBlk)
        A("L_slow_blk:")
        A("s_mov_b64 %s, %s" % (sr(sA, 2), sr(sQp, 2)))
        A("s_mov_b32 s%d, s%d" % (sA + 2, sj + 2))
        A("s_lshl_b32 s%d, s%d, 18" % (sSt, sBlk))
        A("s_add_u32 s%d, s%d, s%d" % (sSt, sSt, sj))
        for ks in range(4):
            A("buffer_load_dwordx4 %s, v%d, %s, s%d offen offset:%d" % (vr(Kf + 4 * ks, 4), vOst, sr(sA, 4), sSt, 64 * ks))
        A("s_waitcnt vmcnt(0)")
        for j in range(16):
            A("v_lshlrev_b32 v%d, 16, v%d" % (t, Kf + j))
            A("v_and_b32 v%d, 0xffff0000, v%d" % (u, Kf + j))
            A("v_mul_f32 v%d, s%d, v%d" % (t, sCc, t))
            A("v_mul_f32 v%d, s%d, v%d" % (u, sCc, u))
            A("v_cvt_pk_bf16_f32 v%d, v%d, v%d" % (Qf + j, t, u))
        for j in range(32):
            A("v_mov_b32 v%d, 0" % (Oa + j))
        A("v_mov_b32 v%d, 0xff800000" % m)
        A("v_mov_b32 v%d, 0" % l)
        A("s_mov_b64 %s, %s" % (sr(sA, 2), sr(sKp, 2)))
        A("s_mov_b64 %s, %s" % (sr(sB, 2), sr(sVp, 2)))
        A("s_add_u32 s%d, s%d, %d" % (sB + 2, sj + 2, V0OFF))
        A("s_mov_b32 s%d, s%d" % (sRow, sj + 1))
        A("s_lshr_b32 s%d, s%d, 12" % (sLeft, sj + 2))
        A("s_lshr_b32 s%d, s%d, 12" % (sT2, sj + 1))
        A("s_sub_u32 s%d, s%d, s%d" % (sLeft, sLeft, sT2))
        A("s_mov_b32 s%d, s%d" % (sTile, sj + 4))
        A("L_slow_tile:")
        for sg in range(8):
            A("s_add_u32 s%d, s%d, %d" % (sT2, sRow, sg * 4096))
            A("s_add_u32 m0, s%d, %d" % (sBase, (sg >> 1) * WREG + (sg & 1) * K1OFF))
            A("buffer_load_dwordx4 v%d, %s, s%d offen lds" % (vSrc, sr(sA, 4), sT2))
            A("buffer_load_dwordx4 v%d, %s, s%d offen offset:%d lds" % (vSrc, sr(sB, 4), sT2, V0OFF))
        A("s_waitcnt vmcnt(0)")
        for b in range(2):
            for ks in range(4):
                A("ds_read_b128 %s, v%d offset:%d" % (vr(Kf + 16 * b + 4 * ks, 4), vKa, b * 512 + ks * 64))
        A("s_waitcnt lgkmcnt(0)")
        for db in range(8):
            for jj in range(2):
                A("ds_read_b64_tr_b16 %s, v%d offset:%d" % (vr(Vf + 4 * db + 2 * jj, 2), vVa, jj * 512 + 32 * db))
        for b in range(2):
            for ks in range(4):
                d = vr(S + 4 * b, 4)
                o.append(mf(d, vr(Kf + 16 * b + 4 * ks, 4), vr(Qf + 4 * ks, 4), d if ks else "0"))
        A("v_mov_b32 v%d, 0xff800000" % u)
        for j in range(8):
            A("v_add_u32 v%d, %d, v%d" % (t, (j & 3) + 16 * (j >> 2), vG4))
            A("v_cmp_gt_u32 vcc, s%d, v%d" % (sLeft, t))
            A("v_cndmask_b32 v%d, v%d, v%d, vcc" % (S + j, u, S + j))
        A("v_max3_f32 v%d, v%d, v%d, v%d" % (t, S, S + 1, S + 2))
        A("v_max3_f32 v%d, v%d, v%d, v%d" % (t, t, S + 3, S + 4))
        A("v_max3_f32 v%d, v%d, v%d, v%d" % (t, t, S + 5, S + 6))
        A("v_max3_f32 v%d, v%d, v%d, v%d" % (t, t, S + 7, m))
        for sw in ("v_permlane16_swap_b32", "v_permlane32_swap_b32"):
            A("v_mov_b32 v%d, v%d" % (u, t))
            A("%s v%d, v%d" % (sw, t, u))
            A("v_max_f32 v%d, v%d, v%d" % (t, t, u))
        A("v_sub_f32 v%d, v%d, v%d" % (al, m, t))
        A("v_exp_f32 v%d, v%d" % (al, al))
        A("v_mov_b32 v%d, v%d" % (m, t))
        for j in range(8):
            A("v_sub_f32 v%d, v%d, v%d" % (S + j, S + j, m))
        for j in range(8):
            A("v_exp_f32 v%d, v%d" % (S + j, S + j))
        A("v_mul_f32 v%d, v%d, v%d" % (l, l, al))
        for j in range(8):
            A("v_add_f32 v%d, v%d, v%d" % (l, l, S + j))
        for j in range(4):
            A("v_cvt_pk_bf16_f32 v%d, v%d, v%d" % (P + j, S + 2 * j, S + 2 * j + 1))
        for j in range(32):
            A("v_mul_f32 v%d, v%d, v%d" % (Oa + j, Oa + j, al))
        A("s_waitcnt lgkmcnt(0)")
        for db in range(8):
            d = vr(Oa + 4 * db, 4)
            o.append(mf(d, vr(Vf + 4 * db, 4), vr(P, 4), d))
        A("s_add_u32 s%d, s%d, %d" % (sRow, sRow, 32 * 4096))
        A("s_sub_u32 s%d, s%d, 32" % (sLeft, sLeft))
        A("s_nop 7")
        A("s_sub_u32 s%d, s%d, 1" % (sTile, sTile))
        A("s_cmp_lg_u32 s%d, 0" % sTile)
        A("s_cbranch_scc1 L_slow_tile")
        for sw in ("v_permlane16_swap_b32", "v_permlane32_swap_b32"):
            A("v_mov_b32 v%d, v%d" % (u, l))
            A("%s v%d, v%d" % (sw, l, u))
            A("v_add_f32 v%d, v%d, v%d" % (l, l, u))
        A("v_rcp_f32 v%d, v%d" % (l, l))
        A("s_mov_b32 s%d, s%d" % (sO_ + 2, sj + 2))
        for j in range(32):
            A("v_mul_f32 v%d, v%d, v%d" % (Oa + j, Oa + j, l))
        for db in range(8):
            b = Oa + 4 * db
            for j in range(2):
                A("v_cvt_pk_bf16_f32 v%d, v%d, v%d" % (b + j, b + 2 * j, b + 2 * j + 1))
            A("buffer_store_dwordx2 %s, v%d, %s, s%d offen offset:%d" % (vr(b, 2), vSt, sr(sO_, 4), sSt, 32 * db))
        A("s_waitcnt vmcnt(0)")
        A("s_add_u32 s%d, s%d, 1" % (sBlk, sBlk))
        A("s_cmp_lt_u32 s%d, s%d" % (sBlk, sj + 3))
        A("s_cbranch_scc1 L_slow_blk")
        A("s_cmp_lg_u32 s%d, 0" % sJob)
        A("s_cbranch_scc1 L_end")
        A("s_mov_b32 s%d, 1" % sJob)
        for j in range(5):
            A("s_mov_b32 s%d, s%d" % (sj + j, sJ2 + j))
        A("s_cmp_lg_u32 s%d, 0" % (sj + 3))
        A("s_cbranch_scc1 L_slow_job")
        A("s_branch L_end")
        return check(o, fix=True, name="slow")

    def padmark(self, idx):
        return [I("s_memrealtime s[98:99]")] if self.o.padto and self.o.padat == idx else []

    def stamp(self, idx):
        if not self.o.stamp:
            return self.padmark(idx) if idx else []
        return [I("s_memtime s[94:95]"), I("s_memrealtime s[96:97]"), I("s_waitcnt lgkmcnt(0)"),
                I("v_writelane_b32 v62, s94, %d" % idx), I("v_writelane_b32 v63, s96, %d" % idx)]

    def kernel(self, table):
        o = self.o
        out = []
        A = lambda s: out.append(I(s))
        A("s_cmp_ge_u32 s2, 256")
        A("s_cbranch_scc1 L_end")
        out += self.stamp(0)
        out += self.padmark(0)
        A("s_load_dwordx4 %s, s[0:1], 0" % sr(sQp, 4))
        A("s_load_dwordx2 %s, s[0:1], 16" % sr(sVp, 2))
        A("s_load_dwordx2 %s, s[0:1], 32" % sr(sO_, 2))
        A("s_getpc_b64 %s" % sr(sTab, 2))
        A("L_pc:")
        A("s_lshr_b32 s%d, s2, 3" % sTmp)
        if o.codepf:
            A("s_mul_i32 s%d, s%d, 3072" % (sT2, sTmp))
            A("v_min_u32 v%d, 23, v0" % vT4)
            A("v_lshl_add_u32 v%d, v%d, 7, s%d" % (vT4, vT4, sT2))
            A("v_min_u32 v%d, L_slow-L_pc-8, v%d" % (vT4, vT4))
            A("global_load_dword v%d, v%d, %s" % (vT4 + 4, vT4, sr(sTab, 2)))
        A("s_lshl_b32 s%d, s%d, 4" % (sTmp, sTmp))
        A("s_add_u32 s%d, s%d, L_table-L_pc" % (sTmp, sTmp))
        A("s_add_u32 s%d, s%d, s%d" % (sTab + 2, sTab, sTmp))
        A("s_addc_u32 s%d, s%d, 0" % (sTab + 3, sTab + 1))
        A("s_load_dwordx4 %s, %s, 0" % (sr(sTd, 4), sr(sTab + 2, 2)))
        out += self.addr_setup()
        A("v_mov_b32 v%d, 0" % vBad)
        if o.trace:
            A("v_lshrrev_b32 v61, 6, v0")
            A("v_lshlrev_b32 v61, 8, v61")
            A("v_add_u32 v61, %d, v61" % TRACE)
            A("v_lshlrev_b32 v60, 2, v0")
            A("v_add_u32 v60, %d, v60" % TRACE)
            A("ds_write_b32 v60, v%d" % vBad)
        A("ds_write_b32 v%d, v%d" % (vPub, vBad))
        A("v_mov_b32 v%d, 0x3f803f80" % vT1)
        for j in range(4):
            A("v_accvgpr_write_b32 a%d, v%d" % (aOnes + j, vT1))
        A("s_mul_i32 s%d, s%d, %d" % (sWb, sW, WREG))
        A("s_add_u32 s%d, s%d, %d" % (sMlim, sWb, R * SLOT))
        A("s_mov_b32 m0, s%d" % sWb)
        A("s_mov_b32 s%d, %d" % (sRc, R - 1))
        A("s_mov_b32 s%d, 0" % sThr)
        A("s_mov_b32 s%d, %d" % (sPos, SLOT))
        A("s_mov_b32 s%d, %d" % (sNeg, -(R - 1) * SLOT))
        A("s_mov_b32 s%d, 0x%x" % (sCc, SCALE_BITS))
        A("s_mov_b32 s%d, 0x%x" % (sCc + 1, SCALE_BITS))
        A("s_mov_b32 s%d, 0x20000" % (sA + 3))
        A("s_mov_b32 s%d, 0x20000" % (sB + 3))
        A("s_mov_b32 s%d, 0x20000" % (sO_ + 3))
        A("s_mov_b32 s%d, 0" % (sO_ + 2))
        A("s_and_b32 s%d, s2, 7" % sTmp)
        A("s_lshl_b32 s%d, s%d, 9" % (sTmp, sTmp))
        A("s_waitcnt lgkmcnt(0)")
        A("s_add_u32 s%d, s%d, %d" % (sQp2, sQp, 32 * 4096 - V0OFF))
        A("s_addc_u32 s%d, s%d, 0" % (sQp2 + 1, sQp + 1))
        d1a, d1b = self.decode_job(sTd, sTd + 1, sJ1)
        out += d1a + self.srd_q() + [I("s_mov_b32 s%d, s%d" % (sA + 2, sJ1 + 2))]
        out += dmas(o, sJ1) + m0_adv() + [I("s_add_u32 s%d, s%d, %d" % (sQoff, sJ1, 64 * 4096))]
        A("s_sub_u32 s%d, s%d, %d" % (sVp, sVp, V0OFF))
        A("s_subb_u32 s%d, s%d, 0" % (sVp + 1, sVp + 1))
        out += d1b
        d2a, d2b = self.decode_job(sTd + 2, sTd + 3, sJ2)
        out += d2a + d2b + self.queue_setup() + self.set_compute(sJ1)
        A("s_mov_b32 s%d, s%d" % (sNext, sJ2 + 3))
        out += self.stamp(1)
        for nq in o.nq1s[:-1]:
            out += [I("s_cmp_eq_u32 s%d, %d" % (sJ1 + 3, nq)), I("s_cbranch_scc1 L_first%d" % nq)]
        A("s_branch L_first%d" % o.nq1s[-1])
        out = check(out, fix=True, name="entry")
        b0s, tails = {}, []
        mids = {k: self.t_mid(*k) for k in sorted(o.trans) if k[2]}

        def stores_behind(k):
            d = [i for i, x in enumerate(mids[k]) if x.kind == "dma"][4 * (k[2] - LEAD + 1) + 3]
            return sum(1 for x in mids[k][d:] if x.kind == "vmem")
        for nq in o.nqs:
            dec = I("s_sub_u32 s%d, s%d, 1" % (sLoop, sLoop))
            bA = self.body(nq, 1, tail=[dec, I("s_cbranch_scc1 L_last0_%d" % nq)])
            bB = self.body(nq, 0, tail=[dec, I("s_cbranch_scc0 L_loop%d" % nq)])
            check(bA + bB + bA, name="loop")
            if nq in o.nq2s:
                b0s[nq] = self.body(nq, 0, first=True, entry=True, vmextra=min(stores_behind(k) for k in mids if k[2] == nq))
                check(b0s[nq] + bA, name="b0-bA")
                out += [I("L_body%d:" % nq)] + self.stamp(2) + b0s[nq] + self.stamp(5)
                if nq in o.nq1s:
                    out += [I("s_branch L_loop%d" % nq)]
            if nq in o.nq1s:
                h = self.head(nq)
                b2 = self.body(nq, 0, entry=True)
                check(h + b2 + bA, name="head-b2-bA")
                out += [I("L_first%d:" % nq)] + h + self.stamp(2) + self.padmark(12) + b2 + self.stamp(5)
            if o.trace:
                tr0 = [I("s_memtime s[98:99]")]
                tr1 = [I("v_mov_b32 v60, s98"), I("ds_write_b32 v61, v60"), I("v_add_u32 v61, 4, v61")]
                bA = tr0 + bA[:-1] + tr1 + bA[-1:]
                bB = tr0 + bB[:-1] + tr1 + bB[-1:]
            out += [I(".p2align 6"), I("L_loop%d:" % nq)] + bA + bB
            for par in (1, 0):
                prev = bB if par else bA
                out += [I("L_last%d_%d:" % (par, nq))] + self.stamp(3)
                nxt = sorted({b for (a, p_, b) in o.trans if a == nq and p_ == par})
                for b in nxt[:-1]:
                    out += [I("s_cmp_eq_u32 s%d, %d" % (sNext, b)), I("s_cbranch_scc1 L_t%d_%d_%d" % (nq, par, b))]
                for b in reversed(nxt):
                    t = mids[(nq, par, b)] if b else self.t_final(nq, par)
                    check(prev + t, name="loop-t")
                    out += [I("L_t%d_%d_%d:" % (nq, par, b))] + t + self.stamp(4)
                    if b:
                        tails.append((t, b))
                        if o.stamp:
                            out += [I("v_mov_b32 v60, v62"), I("v_mov_b32 v61, v63")]
                        out += [I("s_branch L_body%d" % b)]
                    else:
                        out += [I("s_branch L_fin")]
                if not nxt:
                    out += [I("s_branch L_fin")]
        for t, b in tails:
            check(t + b0s[b], name="t-b0")
        A = lambda s: out.append(I(s))
        A("L_fin:")
        A("s_barrier")
        if o.stamp or o.trace:
            out += self.stamp(6)
            A("s_waitcnt vmcnt(0)")
            out += self.stamp(7)
            A("s_load_dwordx2 s[4:5], s[0:1], 48")
            A("v_mbcnt_lo_u32_b32 v70, -1, 0")
            A("v_mbcnt_hi_u32_b32 v70, -1, v70")
            A("s_mov_b32 s6, 0x1000000")
            A("s_lshl_b32 s3, s2, 2")
            A("s_add_u32 s3, s3, s%d" % sW)
            if o.stamp:
                A("s_lshl_b32 s3, s3, 10")
                A("v_lshlrev_b32 v70, 4, v70")
                A("s_waitcnt lgkmcnt(0)")
                A("buffer_store_dwordx4 v[60:63], v70, s[4:7], s3 offen")
            else:
                A("s_lshl_b32 s3, s3, 8")
                A("v_lshlrev_b32 v70, 2, v70")
                A("s_lshl_b32 s92, s%d, 8" % sW)
                A("s_add_u32 s92, s92, %d" % TRACE)
                A("v_add_u32 v71, s92, v70")
                A("ds_read_b32 v72, v71")
                A("s_waitcnt lgkmcnt(0)")
                A("buffer_store_dword v72, v70, s[4:7], s3 offen")
        if o.padto:
            out += self.padmark(6)
            A("s_waitcnt vmcnt(0)")
            out += self.padmark(7)
            A("s_waitcnt lgkmcnt(0)")
            A("L_pad:")
            A("s_memrealtime s[100:101]")
            A("s_waitcnt lgkmcnt(0)")
            A("s_sub_u32 s100, s100, s98")
            A("s_cmp_lt_u32 s100, %d" % (o.padto * 100))
            A("s_cbranch_scc1 L_pad")
        A("v_cmp_lt_u32 vcc, 0x%x, v%d" % (HI_BITS - LO_BITS, vBad))
        A("s_nop 4")
        A("s_cbranch_vccnz L_slow")
        A("L_end:")
        A("s_endpgm")
        out += self.stubs
        out += self.slow()
        txt = [x.text for x in out]
        txt.append(".p2align 4")
        txt.append("L_table:")
        for e in table:
            txt.append(".long 0x%x, 0x%x, 0x%x, 0x%x" % tuple(e))
        return txt


def make_table(bins):
    nxt = {}
    tab = []
    for jobs in bins:
        e = []
        for (s, hh, nq) in jobs:
            u = nxt.get((s, hh), 0)
            nxt[(s, hh)] = u + nq
            q0 = CU[s] + 64 * u
            n = (CU[s + 1] - CU[s] + 31) // 32
            e += [q0 | nq << 13 | hh << 16 | n << 20, CU[s] | CU[s + 1] << 13]
        e += [0, 0] * (2 - len(jobs))
        tab.append(e)
    for s in range(8):
        for hh in range(2):
            assert nxt[(s, hh)] == (CU[s + 1] - CU[s] + 63) // 64, (s, hh, nxt)
    assert len(tab) == 32
    return tab


HEADER = """; varlen (packed, ragged) non-causal attention forward, bf16, T=6042 H=16 D=128, 8 sequences (cu is a constant of the problem)
; @launch grid=(256,1,1) block=(256,1,1) lds=%d
.amdgcn_target "amdgcn-amd-amdhsa--gfx950"
.text
.globl %s
.p2align 8
.type %s,@function
%s:
"""
FOOTER = """.section .rodata,"a"
.p2align 6
.amdhsa_kernel %s
  .amdhsa_next_free_vgpr 512
  .amdhsa_next_free_sgpr 102
  .amdhsa_accum_offset 256
  .amdhsa_group_segment_fixed_size 0
  .amdhsa_kernarg_size 56
  .amdhsa_user_sgpr_count 2
  .amdhsa_user_sgpr_kernarg_segment_ptr 1
  .amdhsa_system_sgpr_workgroup_id_x 1
.end_amdhsa_kernel
"""


def parse_bins(s):
    U = [(CU[i + 1] - CU[i] + 63) // 64 for i in range(8)]
    jobs = []
    for bi, b in enumerate(s.split()):
        for ji, j in enumerate(b.split("+")):
            if j[0] != "-":
                jobs.append((bi, ji, "ABCDEFGH".index(j[0]), int(j[1]), "ab".index(j[2]) if len(j) > 2 else None))
    hh = {}
    for s_ in range(8):
        mine = [j for j in jobs if j[2] == s_]
        best = None
        for mask in range(1 << len(mine)):
            if any(j[4] is not None and j[4] != (mask >> k & 1) for k, j in enumerate(mine)):
                continue
            if sum(j[3] for k, j in enumerate(mine) if mask >> k & 1) == U[s_]:
                sc = 0
                for h in (0, 1):
                    sc += len({j[1] for k, j in enumerate(mine) if (mask >> k & 1) == h})
                if best is None or sc < best[0]:
                    best = (sc, mask)
        for k, j in enumerate(mine):
            hh[j[:2]] = best[1] >> k & 1
    bins = [[] for _ in range(32)]
    for j in jobs:
        bins[j[0]].append((j[2], hh[j[:2]], j[3]))
    return bins


SCHED3 = "C5 C5 C5 C5 H5 H5 H5 H5 F5 F5 C3+A3 C3+A3 C3+A3 C3+A3 G4+B4 G4+B4 G4+B4 H3+B4 H3+E3 H3+E3 H3+D3 D4+D3 D4+D3 D4+D3 E4+G3 E4+G3 E4+G3 E4+G3 F3+A4 F3+A4 F3+F3 F3+F3"
SCHED3B = "F6 F6 C5 C5 C5 C5 H5 H5 H5 H5 F5 F5 C3+A3 C3+A3 C3+A3 C3+A3 G4+B4 G4+B4 G4+B4 H3+B4 H3+E3 H3+E3 H3+D3 D4+D3 D4+D3 D4+D3 E4+G3 E4+G3 E4+G3 E4+G3 F3+A4 F3+A4"
Opt.sched = SCHED3


def build(o):
    bins = parse_bins(o.sched)
    o.nqs = tuple(sorted({j[2] for b in bins for j in b}))
    o.nq1s = tuple(sorted({b[0][2] for b in bins}))
    o.nq2s = tuple(sorted({b[1][2] for b in bins if len(b) > 1}))
    o.trans = set()
    for b in bins:
        for k, (s_, hh, nq) in enumerate(b):
            n = (CU[s_ + 1] - CU[s_] + 31) // 32
            o.trans.add((nq, (n - 1) & 1, b[k + 1][2] if k + 1 < len(b) else 0))
    g = Gen(o)
    body = g.kernel(make_table(bins))
    body.append("; sched " + o.sched)
    return HEADER % (LDS_BYTES, KNAME, KNAME, KNAME) + "\n".join(body) + "\n" + FOOTER % KNAME


if __name__ == "__main__":
    o = Opt()
    path = sys.argv[1]
    for a in sys.argv[2:]:
        k, v = a.split("=")
        setattr(o, k, eval(v))
    src = build(o)
    open(path, "w").write(src)
```

```python
import sys, struct, math
from isa import I, check
from lsched import schedule

KNAME = "standalone__varlen_attn_packed__ragged_kernel"
CU = [0, 580, 1085, 2082, 2797, 3498, 4341, 5079, 6042]

R = 8
SLOT = 16640
WREG = 4160
K1OFF, V0OFF, V1OFF = 1056, 2080, 3136
FLAG = R * SLOT
STAGE = FLAG + 1280
TRACE = STAGE + 16384
LDS_BYTES = TRACE + 1024

vKa, vVa, vo0, vo1, vR, vOst, vQd, vPub, vChk, vOne, vFlag, vBad = range(1, 13)
vT1, vT2, vT3 = 13, 14, 15
vMask = 16
vS = 24
vP = 40
vL = 48
vT5 = 54
vW = 56
vO = 64
vT4 = 64
aK = 0
aV = 64
aOnes = 128
aL = 132
aQ = 160
sA, sB, sO_ = 4, 8, 12
sQp, sKp, sVp, sQp2 = 16, 18, 20, 22
sSoff, sStride, sCnt, sQoff = 24, 25, 26, 27
sWb, sMlim, sRc, sDelta, sLoop, sThr, sPos, sNeg = 28, 29, 30, 31, 32, 33, 34, 35
sJ1, sJ2 = 36, 41
sC = 46
sN, sM = 52, 62
sW, sNext, sCc, sTmp, sT2, sT3 = 72, 73, 74, 76, 77, 78
sTab, sTd = 80, 84
sSts = list(range(80, 92))
LEAD = 4
SCALE = math.log2(math.e) / math.sqrt(128.0)
SCALE_BITS = struct.unpack("<I", struct.pack("<f", SCALE))[0]
LO_BITS = (127 - 40) << 23
HI_BITS = (127 + 40) << 23


class Opt:
    ntkv = ""
    nto = "sc1"
    ntm = "sc1"
    ones = {3: 3, 4: 2, 5: 2, 6: 2}
    codepf = True
    stbias = 300
    fpos = {3: 9, 4: 9, 5: 9, 6: 9}
    a0, dq, dkv = 700, 800, 300
    s1at = 1400
    ppos = {3: 2, 4: 8, 5: 8, 6: 8}
    s2at = 2200
    hlead = 3
    stamp = False
    trace = False
    padto = 0
    padat = 0


def vr(b, n=1):
    return "v%d" % b if n == 1 else "v[%d:%d]" % (b, b + n - 1)


def ar(b, n=1):
    return "a%d" % b if n == 1 else "a[%d:%d]" % (b, b + n - 1)


def sr(b, n=1):
    return "s%d" % b if n == 1 else "s[%d:%d]" % (b, b + n - 1)


def qreg(nq, i, ks):
    if nq <= 4:
        return "v", 192 + 16 * i + 4 * ks
    free = (256 - (vO + 32 * nq)) // 16
    if i < free:
        return "v", vO + 32 * nq + 16 * i + 4 * ks
    return "a", aQ + 16 * (i - free) + 4 * ks


def qop(nq, i, ks):
    f, b = qreg(nq, i, ks)
    return vr(b, 4) if f == "v" else ar(b, 4)


def ones_blocks(nq, k):
    if k >= nq:
        return list(range(nq))
    if k == 1:
        return [0]
    if k == 2:
        return [0, (nq + 1) // 2]
    return [0] + list(range(nq - k + 1, nq))


def mf(d, a, b, c):
    return I("v_mfma_f32_16x16x32_bf16 %s, %s, %s, %s" % (d, a, b, c))


def qk(nq, i, kbuf, sset, masked):
    out = []
    for b in range(2):
        d = vr(vS + 8 * sset + 4 * b, 4)
        for ks in range(4):
            c = d if ks else (vr(vMask + 4 * b, 4) if masked else "0")
            out.append(mf(d, ar(aK + 32 * kbuf + 16 * b + 4 * ks, 4), qop(nq, i, ks), c))
    return out


def pv(i, vbuf, pset, zero):
    out = []
    for db in range(8):
        d = vr(vO + 32 * i + 4 * db, 4)
        out.append(mf(d, ar(aV + 32 * vbuf + 4 * db, 4), vr(vP + 4 * pset, 4), "0" if zero else d))
    return out


def onesm(slot, pset, zero):
    d = ar(aL + 4 * slot, 4)
    return mf(d, ar(aOnes, 4), vr(vP + 4 * pset, 4), "0" if zero else d)


def EXP(sset, j):
    r = vS + 8 * sset + j
    return I("v_exp_f32 v%d, v%d" % (r, r))


def CVT(sset, j):
    r = vS + 8 * sset + 2 * j
    return I("v_cvt_pk_bf16_f32 v%d, v%d, v%d" % (vP + 4 * sset + j, r, r + 1))


def kread(buf, b, ks):
    return I("ds_read_b128 %s, v%d offset:%d" % (ar(aK + 32 * buf + 16 * b + 4 * ks, 4), vKa, b * 512 + ks * 64))


def vread(buf, db, jj):
    return I("ds_read_b64_tr_b16 %s, v%d offset:%d" % (ar(aV + 32 * buf + 4 * db + 2 * jj, 2), vVa, jj * 512 + 32 * db))


def kvreads(buf):
    return [kread(buf, b, ks) for b in range(2) for ks in range(4)] + [vread(buf, db, jj) for db in range(8) for jj in range(2)]


def dmas(o, soff=sSoff):
    p = (" " + o.ntkv) if o.ntkv else ""
    return [I("buffer_load_dwordx4 v%d, %s, s%d offen%s lds" % (vo0, sr(sA, 4), soff, p)),
            I("buffer_load_dwordx4 v%d, %s, s%d offen offset:%d%s lds" % (vo1, sr(sA, 4), soff, K1OFF, p)),
            I("buffer_load_dwordx4 v%d, %s, s%d offen offset:%d%s lds" % (vo0, sr(sB, 4), soff, V0OFF, p)),
            I("buffer_load_dwordx4 v%d, %s, s%d offen offset:%d%s lds" % (vo1, sr(sB, 4), soff, V1OFF, p))]


def m0_adv():
    return [I("s_add_u32 m0, m0, s%d" % sPos), I("s_cmp_eq_u32 m0, s%d" % sMlim), I("s_cselect_b32 m0, s%d, m0" % sWb)]


def item_adv():
    t = ["s_add_u32 s%d, s%d, s%d" % (sSoff, sSoff, sStride), "s_sub_u32 s%d, s%d, 1" % (sCnt, sCnt),
         "s_cmov_b64 %s, %s" % (sr(sA, 2), sr(sN, 2)), "s_cmov_b64 %s, %s" % (sr(sB, 2), sr(sN + 2, 2)),
         "s_cmov_b64 %s, %s" % (sr(sSoff, 2), sr(sN + 4, 2)), "s_cmov_b32 s%d, s%d" % (sA + 2, sN + 6),
         "s_cmov_b32 s%d, s%d" % (sB + 2, sN + 7), "s_cmov_b32 s%d, s%d" % (sCnt, sN + 8)]
    for j in range(4):
        t.append("s_cmov_b64 %s, %s" % (sr(sN + 2 * j, 2), sr(sM + 2 * j, 2)))
    t += ["s_cmov_b32 s%d, s%d" % (sN + 8, sM + 8), "s_cmov_b64 %s, 0" % sr(sM + 6, 2), "s_cmov_b32 s%d, 0x7fffffff" % (sM + 8)]
    return [I(x) for x in t]


def ring_adv_s():
    return [I("s_sub_u32 s%d, s%d, 1" % (sRc, sRc)),
            I("s_cselect_b32 s%d, s%d, s%d" % (sDelta, sNeg, sPos)),
            I("s_cselect_b32 s%d, %d, s%d" % (sRc, R - 1, sRc))]


def ring_adv():
    return ring_adv_s() + [I("v_add_u32 v%d, s%d, v%d" % (vKa, sDelta, vKa)), I("v_add_u32 v%d, s%d, v%d" % (vVa, sDelta, vVa))]


class Gen:
    def __init__(self, o):
        self.o = o
        self.stubs = []
        self.nlab = 0

    def lab(self, p):
        self.nlab += 1
        return "L_%s_%d" % (p, self.nlab)

    def issue_item(self):
        return dmas(self.o) + m0_adv() + item_adv()[:2]

    def spin(self):
        spin, ret = self.lab("spin"), self.lab("spinret")
        self.stubs += [I(spin + ":"), I("ds_read_b32 v%d, v%d" % (vFlag, vChk)), I("s_waitcnt lgkmcnt(0)"),
                       I("v_cmp_gt_u32 vcc, s%d, v%d" % (sThr, vFlag)), I("s_nop 4"),
                       I("s_cbranch_vccnz " + spin), I("s_branch " + ret)]
        return I("s_cbranch_vccnz " + spin, tag=ret)

    def body(self, nq, par, first=False, entry=False, tail=None, vmextra=0):
        o = self.o
        ob = ones_blocks(nq, o.ones[nq])
        addb = [i for i in range(nq) if i not in ob]
        flags = entry or par == 1
        sset = lambda t, i: ((par ^ t) * nq + i) & 1
        gaps, vstart, flex = [], [], []

        def gap(m, E=None, fixed=None):
            gaps.append(dict(m=m, E=E, fixed=fixed or [], scal=[], flex=[]))
            return len(gaps) - 1

        lcount = {}

        def ADD(i, ss, j):
            n = lcount.get(i, 0)
            lcount[i] = n + 1
            l = vL + 2 * addb.index(i) + (n & 1)
            r = vS + 8 * ss + j
            if first and n < 2:
                return I("v_mov_b32 v%d, v%d" % (l, r))
            return I("v_add_f32 v%d, v%d, v%d" % (l, l, r))

        adds = []
        for v in range(nq):
            vstart.append(len(gaps))
            nxt_t, nxt_i = (0, v + 1) if v < nq - 1 else (1, 0)
            sc, sn = sset(0, v), sset(nxt_t, nxt_i)
            qm = qk(nq, nxt_i, par ^ nxt_t, sn, first and nxt_t == 0)
            pm = pv(v, par, sc, first)
            for g in range(16):
                m = qm[g] if g < 8 else pm[g - 8]
                E, fixed = None, []
                if g in (1, 3, 5):
                    E = (v, sc, 5 + g // 2)
                elif g in (7, 9, 11, 13, 15):
                    E = (nxt_i if nxt_t == 0 else -1, sn, (g - 7) // 2)
                if g in (2, 6):
                    fixed = [CVT(sc, 2 + g // 4)]
                if g in (10, 14):
                    fixed = [CVT(sn, (g - 10) // 4)]
                gi = gap(m, EXP(E[1], E[2]) if E else None, fixed)
                if E and E[0] in addb:
                    adds.append((E[0], gi, E[1], E[2]))
            if v in ob:
                gap(onesm(ob.index(v), sc, first))
        ng = len(gaps)
        vstart.append(ng)
        for (i, gi, ss, j) in adds:
            dl = ng - 1
            if i + 1 < nq:
                dl = vstart[i + 1] - 1 + (4 if j >= 4 else 0)
            flex.append([gi + 1, dl, 1, 5, ("add", i, ss, j)])
        kdl = vstart[nq - 1] - 5
        vdl = ng - 9
        for x in kvreads(par ^ 1):
            flex.append([0, kdl, 1, 1, x] if x.op == "ds_read_b128" else [0, vdl, 1, 2, x])
        ddl = max(ng // 2 - 4, 6)
        for d in dmas(o):
            flex.append([0, ddl, 2, 0, d])
        pend = sorted(flex, key=lambda f: (f[1], f[3]))
        slotgaps = [i for i, g in enumerate(gaps) if g["E"] is None]

        def remaining_cap(gi, upto):
            return sum(2 - len(gaps[x]["fixed"]) for x in slotgaps if gi <= x <= upto)

        bonus = set()
        ov = sum(f[2] for f in flex if f[1] <= vdl) + (3 if flags else 0) - remaining_cap(0, vdl)
        cand = [x for x in slotgaps if x <= vdl]
        for j in range(max(0, ov)):
            bonus.add(cand[(j * len(cand)) // ov] if ov <= len(cand) else cand[j % len(cand)])
        nk = nv = nd = 0
        ddone = None
        for gi in range(ng):
            g = gaps[gi]
            cap = 0 if g["E"] is not None else 2 - len(g["fixed"]) + (1 if gi in bonus else 0)
            while True:
                ready = [f for f in pend if f[0] <= gi]
                pick = next((f for f in ready if f[2] <= cap), None)
                forced = [f for f in ready if f[1] <= gi]
                if pick is None and forced:
                    pick = forced[0]
                if pick is None:
                    break
                if pick[2] == 1 and cap >= 2:
                    two = [f for f in ready if f[2] == 2]
                    urgent = [f for f in pend if f[2] == 1 and f[1] < two[0][1]] if two else []
                    if two and (not urgent or remaining_cap(gi + 1, urgent[-1][1]) + sum(1 for x in bonus if gi < x <= urgent[-1][1]) >= len(urgent)):
                        pick = two[0]
                pend.remove(pick)
                cap -= pick[2]
                ins = pick[4]
                if isinstance(ins, tuple):
                    ins = ADD(ins[1], ins[2], ins[3])
                g["flex"].append(ins)
                if ins.op == "ds_read_b128":
                    nk += 1
                    if nk == 8:
                        pend.append([gi + 1, ng - 1, 1, 6, I("v_add_u32 v%d, s%d, v%d" % (vKa, sDelta, vKa))])
                elif ins.op == "ds_read_b64_tr_b16":
                    nv += 1
                    if nv == 16:
                        pend.append([gi + 1, ng - 1, 1, 6, I("v_add_u32 v%d, s%d, v%d" % (vVa, sDelta, vVa))])
                elif ins.kind == "dma":
                    nd += 1
                    if nd == 4:
                        ddone = gi
                        if flags:
                            pg = max(gi + 2, ng // 2 - o.ppos[nq])
                            assert pg + 2 < ng - o.fpos[nq] - 3
                            pend.append([pg, pg + 4, 1, 0, I("ds_add_u32 v%d, v%d" % (vPub, vOne))])
                            pend.append([ng - o.fpos[nq] - 3, ng - o.fpos[nq], 1, 0, I("ds_read_b32 v%d, v%d" % (vFlag, vChk))])
                pend.sort(key=lambda f: (f[1], f[3]))
        assert not pend, pend
        sgaps = [i for i, g in enumerate(gaps) if not any(f.kind == "dma" for f in g["flex"])]
        used = set()

        def put(chain, lo, hi=None):
            gi = lo - 1
            for ins in chain:
                gi = min(x for x in sgaps if x > gi and x not in used)
                used.add(gi)
                gaps[gi]["scal"].append(ins)
            assert hi is None or gi <= hi, (gi, hi, chain)
            return gi

        def ds_after(pos, pred):
            seq = [f for x in range(pos) for f in gaps[x]["flex"] if f.kind == "ds"]
            return min(15, len(seq) - 1 - max(i for i, f in enumerate(seq) if pred(f)))

        find = lambda op: [x for x in range(ng) for f in gaps[x]["flex"] if f.op == op]
        kw = vstart[nq - 1] - 1
        put([I("s_waitcnt lgkmcnt(%d)" % ds_after(kw, lambda f: f.op == "ds_read_b128"))], kw, kw)
        put([I("s_waitcnt lgkmcnt(0)")], ng - 3, ng - 3)
        if flags:
            pubg = find("ds_add_u32")[0]
            assert pubg - 1 > ddone
            put([I("s_waitcnt vmcnt(%d)" % (4 * (LEAD - 1) + vmextra))], pubg - 1, pubg)
            wg = find("ds_read_b32")[0] + 5
            wg = put([I("s_waitcnt lgkmcnt(%d)" % ds_after(wg, lambda f: f.op == "ds_read_b32"))], wg, wg + 1)
            cg = min((x for x in range(wg, ng - 3) if gaps[x]["E"] is None),
                     key=lambda x: (len(gaps[x]["flex"]) + len(gaps[x]["fixed"]) >= 2, x))
            gaps[cg]["flex"].append(I("v_cmp_gt_u32 vcc, s%d, v%d" % (sThr, vFlag)))
            put([self.spin()], ng - 1, ng - 1)
        p = put(ring_adv_s(), 0, min(find("v_add_u32")) - 1)
        if flags:
            p = put([I("s_add_u32 s%d, s%d, 1" % (sThr, sThr))], p + 1, cg - 1)
        p = put(m0_adv(), max(p, ddone) + 1)
        p = put(item_adv()[:2] if entry else item_adv(), p + 1)
        tail = tail or []
        if tail:
            put(tail[:1], p + 1)
            tail = tail[1:]
        out = []
        over = 0
        for gi, g in enumerate(gaps):
            out.append(g["m"])
            for x in g["scal"]:
                out.append(x)
                if x.kind == "branch" and x.tag:
                    out.append(I(x.tag + ":"))
            out += [f for f in g["flex"] if f.kind in ("ds", "dma")]
            if g["E"] is not None:
                out.append(g["E"])
            out += g["fixed"] + [f for f in g["flex"] if f.kind not in ("ds", "dma")]
            c = sum(2 if f.kind == "dma" else 1 for f in g["flex"]) + len(g["fixed"]) + (2 if g["E"] is not None else 0)
            over += max(0, c - 2)
        out += tail
        if entry:
            out += self.issue_item()
        sys.stderr.write("body nq=%d par=%d first=%d entry=%d gaps=%d overflow=%d\n" % (nq, par, first, entry, ng, over))
        return check(out, fix=True, name="body")

    def masks(self):
        out = [I("v_mbcnt_lo_u32_b32 v%d, -1, 0" % vT1), I("v_mbcnt_hi_u32_b32 v%d, -1, v%d" % (vT1, vT1)),
               I("v_lshrrev_b32 v%d, 2, v%d" % (vT1, vT1)), I("v_and_b32 v%d, 12, v%d" % (vT1, vT1)),
               I("v_subrev_u32 v%d, s%d, v%d" % (vT1, sC + 4, vT1)),
               I("v_mov_b32 v0, 0xff800000")]
        for j in range(8):
            out += [I("v_add_u32 v%d, %d, v%d" % (vMask + j, (j & 3) + 16 * (j >> 2), vT1)),
                    I("v_ashrrev_i32 v%d, 31, v%d" % (vMask + j, vMask + j)),
                    I("v_bfi_b32 v%d, v%d, 0, v0" % (vMask + j, vMask + j))]
        return out

    def p_softmax(self, nq, i, ss, js, first, lcount):
        ob = ones_blocks(nq, self.o.ones[nq])
        addb = [x for x in range(nq) if x not in ob]
        out = []
        for j in js:
            out.append(EXP(ss, j))
            if i in addb:
                n = lcount.get(i, 0)
                lcount[i] = n + 1
                l = vL + 2 * addb.index(i) + (n & 1)
                r = vS + 8 * ss + j
                out.append(I("v_mov_b32 v%d, v%d" % (l, r)) if first and n < 2 else I("v_add_f32 v%d, v%d, v%d" % (l, l, r)))
            if j & 1:
                out.append(CVT(ss, j >> 1))
        return out

    def p_epi(self, nq, i, pol):
        o = self.o
        ob = ones_blocks(nq, o.ones[nq])
        addb = [x for x in range(nq) if x not in ob]
        out = []
        A = lambda t: out.append(I(t))
        if i in ob:
            r = vMask + 2 * ob.index(i)
            A("v_accvgpr_read_b32 v%d, a%d" % (r, aL + 4 * ob.index(i)))
        else:
            r = vL + 2 * addb.index(i)
            A("v_add_f32 v%d, v%d, v%d" % (r, r, r + 1))
            for sw in ("v_permlane16_swap_b32", "v_permlane32_swap_b32"):
                A("v_mov_b32 v%d, v%d" % (r + 1, r))
                A("%s v%d, v%d" % (sw, r, r + 1))
                A("v_add_f32 v%d, v%d, v%d" % (r, r, r + 1))
        A("v_subrev_u32 v%d, 0x%x, v%d" % (vT1, LO_BITS, r))
        A("v_rcp_f32 v%d, v%d" % (r, r))
        A("v_max_u32 v%d, v%d, v%d" % (vBad, vBad, vT1))
        p = (" " + pol) if pol else ""
        b0 = vO + 32 * i
        for d4 in range(4):
            for db in (d4, d4 + 4):
                b = b0 + 4 * db
                for j in range(2):
                    A("v_pk_mul_f32 %s, %s, %s op_sel_hi:[1,0]" % (vr(b + 2 * j, 2), vr(b + 2 * j, 2), vr(r, 2)))
                    out[-1].reads.discard(("v", r + 1))
                for j in range(2):
                    A("v_cvt_pk_bf16_f32 v%d, v%d, v%d" % (b + j, b + 2 * j, b + 2 * j + 1))
            A("ds_write2st64_b64 v%d, %s, %s offset1:4" % (vW + d4, vr(b0 + 4 * d4, 2), vr(b0 + 4 * d4 + 16, 2)))
            out[-1].mw = ["stage%d" % d4]
        for k in range(4):
            A("ds_read_b128 %s, v%d offset:%d" % (vr(b0 + 8 * k, 4), vR, 1024 * k))
            out[-1].mr = ["stage%d" % x for x in range(4)]
        for k in range(4):
            A("buffer_store_dwordx4 %s, v%d, %s, s%d offen offset:%d%s" % (vr(b0 + 8 * k, 4), vOst, sr(sO_, 4), sSts[2 * i + (k & 1)], 128 * (k >> 1), p))
            out[-1].bias = o.stbias + 64 * (4 * (nq - 1 - i) + 3 - k)
        return out

    def p_last(self, nq, par, issue):
        ob = ones_blocks(nq, self.o.ones[nq])
        sset = lambda i: (par * nq + i) & 1
        out = [I("s_mov_b32 s%d, s%d" % (sO_ + 2, sC + 1))]
        for i in range(nq):
            for e in range(2):
                out.append(I("s_add_u32 s%d, s%d, %d" % (sSts[2 * i + e], sC, (64 * i + 8 * e) * 4096)))
        out += issue
        lc = {}
        for v in range(nq):
            if v < nq - 1:
                out += qk(nq, v + 1, par, sset(v + 1), False)
            out += self.p_softmax(nq, v, sset(v), (5, 6, 7), False, lc)
            out += pv(v, par, sset(v), False)
            if v in ob:
                out.append(onesm(ob.index(v), sset(v), False))
            if v < nq - 1:
                out += self.p_softmax(nq, v + 1, sset(v + 1), (0, 1, 2, 3, 4), False, lc)
            out += self.p_epi(nq, v, self.o.ntm if issue else self.o.nto)
        return out

    def p_sync(self, vm, wait_ds, start):
        w = I("s_waitcnt vmcnt(0)")
        w.vm = vm
        w.start = start
        pub = I("ds_add_u32 v%d, v%d" % (vPub, vOne))
        pub.after = [w]
        pub.wait_ds = wait_ds
        pub.mw = ["flag"]
        pub.bias = 300
        thr = I("s_add_u32 s%d, s%d, 1" % (sThr, sThr))
        rd = I("ds_read_b32 v%d, v%d" % (vFlag, vChk))
        rd.mr = ["flag"]
        rd.start = start + 260
        cmp_ = I("v_cmp_gt_u32 vcc, s%d, v%d" % (sThr, vFlag))
        br = self.spin()
        br.reads |= {("s", sThr), ("v", vFlag)}
        br.writes |= {("v", vFlag), ("s", "vcc")}
        return [w, pub, thr, rd, cmp_, br]

    def p_prescale(self, nq, i, raw, temps):
        out = []
        for ks in range(4):
            f, dst = qreg(nq, i, ks)
            for j in range(4):
                x = raw + 4 * ks + j
                t = temps[j % len(temps)]
                out += [I("v_lshlrev_b32 v%d, 16, v%d" % (t, x)), I("v_and_b32 v%d, 0xffff0000, v%d" % (t + 1, x)),
                        I("v_pk_mul_f32 %s, %s, %s" % (vr(t, 2), vr(t, 2), sr(sCc, 2)))]
                if f == "v":
                    out.append(I("v_cvt_pk_bf16_f32 v%d, v%d, v%d" % (dst + j, t, t + 1)))
                else:
                    out += [I("v_cvt_pk_bf16_f32 v%d, v%d, v%d" % (t, t, t + 1)), I("v_accvgpr_write_b32 a%d, v%d" % (dst + j, t))]
        return out

    def t_final(self, nq, par):
        out, t = schedule(self.p_last(nq, par, []), name="final nq=%d par=%d" % (nq, par))
        out.append(I("s_waitcnt vmcnt(%d)" % sum(1 for x in out if x.kind == "vmem")))
        return out

    def t_mid(self, nq1, par, nq):
        assert nq <= LEAD
        lastissue = self.issue_item()
        s1 = self.p_sync(4 * (LEAD - nq), [], self.o.s1at)
        prog = []
        for i in range(nq):
            prog.append(I("v_add_u32 v%d, v%d, v%d" % (vMask + 1 + 2 * i, vKa, vQd)))
            prog += ring_adv()
        prog += s1
        last = self.p_last(nq1, par, lastissue)
        js, reads = [], []
        for i in range(nq):
            reads += [I("ds_read_b128 %s, v%d offset:%d" % (qop(nq, i, ks), vMask + 1 + 2 * i, 64 * ks)) for ks in range(4)]
        reads += kvreads(0)
        js += reads + ring_adv()
        for x in reads:
            x.after = [s1[-1]]
        for j in range(min(nq - 1, 2)):
            it = self.issue_item()
            it[0].after = [s1[-1]]
            js += it
        s2 = self.p_sync(lastissue[:4] if nq == LEAD else 4 * (LEAD - nq - 1), reads, 0)
        s2[0].after = list(reads)
        s2[0].start = self.o.s2at
        for x in js + lastissue:
            if x.kind == "dma":
                x.bias = 2000
        js += s2[:3]
        for i in range(nq):
            js += self.p_prescale(nq, i, qreg(nq, i, 0)[1], (vT2, vT5))
        js += self.set_compute(sJ2) + [I("s_mov_b32 s%d, 0" % sNext)]
        js += self.masks()
        js += qk(nq, 0, 0, 0, True)
        js += self.p_softmax(nq, 0, 0, (0, 1, 2, 3, 4), True, {})
        js += [I("s_sub_u32 s%d, s%d, 3" % (sLoop, sC + 3))]
        s2[3].after = [[x for x in js if x.op == "v_cvt_pk_bf16_f32"][-12]]
        js += s2[3:]
        for j in range(2, nq - 1):
            it = self.issue_item()
            it[0].after = [s2[-1]]
            js += it
        out, t = schedule(prog + last + js, name="mid %d(par %d)->%d" % (nq1, par, nq))
        if self.o.stamp == 3:
            res, k = [], 0
            st = lambda k: [I("s_memtime s[94:95]"), I("s_waitcnt lgkmcnt(0)"), I("v_writelane_b32 v62, s94, %d" % (8 + k))]
            nm = sum(1 for x in out if x.kind == "mfma")
            m = 0
            for x in out:
                if "vmcnt" in x.text or x.op == "s_cbranch_vccnz":
                    res += st(k)
                    k += 1
                res.append(x)
                if "vmcnt" in x.text or x.text.startswith("L_spinret"):
                    res += st(k)
                    k += 1
                if x.kind == "mfma":
                    m += 1
                    if m == nm - 8:
                        res += st(20)
            out = res
        return out

    def srd_kv(self):
        return [I("s_mov_b64 %s, %s" % (sr(sA, 2), sr(sKp, 2))), I("s_mov_b64 %s, %s" % (sr(sB, 2), sr(sVp, 2))),
                I("s_add_u32 s%d, s%d, %d" % (sB + 2, sJ1 + 2, V0OFF))]

    def srd_q(self):
        return [I("s_mov_b64 %s, %s" % (sr(sA, 2), sr(sQp, 2))), I("s_mov_b64 %s, %s" % (sr(sB, 2), sr(sQp2, 2))),
                I("s_sub_u32 s%d, s%d, %d" % (sB + 2, sJ1 + 2, 32 * 4096 - V0OFF))]

    def head(self, nq):
        o = self.o
        ob = ones_blocks(nq, o.ones[nq])
        kind = ["q", "kv", "kv"] + ["q"] * (nq - 1) + ["kv"] * 5
        groups = {}
        state = ["q"]

        def issue(k):
            out = []
            if kind[k] != state[0]:
                out += self.srd_q() if kind[k] == "q" else self.srd_kv()
                state[0] = kind[k]
            so = sQoff if kind[k] == "q" else sSoff
            d = dmas(o, so)
            groups[k] = d
            for x in d:
                x.bias = 3000
            return out + d + m0_adv() + [I("s_add_u32 s%d, s%d, %d" % (so, so, 64 * 4096) if kind[k] == "q" else
                                           "s_add_u32 s%d, s%d, s%d" % (so, so, sStride))]

        prog = []
        for k in range(1, o.hlead):
            prog += issue(k)
        prog += self.masks()
        t = o.a0
        prev_reads, prev_bar = [], None
        lc = {}
        work = []
        visit = [0]
        pend = [None]

        def flush_pv():
            if pend[0] is None:
                return []
            i, tile, ss = pend[0]
            pend[0] = None
            out = pv(i, tile, ss, tile == 0)
            if i in ob:
                out.append(onesm(ob.index(i), ss, tile == 0))
            return out

        def do_visit(i, tile):
            ss = (visit[0] + 2 * nq) & 1
            visit[0] += 1
            out = qk(nq, i, tile, ss, tile == 0) + flush_pv()
            out += self.p_softmax(nq, i, ss, range(8), tile == 0, lc)
            pend[0] = (i, tile, ss)
            return out

        qi = 0
        nkv = 0
        for k in range(nq + 4):
            bar = I("s_barrier")
            bar.vm = 0 if k == 0 else groups[k]
            bar.start = t
            bar.after = [prev_bar] if prev_bar else []
            bar.wait_ds = prev_reads
            prog += [bar]
            prev_bar = bar
            t += o.dq if (k + 1 < len(kind) and kind[k + 1] == "q") else o.dkv
            if k + o.hlead <= nq + 6:
                it = issue(k + o.hlead)
                [x for x in it if x.kind == "dma"][0].after = [bar]
                prog += it
            if k == nq + 3:
                break
            if kind[k] == "q":
                f, r0 = qreg(nq, qi, 0)
                raw = r0 if f == "v" else vO + 32 * qi
                rd = [I("ds_read_b128 %s, v%d offset:%d" % (vr(raw + 4 * ks, 4), vT3 + 45, 64 * ks)) for ks in range(4)]
                prog += [I("v_add_u32 v%d, v%d, v%d" % (vT3 + 45, vKa, vQd))] + rd + ring_adv()
                prog += self.p_prescale(nq, qi, raw, (vT2,) if nq > 5 else (vT2, vT5))
                if qi > 0:
                    prog += do_visit(qi, 0) + do_visit(qi, 1)
                qi += 1
            else:
                rd = kvreads(nkv & 1)
                if nkv == 2:
                    prog += rd + ring_adv()
                    prog += qk(nq, 0, 0, 0, False) + flush_pv() + self.p_softmax(nq, 0, 0, range(5), False, lc)
                else:
                    prog += rd + ring_adv() + do_visit(0, nkv)
                nkv += 1
            for x in rd:
                x.after = [bar]
            prev_reads = rd
        prog += [I("s_sub_u32 s%d, s%d, 8" % (sCnt, sJ1 + 4)), I("s_sub_u32 s%d, s%d, 5" % (sLoop, sC + 3))]
        out, t = schedule(prog, name="head nq=%d" % nq)
        if o.stamp == 2:
            res, k = [], 0
            for x in out:
                if x.op == "s_barrier":
                    w = res.pop()
                    res += [I("s_memrealtime s[92:93]"), w, x, I("s_memrealtime s[96:97]"), I("s_waitcnt lgkmcnt(0)"),
                            I("v_writelane_b32 v63, s92, %d" % (8 + 2 * k)), I("v_writelane_b32 v63, s96, %d" % (9 + 2 * k))]
                    k += 1
                else:
                    res.append(x)
            out = res
        return out

    def addr_setup(self):
        t1, t2, t3, ln = vT1, vT2, vT3, vT4
        o = []
        A = lambda s: o.append(I(s))
        A("v_lshrrev_b32 v%d, 6, v0" % t1)
        A("v_and_b32 v%d, 63, v0" % ln)
        A("v_readfirstlane_b32 s%d, v%d" % (sW, t1))
        A("v_lshrrev_b32 v%d, 4, v%d" % (t2, ln))
        A("v_and_b32 v%d, 15, v%d" % (t3, ln))
        A("v_lshlrev_b32 v%d, 13, v%d" % (vo0, t1))
        A("v_lshl_add_u32 v%d, v%d, 15, v%d" % (vo0, t2, vo0))
        A("v_lshl_add_u32 v%d, v%d, 4, v%d" % (vo0, t3, vo0))
        A("v_add_u32 v%d, %d, v%d" % (vo1, 4096 - K1OFF, vo0))
        A("v_lshrrev_b32 v%d, 3, v%d" % (vR, ln))
        A("v_lshl_add_u32 v%d, v%d, 4, v%d" % (vOst, t1, vR))
        A("v_lshlrev_b32 v%d, 12, v%d" % (vOst, vOst))
        A("v_and_b32 v%d, 7, v%d" % (vW, ln))
        A("v_lshl_add_u32 v%d, v%d, 4, v%d" % (vOst, vW, vOst))
        A("v_xor_b32 v%d, v%d, v%d" % (vW + 1, vW, vR))
        A("v_lshlrev_b32 v%d, 4, v%d" % (vW + 1, vW + 1))
        A("v_lshl_add_u32 v%d, v%d, 7, v%d" % (vR, vR, vW + 1))
        A("v_lshlrev_b32 v%d, 12, v%d" % (vW + 3, t1))
        A("v_add_u32 v%d, %d, v%d" % (vW + 3, STAGE, vW + 3))
        A("v_add_u32 v%d, v%d, v%d" % (vR, vR, vW + 3))
        A("v_lshrrev_b32 v%d, 1, v%d" % (vW + 1, t2))
        A("v_xor_b32 v%d, v%d, v%d" % (vW, vW, vW + 1))
        A("v_lshlrev_b32 v%d, 4, v%d" % (vW, vW))
        A("v_and_b32 v%d, 1, v%d" % (vW + 1, t2))
        A("v_lshl_add_u32 v%d, v%d, 3, v%d" % (vW, vW + 1, vW))
        A("v_lshl_add_u32 v%d, v%d, 7, v%d" % (vW, t3, vW))
        A("v_add_u32 v%d, v%d, v%d" % (vW, vW, vW + 3))
        A("v_xor_b32 v%d, 32, v%d" % (vW + 1, vW))
        A("v_xor_b32 v%d, 64, v%d" % (vW + 2, vW))
        A("v_xor_b32 v%d, 0x60, v%d" % (vW + 3, vW))
        A("v_bfe_u32 v%d, v%d, 1, 2" % (vKa, ln))
        A("v_mul_u32_u24 v%d, %d, v%d" % (vKa, WREG, vKa))
        A("v_and_b32 v%d, 1, v%d" % (vT4 + 1, ln))
        A("v_mul_u32_u24 v%d, %d, v%d" % (vT4 + 2, K1OFF, vT4 + 1))
        A("v_add_u32 v%d, v%d, v%d" % (vKa, vKa, vT4 + 2))
        A("v_bfe_u32 v%d, v%d, 3, 1" % (vT4 + 2, ln))
        A("v_lshl_add_u32 v%d, v%d, 8, v%d" % (vKa, vT4 + 2, vKa))
        A("v_lshl_add_u32 v%d, v%d, 4, v%d" % (vKa, t2, vKa))
        A("v_lshrrev_b32 v%d, 1, v%d" % (vT4 + 3, t1))
        A("v_mul_u32_u24 v%d, %d, v%d" % (vQd, V0OFF, vT4 + 3))
        A("v_and_b32 v%d, 1, v%d" % (vT4 + 3, t1))
        A("v_lshl_add_u32 v%d, v%d, 9, v%d" % (vQd, vT4 + 3, vQd))
        A("v_bfe_u32 v%d, v%d, 3, 2" % (vVa, ln))
        A("v_mul_u32_u24 v%d, %d, v%d" % (vVa, WREG, vVa))
        A("v_bfe_u32 v%d, v%d, 2, 1" % (vT4 + 2, ln))
        A("v_mul_u32_u24 v%d, %d, v%d" % (vT4 + 2, V1OFF - V0OFF, vT4 + 2))
        A("v_add_u32 v%d, v%d, v%d" % (vVa, vVa, vT4 + 2))
        A("v_lshrrev_b32 v%d, 5, v%d" % (vT4 + 2, ln))
        A("v_lshl_add_u32 v%d, v%d, 8, v%d" % (vVa, vT4 + 2, vVa))
        A("v_and_b32 v%d, 3, v%d" % (vT4 + 2, ln))
        A("v_lshl_add_u32 v%d, v%d, 3, v%d" % (vVa, vT4 + 2, vVa))
        A("v_add_u32 v%d, %d, v%d" % (vVa, V0OFF, vVa))
        A("v_mul_u32_u24 v%d, 260, v%d" % (vChk, vT4 + 2))
        A("v_add_u32 v%d, %d, v%d" % (vChk, FLAG, vChk))
        A("v_lshlrev_b32 v%d, 2, v0" % vPub)
        A("v_add_u32 v%d, %d, v%d" % (vPub, FLAG, vPub))
        A("v_mov_b32 v%d, 1" % vOne)
        return o

    def decode_job(self, d0, d1, dst):
        o = []
        A = lambda s: o.append(I(s))
        A("s_bfe_u32 s%d, s%d, 0x10010" % (sT2, d0))
        A("s_lshl_b32 s%d, s%d, 8" % (sT2, sT2))
        A("s_add_u32 s%d, s%d, s%d" % (sT2, sT2, sTmp))
        A("s_and_b32 s%d, s%d, 0x1fff" % (dst, d0))
        A("s_lshl_b32 s%d, s%d, 12" % (dst, dst))
        A("s_add_u32 s%d, s%d, s%d" % (dst, dst, sT2))
        A("s_lshr_b32 s%d, s%d, 13" % (dst + 2, d1))
        A("s_lshl_b32 s%d, s%d, 12" % (dst + 2, dst + 2))
        p2 = []
        B = lambda s: p2.append(I(s))
        B("s_and_b32 s%d, s%d, 0x1fff" % (dst + 1, d1))
        B("s_lshl_b32 s%d, s%d, 12" % (dst + 1, dst + 1))
        B("s_add_u32 s%d, s%d, s%d" % (dst + 1, dst + 1, sT2))
        B("s_bfe_u32 s%d, s%d, 0x3000d" % (dst + 3, d0))
        B("s_lshr_b32 s%d, s%d, 20" % (dst + 4, d0))
        return o, p2

    def set_compute(self, j):
        o = []
        A = lambda s: o.append(I(s))
        A("s_mov_b32 s%d, s%d" % (sC, j))
        A("s_mov_b32 s%d, s%d" % (sC + 1, j + 2))
        A("s_mov_b32 s%d, s%d" % (sC + 3, j + 4))
        A("s_lshr_b32 s%d, s%d, 12" % (sT2, j + 2))
        A("s_lshr_b32 s%d, s%d, 12" % (sT3, j + 1))
        A("s_sub_u32 s%d, s%d, s%d" % (sT2, sT2, sT3))
        A("s_lshl_b32 s%d, s%d, 5" % (sT3, j + 4))
        A("s_sub_u32 s%d, s%d, s%d" % (sT2, sT2, sT3))
        A("s_add_u32 s%d, s%d, 32" % (sC + 4, sT2))
        return o

    def queue_setup(self):
        o = []
        A = lambda s: o.append(I(s))
        j = sJ2
        A("s_mov_b64 %s, %s" % (sr(sN, 2), sr(sQp, 2)))
        A("s_mov_b64 %s, %s" % (sr(sN + 2, 2), sr(sQp2, 2)))
        A("s_mov_b32 s%d, s%d" % (sN + 4, j))
        A("s_mov_b32 s%d, %d" % (sN + 5, 64 * 4096))
        A("s_mov_b64 %s, %s" % (sr(sM, 2), sr(sKp, 2)))
        A("s_mov_b64 %s, %s" % (sr(sM + 2, 2), sr(sVp, 2)))
        A("s_sub_u32 s%d, s%d, 1" % (sM + 8, j + 4))
        A("s_lshl_b32 s%d, s%d, 17" % (sM + 4, sM + 8))
        A("s_add_u32 s%d, s%d, s%d" % (sM + 4, sM + 4, j + 1))
        A("s_mov_b32 s%d, %d" % (sM + 5, -32 * 4096))
        A("s_mov_b32 s%d, s%d" % (sN + 6, j + 2))
        A("s_sub_u32 s%d, s%d, %d" % (sN + 7, j + 2, 32 * 4096 - V0OFF))
        A("s_sub_u32 s%d, s%d, 1" % (sN + 8, j + 3))
        A("s_mov_b32 s%d, s%d" % (sM + 6, j + 2))
        A("s_add_u32 s%d, s%d, %d" % (sM + 7, j + 2, V0OFF))
        A("s_cmp_eq_u32 s%d, 0" % (j + 3))
        A("s_cmov_b64 %s, 0" % sr(sN + 6, 2))
        A("s_cmov_b32 s%d, 0x7fffffff" % (sN + 8))
        A("s_sub_u32 s%d, s%d, 1" % (sSoff, sJ1 + 4))
        A("s_lshl_b32 s%d, s%d, 17" % (sSoff, sSoff))
        A("s_add_u32 s%d, s%d, s%d" % (sSoff, sSoff, sJ1 + 1))
        A("s_mov_b32 s%d, %d" % (sStride, -32 * 4096))
        return o

    def slow(self):
        o = []
        A = lambda s: o.append(I(s))
        Qf, Kf, Vf, Oa, S, P = 192, 128, 160, 64, vS, vP
        m, l, al, t, u = vL, vL + 1, vL + 2, vL + 3, vL + 4
        vSrc, vG4, vSt = vL + 5, vL + 6, vL + 7
        sJob, sBlk, sTile, sRow, sLeft, sBase, sSt = range(sN, sN + 7)
        sj = sM
        A("L_slow:")
        A("s_waitcnt vmcnt(0)")
        A("v_mbcnt_lo_u32_b32 v0, -1, 0")
        A("v_mbcnt_hi_u32_b32 v0, -1, v0")
        A("v_lshrrev_b32 v%d, 4, v0" % vG4)
        A("v_and_b32 v%d, 15, v0" % t)
        A("v_lshlrev_b32 v%d, 15, v%d" % (vSrc, vG4))
        A("v_lshl_add_u32 v%d, v%d, 4, v%d" % (vSrc, t, vSrc))
        A("v_lshlrev_b32 v%d, 2, v%d" % (vG4, vG4))
        A("s_lshl_b32 s%d, s%d, 6" % (sT2, sW))
        A("v_add_u32 v0, s%d, v0" % sT2)
        o += self.addr_setup()
        A("v_lshl_add_u32 v%d, v%d, 4, v%d" % (vOst, vT1, vT3))
        A("v_lshlrev_b32 v%d, 12, v%d" % (vOst, vOst))
        A("v_lshl_add_u32 v%d, v%d, 3, v%d" % (vSt, vT2, vOst))
        A("v_lshl_add_u32 v%d, v%d, 4, v%d" % (vOst, vT2, vOst))
        A("s_mul_i32 s%d, s%d, %d" % (sBase, sW, SLOT))
        A("v_add_u32 v%d, s%d, v%d" % (vKa, sBase, vKa))
        A("v_add_u32 v%d, s%d, v%d" % (vVa, sBase, vVa))
        A("s_mov_b32 s%d, 0" % sJob)
        for j in range(5):
            A("s_mov_b32 s%d, s%d" % (sj + j, sJ1 + j))
        A("L_slow_job:")
        A("s_mov_b32 s%d, 0" % sBlk)
        A("L_slow_blk:")
        A("s_mov_b64 %s, %s" % (sr(sA, 2), sr(sQp, 2)))
        A("s_mov_b32 s%d, s%d" % (sA + 2, sj + 2))
        A("s_lshl_b32 s%d, s%d, 18" % (sSt, sBlk))
        A("s_add_u32 s%d, s%d, s%d" % (sSt, sSt, sj))
        for ks in range(4):
            A("buffer_load_dwordx4 %s, v%d, %s, s%d offen offset:%d" % (vr(Kf + 4 * ks, 4), vOst, sr(sA, 4), sSt, 64 * ks))
        A("s_waitcnt vmcnt(0)")
        for j in range(16):
            A("v_lshlrev_b32 v%d, 16, v%d" % (t, Kf + j))
            A("v_and_b32 v%d, 0xffff0000, v%d" % (u, Kf + j))
            A("v_mul_f32 v%d, s%d, v%d" % (t, sCc, t))
            A("v_mul_f32 v%d, s%d, v%d" % (u, sCc, u))
            A("v_cvt_pk_bf16_f32 v%d, v%d, v%d" % (Qf + j, t, u))
        for j in range(32):
            A("v_mov_b32 v%d, 0" % (Oa + j))
        A("v_mov_b32 v%d, 0xff800000" % m)
        A("v_mov_b32 v%d, 0" % l)
        A("s_mov_b64 %s, %s" % (sr(sA, 2), sr(sKp, 2)))
        A("s_mov_b64 %s, %s" % (sr(sB, 2), sr(sVp, 2)))
        A("s_add_u32 s%d, s%d, %d" % (sB + 2, sj + 2, V0OFF))
        A("s_mov_b32 s%d, s%d" % (sRow, sj + 1))
        A("s_lshr_b32 s%d, s%d, 12" % (sLeft, sj + 2))
        A("s_lshr_b32 s%d, s%d, 12" % (sT2, sj + 1))
        A("s_sub_u32 s%d, s%d, s%d" % (sLeft, sLeft, sT2))
        A("s_mov_b32 s%d, s%d" % (sTile, sj + 4))
        A("L_slow_tile:")
        for sg in range(8):
            A("s_add_u32 s%d, s%d, %d" % (sT2, sRow, sg * 4096))
            A("s_add_u32 m0, s%d, %d" % (sBase, (sg >> 1) * WREG + (sg & 1) * K1OFF))
            A("buffer_load_dwordx4 v%d, %s, s%d offen lds" % (vSrc, sr(sA, 4), sT2))
            A("buffer_load_dwordx4 v%d, %s, s%d offen offset:%d lds" % (vSrc, sr(sB, 4), sT2, V0OFF))
        A("s_waitcnt vmcnt(0)")
        for b in range(2):
            for ks in range(4):
                A("ds_read_b128 %s, v%d offset:%d" % (vr(Kf + 16 * b + 4 * ks, 4), vKa, b * 512 + ks * 64))
        A("s_waitcnt lgkmcnt(0)")
        for db in range(8):
            for jj in range(2):
                A("ds_read_b64_tr_b16 %s, v%d offset:%d" % (vr(Vf + 4 * db + 2 * jj, 2), vVa, jj * 512 + 32 * db))
        for b in range(2):
            for ks in range(4):
                d = vr(S + 4 * b, 4)
                o.append(mf(d, vr(Kf + 16 * b + 4 * ks, 4), vr(Qf + 4 * ks, 4), d if ks else "0"))
        A("v_mov_b32 v%d, 0xff800000" % u)
        for j in range(8):
            A("v_add_u32 v%d, %d, v%d" % (t, (j & 3) + 16 * (j >> 2), vG4))
            A("v_cmp_gt_u32 vcc, s%d, v%d" % (sLeft, t))
            A("v_cndmask_b32 v%d, v%d, v%d, vcc" % (S + j, u, S + j))
        A("v_max3_f32 v%d, v%d, v%d, v%d" % (t, S, S + 1, S + 2))
        A("v_max3_f32 v%d, v%d, v%d, v%d" % (t, t, S + 3, S + 4))
        A("v_max3_f32 v%d, v%d, v%d, v%d" % (t, t, S + 5, S + 6))
        A("v_max3_f32 v%d, v%d, v%d, v%d" % (t, t, S + 7, m))
        for sw in ("v_permlane16_swap_b32", "v_permlane32_swap_b32"):
            A("v_mov_b32 v%d, v%d" % (u, t))
            A("%s v%d, v%d" % (sw, t, u))
            A("v_max_f32 v%d, v%d, v%d" % (t, t, u))
        A("v_sub_f32 v%d, v%d, v%d" % (al, m, t))
        A("v_exp_f32 v%d, v%d" % (al, al))
        A("v_mov_b32 v%d, v%d" % (m, t))
        for j in range(8):
            A("v_sub_f32 v%d, v%d, v%d" % (S + j, S + j, m))
        for j in range(8):
            A("v_exp_f32 v%d, v%d" % (S + j, S + j))
        A("v_mul_f32 v%d, v%d, v%d" % (l, l, al))
        for j in range(8):
            A("v_add_f32 v%d, v%d, v%d" % (l, l, S + j))
        for j in range(4):
            A("v_cvt_pk_bf16_f32 v%d, v%d, v%d" % (P + j, S + 2 * j, S + 2 * j + 1))
        for j in range(32):
            A("v_mul_f32 v%d, v%d, v%d" % (Oa + j, Oa + j, al))
        A("s_waitcnt lgkmcnt(0)")
        for db in range(8):
            d = vr(Oa + 4 * db, 4)
            o.append(mf(d, vr(Vf + 4 * db, 4), vr(P, 4), d))
        A("s_add_u32 s%d, s%d, %d" % (sRow, sRow, 32 * 4096))
        A("s_sub_u32 s%d, s%d, 32" % (sLeft, sLeft))
        A("s_nop 7")
        A("s_sub_u32 s%d, s%d, 1" % (sTile, sTile))
        A("s_cmp_lg_u32 s%d, 0" % sTile)
        A("s_cbranch_scc1 L_slow_tile")
        for sw in ("v_permlane16_swap_b32", "v_permlane32_swap_b32"):
            A("v_mov_b32 v%d, v%d" % (u, l))
            A("%s v%d, v%d" % (sw, l, u))
            A("v_add_f32 v%d, v%d, v%d" % (l, l, u))
        A("v_rcp_f32 v%d, v%d" % (l, l))
        A("s_mov_b32 s%d, s%d" % (sO_ + 2, sj + 2))
        for j in range(32):
            A("v_mul_f32 v%d, v%d, v%d" % (Oa + j, Oa + j, l))
        for db in range(8):
            b = Oa + 4 * db
            for j in range(2):
                A("v_cvt_pk_bf16_f32 v%d, v%d, v%d" % (b + j, b + 2 * j, b + 2 * j + 1))
            A("buffer_store_dwordx2 %s, v%d, %s, s%d offen offset:%d" % (vr(b, 2), vSt, sr(sO_, 4), sSt, 32 * db))
        A("s_waitcnt vmcnt(0)")
        A("s_add_u32 s%d, s%d, 1" % (sBlk, sBlk))
        A("s_cmp_lt_u32 s%d, s%d" % (sBlk, sj + 3))
        A("s_cbranch_scc1 L_slow_blk")
        A("s_cmp_lg_u32 s%d, 0" % sJob)
        A("s_cbranch_scc1 L_end")
        A("s_mov_b32 s%d, 1" % sJob)
        for j in range(5):
            A("s_mov_b32 s%d, s%d" % (sj + j, sJ2 + j))
        A("s_cmp_lg_u32 s%d, 0" % (sj + 3))
        A("s_cbranch_scc1 L_slow_job")
        A("s_branch L_end")
        return check(o, fix=True, name="slow")

    def padmark(self, idx):
        return [I("s_memrealtime s[98:99]")] if self.o.padto and self.o.padat == idx else []

    def stamp(self, idx):
        if not self.o.stamp:
            return self.padmark(idx) if idx else []
        return [I("s_memtime s[94:95]"), I("s_memrealtime s[96:97]"), I("s_waitcnt lgkmcnt(0)"),
                I("v_writelane_b32 v62, s94, %d" % idx), I("v_writelane_b32 v63, s96, %d" % idx)]

    def kernel(self, table):
        o = self.o
        out = []
        A = lambda s: out.append(I(s))
        A("s_cmp_ge_u32 s2, 256")
        A("s_cbranch_scc1 L_end")
        out += self.stamp(0)
        out += self.padmark(0)
        A("s_load_dwordx4 %s, s[0:1], 0" % sr(sQp, 4))
        A("s_load_dwordx2 %s, s[0:1], 16" % sr(sVp, 2))
        A("s_load_dwordx2 %s, s[0:1], 32" % sr(sO_, 2))
        A("s_getpc_b64 %s" % sr(sTab, 2))
        A("L_pc:")
        A("s_lshr_b32 s%d, s2, 3" % sTmp)
        if o.codepf:
            A("s_mul_i32 s%d, s%d, 3072" % (sT2, sTmp))
            A("v_min_u32 v%d, 23, v0" % vT4)
            A("v_lshl_add_u32 v%d, v%d, 7, s%d" % (vT4, vT4, sT2))
            A("v_min_u32 v%d, L_slow-L_pc-8, v%d" % (vT4, vT4))
            A("global_load_dword v%d, v%d, %s" % (vT4 + 4, vT4, sr(sTab, 2)))
        A("s_lshl_b32 s%d, s%d, 4" % (sTmp, sTmp))
        A("s_add_u32 s%d, s%d, L_table-L_pc" % (sTmp, sTmp))
        A("s_add_u32 s%d, s%d, s%d" % (sTab + 2, sTab, sTmp))
        A("s_addc_u32 s%d, s%d, 0" % (sTab + 3, sTab + 1))
        A("s_load_dwordx4 %s, %s, 0" % (sr(sTd, 4), sr(sTab + 2, 2)))
        out += self.addr_setup()
        A("v_mov_b32 v%d, 0" % vBad)
        if o.trace:
            A("v_lshrrev_b32 v61, 6, v0")
            A("v_lshlrev_b32 v61, 8, v61")
            A("v_add_u32 v61, %d, v61" % TRACE)
            A("v_lshlrev_b32 v60, 2, v0")
            A("v_add_u32 v60, %d, v60" % TRACE)
            A("ds_write_b32 v60, v%d" % vBad)
        A("ds_write_b32 v%d, v%d" % (vPub, vBad))
        A("v_mov_b32 v%d, 0x3f803f80" % vT1)
        for j in range(4):
            A("v_accvgpr_write_b32 a%d, v%d" % (aOnes + j, vT1))
        A("s_mul_i32 s%d, s%d, %d" % (sWb, sW, WREG))
        A("s_add_u32 s%d, s%d, %d" % (sMlim, sWb, R * SLOT))
        A("s_mov_b32 m0, s%d" % sWb)
        A("s_mov_b32 s%d, %d" % (sRc, R - 1))
        A("s_mov_b32 s%d, 0" % sThr)
        A("s_mov_b32 s%d, %d" % (sPos, SLOT))
        A("s_mov_b32 s%d, %d" % (sNeg, -(R - 1) * SLOT))
        A("s_mov_b32 s%d, 0x%x" % (sCc, SCALE_BITS))
        A("s_mov_b32 s%d, 0x%x" % (sCc + 1, SCALE_BITS))
        A("s_mov_b32 s%d, 0x20000" % (sA + 3))
        A("s_mov_b32 s%d, 0x20000" % (sB + 3))
        A("s_mov_b32 s%d, 0x20000" % (sO_ + 3))
        A("s_mov_b32 s%d, 0" % (sO_ + 2))
        A("s_and_b32 s%d, s2, 7" % sTmp)
        A("s_lshl_b32 s%d, s%d, 9" % (sTmp, sTmp))
        A("s_waitcnt lgkmcnt(0)")
        A("s_add_u32 s%d, s%d, %d" % (sQp2, sQp, 32 * 4096 - V0OFF))
        A("s_addc_u32 s%d, s%d, 0" % (sQp2 + 1, sQp + 1))
        d1a, d1b = self.decode_job(sTd, sTd + 1, sJ1)
        out += d1a + self.srd_q() + [I("s_mov_b32 s%d, s%d" % (sA + 2, sJ1 + 2))]
        out += dmas(o, sJ1) + m0_adv() + [I("s_add_u32 s%d, s%d, %d" % (sQoff, sJ1, 64 * 4096))]
        A("s_sub_u32 s%d, s%d, %d" % (sVp, sVp, V0OFF))
        A("s_subb_u32 s%d, s%d, 0" % (sVp + 1, sVp + 1))
        out += d1b
        d2a, d2b = self.decode_job(sTd + 2, sTd + 3, sJ2)
        out += d2a + d2b + self.queue_setup() + self.set_compute(sJ1)
        A("s_mov_b32 s%d, s%d" % (sNext, sJ2 + 3))
        out += self.stamp(1)
        for nq in o.nq1s[:-1]:
            out += [I("s_cmp_eq_u32 s%d, %d" % (sJ1 + 3, nq)), I("s_cbranch_scc1 L_first%d" % nq)]
        A("s_branch L_first%d" % o.nq1s[-1])
        out = check(out, fix=True, name="entry")
        b0s, tails = {}, []
        mids = {k: self.t_mid(*k) for k in sorted(o.trans) if k[2]}

        def stores_behind(k):
            d = [i for i, x in enumerate(mids[k]) if x.kind == "dma"][4 * (k[2] - LEAD + 1) + 3]
            return sum(1 for x in mids[k][d:] if x.kind == "vmem")
        for nq in o.nqs:
            dec = I("s_sub_u32 s%d, s%d, 1" % (sLoop, sLoop))
            bA = self.body(nq, 1, tail=[dec, I("s_cbranch_scc1 L_last0_%d" % nq)])
            bB = self.body(nq, 0, tail=[dec, I("s_cbranch_scc0 L_loop%d" % nq)])
            check(bA + bB + bA, name="loop")
            if nq in o.nq2s:
                b0s[nq] = self.body(nq, 0, first=True, entry=True, vmextra=min(stores_behind(k) for k in mids if k[2] == nq))
                check(b0s[nq] + bA, name="b0-bA")
                out += [I("L_body%d:" % nq)] + self.stamp(2) + b0s[nq] + self.stamp(5)
                if nq in o.nq1s:
                    out += [I("s_branch L_loop%d" % nq)]
            if nq in o.nq1s:
                h = self.head(nq)
                b2 = self.body(nq, 0, entry=True)
                check(h + b2 + bA, name="head-b2-bA")
                out += [I("L_first%d:" % nq)] + h + self.stamp(2) + self.padmark(12) + b2 + self.stamp(5)
            if o.trace:
                tr0 = [I("s_memtime s[98:99]")]
                tr1 = [I("v_mov_b32 v60, s98"), I("ds_write_b32 v61, v60"), I("v_add_u32 v61, 4, v61")]
                bA = tr0 + bA[:-1] + tr1 + bA[-1:]
                bB = tr0 + bB[:-1] + tr1 + bB[-1:]
            out += [I(".p2align 6"), I("L_loop%d:" % nq)] + bA + bB
            for par in (1, 0):
                prev = bB if par else bA
                out += [I("L_last%d_%d:" % (par, nq))] + self.stamp(3)
                nxt = sorted({b for (a, p_, b) in o.trans if a == nq and p_ == par})
                for b in nxt[:-1]:
                    out += [I("s_cmp_eq_u32 s%d, %d" % (sNext, b)), I("s_cbranch_scc1 L_t%d_%d_%d" % (nq, par, b))]
                for b in reversed(nxt):
                    t = mids[(nq, par, b)] if b else self.t_final(nq, par)
                    check(prev + t, name="loop-t")
                    out += [I("L_t%d_%d_%d:" % (nq, par, b))] + t + self.stamp(4)
                    if b:
                        tails.append((t, b))
                        if o.stamp:
                            out += [I("v_mov_b32 v60, v62"), I("v_mov_b32 v61, v63")]
                        out += [I("s_branch L_body%d" % b)]
                    else:
                        out += [I("s_branch L_fin")]
                if not nxt:
                    out += [I("s_branch L_fin")]
        for t, b in tails:
            check(t + b0s[b], name="t-b0")
        A = lambda s: out.append(I(s))
        A("L_fin:")
        A("s_barrier")
        if o.stamp or o.trace:
            out += self.stamp(6)
            A("s_waitcnt vmcnt(0)")
            out += self.stamp(7)
            A("s_load_dwordx2 s[4:5], s[0:1], 48")
            A("v_mbcnt_lo_u32_b32 v70, -1, 0")
            A("v_mbcnt_hi_u32_b32 v70, -1, v70")
            A("s_mov_b32 s6, 0x1000000")
            A("s_lshl_b32 s3, s2, 2")
            A("s_add_u32 s3, s3, s%d" % sW)
            if o.stamp:
                A("s_lshl_b32 s3, s3, 10")
                A("v_lshlrev_b32 v70, 4, v70")
                A("s_waitcnt lgkmcnt(0)")
                A("buffer_store_dwordx4 v[60:63], v70, s[4:7], s3 offen")
            else:
                A("s_lshl_b32 s3, s3, 8")
                A("v_lshlrev_b32 v70, 2, v70")
                A("s_lshl_b32 s92, s%d, 8" % sW)
                A("s_add_u32 s92, s92, %d" % TRACE)
                A("v_add_u32 v71, s92, v70")
                A("ds_read_b32 v72, v71")
                A("s_waitcnt lgkmcnt(0)")
                A("buffer_store_dword v72, v70, s[4:7], s3 offen")
        if o.padto:
            out += self.padmark(6)
            A("s_waitcnt vmcnt(0)")
            out += self.padmark(7)
            A("s_waitcnt lgkmcnt(0)")
            A("L_pad:")
            A("s_memrealtime s[100:101]")
            A("s_waitcnt lgkmcnt(0)")
            A("s_sub_u32 s100, s100, s98")
            A("s_cmp_lt_u32 s100, %d" % (o.padto * 100))
            A("s_cbranch_scc1 L_pad")
        A("v_cmp_lt_u32 vcc, 0x%x, v%d" % (HI_BITS - LO_BITS, vBad))
        A("s_nop 4")
        A("s_cbranch_vccnz L_slow")
        A("L_end:")
        A("s_endpgm")
        out += self.stubs
        out += self.slow()
        txt = [x.text for x in out]
        txt.append(".p2align 4")
        txt.append("L_table:")
        for e in table:
            txt.append(".long 0x%x, 0x%x, 0x%x, 0x%x" % tuple(e))
        return txt


def make_table(bins):
    nxt = {}
    tab = []
    for jobs in bins:
        e = []
        for (s, hh, nq) in jobs:
            u = nxt.get((s, hh), 0)
            nxt[(s, hh)] = u + nq
            q0 = CU[s] + 64 * u
            n = (CU[s + 1] - CU[s] + 31) // 32
            e += [q0 | nq << 13 | hh << 16 | n << 20, CU[s] | CU[s + 1] << 13]
        e += [0, 0] * (2 - len(jobs))
        tab.append(e)
    for s in range(8):
        for hh in range(2):
            assert nxt[(s, hh)] == (CU[s + 1] - CU[s] + 63) // 64, (s, hh, nxt)
    assert len(tab) == 32
    return tab


HEADER = """; varlen (packed, ragged) non-causal attention forward, bf16, T=6042 H=16 D=128, 8 sequences (cu is a constant of the problem)
; @launch grid=(256,1,1) block=(256,1,1) lds=%d
.amdgcn_target "amdgcn-amd-amdhsa--gfx950"
.text
.globl %s
.p2align 8
.type %s,@function
%s:
"""
FOOTER = """.section .rodata,"a"
.p2align 6
.amdhsa_kernel %s
  .amdhsa_next_free_vgpr 512
  .amdhsa_next_free_sgpr 102
  .amdhsa_accum_offset 256
  .amdhsa_group_segment_fixed_size 0
  .amdhsa_kernarg_size 56
  .amdhsa_user_sgpr_count 2
  .amdhsa_user_sgpr_kernarg_segment_ptr 1
  .amdhsa_system_sgpr_workgroup_id_x 1
.end_amdhsa_kernel
"""


def parse_bins(s):
    U = [(CU[i + 1] - CU[i] + 63) // 64 for i in range(8)]
    jobs = []
    for bi, b in enumerate(s.split()):
        for ji, j in enumerate(b.split("+")):
            if j[0] != "-":
                jobs.append((bi, ji, "ABCDEFGH".index(j[0]), int(j[1]), "ab".index(j[2]) if len(j) > 2 else None))
    hh = {}
    for s_ in range(8):
        mine = [j for j in jobs if j[2] == s_]
        best = None
        for mask in range(1 << len(mine)):
            if any(j[4] is not None and j[4] != (mask >> k & 1) for k, j in enumerate(mine)):
                continue
            if sum(j[3] for k, j in enumerate(mine) if mask >> k & 1) == U[s_]:
                sc = 0
                for h in (0, 1):
                    sc += len({j[1] for k, j in enumerate(mine) if (mask >> k & 1) == h})
                if best is None or sc < best[0]:
                    best = (sc, mask)
        for k, j in enumerate(mine):
            hh[j[:2]] = best[1] >> k & 1
    bins = [[] for _ in range(32)]
    for j in jobs:
        bins[j[0]].append((j[2], hh[j[:2]], j[3]))
    return bins


SCHED3 = "C5 C5 C5 C5 H5 H5 H5 H5 F5 F5 C3+A3 C3+A3 C3+A3 C3+A3 G4+B4 G4+B4 G4+B4 H3+B4 H3+E3 H3+E3 H3+D3 D4+D3 D4+D3 D4+D3 E4+G3 E4+G3 E4+G3 E4+G3 F3+A4 F3+A4 F3+F3 F3+F3"
SCHED3B = "F6 F6 C5 C5 C5 C5 H5 H5 H5 H5 F5 F5 C3+A3 C3+A3 C3+A3 C3+A3 G4+B4 G4+B4 G4+B4 H3+B4 H3+E3 H3+E3 H3+D3 D4+D3 D4+D3 D4+D3 E4+G3 E4+G3 E4+G3 E4+G3 F3+A4 F3+A4"
SCHED4 = "C5 C5 C5 C5 H5 H5 H5 H5 F5 F5 G4+A3 G4+A3 G4+A3 C3+A3 C3+B4 C3+B4 C3+B4 H3+B4 H3+E3 H3+E3 H3+D3 D3+D4 D3+D4 D3+D4 G3+E4 G3+E4 G3+E4 G3+E4 F3+A4 F3+A4 F3+F3 F3+F3"
SCHED4B = "F6 F6 C5 C5 C5 C5 H5 H5 H5 H5 F5 F5 G4+A3 G4+A3 G4+A3 C3+A3 C3+B4 C3+B4 C3+B4 H3+B4 H3+E3 H3+E3 H3+D3 D3+D4 D3+D4 D3+D4 G3+E4 G3+E4 G3+E4 G3+E4 F3+A4 F3+A4"
Opt.sched = SCHED3


def build(o):
    bins = parse_bins(o.sched)
    o.nqs = tuple(sorted({j[2] for b in bins for j in b}))
    o.nq1s = tuple(sorted({b[0][2] for b in bins}))
    o.nq2s = tuple(sorted({b[1][2] for b in bins if len(b) > 1}))
    o.trans = set()
    for b in bins:
        for k, (s_, hh, nq) in enumerate(b):
            n = (CU[s_ + 1] - CU[s_] + 31) // 32
            o.trans.add((nq, (n - 1) & 1, b[k + 1][2] if k + 1 < len(b) else 0))
    g = Gen(o)
    body = g.kernel(make_table(bins))
    body.append("; sched " + o.sched)
    return HEADER % (LDS_BYTES, KNAME, KNAME, KNAME) + "\n".join(body) + "\n" + FOOTER % KNAME


if __name__ == "__main__":
    o = Opt()
    path = sys.argv[1]
    for a in sys.argv[2:]:
        k, v = a.split("=")
        setattr(o, k, eval(v))
    src = build(o)
    open(path, "w").write(src)
```

```python
import sys, struct, math
from isa import I, check
from lsched import schedule

KNAME = "standalone__varlen_attn_packed__ragged_kernel"
CU = [0, 580, 1085, 2082, 2797, 3498, 4341, 5079, 6042]

R = 8
SLOT = 16640
WREG = 4160
K1OFF, V0OFF, V1OFF = 1056, 2080, 3136
FLAG = R * SLOT
STAGE = FLAG + 1280
TRACE = STAGE + 16384
LDS_BYTES = TRACE + 1024

vKa, vVa, vo0, vo1, vR, vOst, vQd, vPub, vChk, vOne, vFlag, vBad = range(1, 13)
vT1, vT2, vT3 = 13, 14, 15
vMask = 16
vS = 24
vP = 40
vL = 48
vT5 = 54
vW = 56
vO = 64
vT4 = 64
vq0, vq1, vqr = 60, 61, vFlag
aK = 0
aV = 64
aOnes = 128
aL = 132
aQ = 160
sA, sB, sO_ = 4, 8, 12
sQp, sKp, sVp, sQp2 = 16, 18, 20, 22
sSoff, sStride, sCnt, sQoff = 24, 25, 26, 27
sWb, sMlim, sRc, sDelta, sLoop, sThr, sPos, sNeg = 28, 29, 30, 31, 32, 33, 34, 35
sJ1, sJ2 = 36, 41
sC = 46
sN, sM = 52, 62
sW, sNext, sCc, sTmp, sT2, sT3 = 72, 73, 74, 76, 77, 78
sTab, sTd, sQp3 = 80, 84, 88
sSts = list(range(80, 92))
LEAD = 4
SCALE = math.log2(math.e) / math.sqrt(128.0)
SCALE_BITS = struct.unpack("<I", struct.pack("<f", SCALE))[0]
LO_BITS = (127 - 40) << 23
HI_BITS = (127 + 40) << 23


class Opt:
    ntkv = ""
    nto = "sc1"
    ntm = "sc1"
    ones = {3: 3, 4: 2, 5: 2, 6: 2}
    codepf = True
    stbias = 300
    fpos = {3: 9, 4: 9, 5: 9, 6: 9}
    a0, dq, dkv = 200, 800, 300
    s1at = 1400
    ppos = {3: 2, 4: 8, 5: 8, 6: 8}
    s2at = 2200
    hlead = 3
    stamp = False
    trace = False
    padto = 0
    padat = 0


def vr(b, n=1):
    return "v%d" % b if n == 1 else "v[%d:%d]" % (b, b + n - 1)


def ar(b, n=1):
    return "a%d" % b if n == 1 else "a[%d:%d]" % (b, b + n - 1)


def sr(b, n=1):
    return "s%d" % b if n == 1 else "s[%d:%d]" % (b, b + n - 1)


def qreg(nq, i, ks):
    if nq <= 4:
        return "v", 192 + 16 * i + 4 * ks
    free = (256 - (vO + 32 * nq)) // 16
    if i < free:
        return "v", vO + 32 * nq + 16 * i + 4 * ks
    return "a", aQ + 16 * (i - free) + 4 * ks


def qop(nq, i, ks):
    f, b = qreg(nq, i, ks)
    return vr(b, 4) if f == "v" else ar(b, 4)


def ones_blocks(nq, k):
    if k >= nq:
        return list(range(nq))
    if k == 1:
        return [0]
    if k == 2:
        return [0, (nq + 1) // 2]
    return [0] + list(range(nq - k + 1, nq))


def mf(d, a, b, c):
    return I("v_mfma_f32_16x16x32_bf16 %s, %s, %s, %s" % (d, a, b, c))


def qk(nq, i, kbuf, sset, masked):
    out = []
    for b in range(2):
        d = vr(vS + 8 * sset + 4 * b, 4)
        for ks in range(4):
            c = d if ks else (vr(vMask + 4 * b, 4) if masked else "0")
            out.append(mf(d, ar(aK + 32 * kbuf + 16 * b + 4 * ks, 4), qop(nq, i, ks), c))
    return out


def pv(i, vbuf, pset, zero):
    out = []
    for db in range(8):
        d = vr(vO + 32 * i + 4 * db, 4)
        out.append(mf(d, ar(aV + 32 * vbuf + 4 * db, 4), vr(vP + 4 * pset, 4), "0" if zero else d))
    return out


def onesm(slot, pset, zero):
    d = ar(aL + 4 * slot, 4)
    return mf(d, ar(aOnes, 4), vr(vP + 4 * pset, 4), "0" if zero else d)


def EXP(sset, j):
    r = vS + 8 * sset + j
    return I("v_exp_f32 v%d, v%d" % (r, r))


def CVT(sset, j):
    r = vS + 8 * sset + 2 * j
    return I("v_cvt_pk_bf16_f32 v%d, v%d, v%d" % (vP + 4 * sset + j, r, r + 1))


def kread(buf, b, ks):
    return I("ds_read_b128 %s, v%d offset:%d" % (ar(aK + 32 * buf + 16 * b + 4 * ks, 4), vKa, b * 512 + ks * 64))


def vread(buf, db, jj):
    return I("ds_read_b64_tr_b16 %s, v%d offset:%d" % (ar(aV + 32 * buf + 4 * db + 2 * jj, 2), vVa, jj * 512 + 32 * db))


def kvreads(buf):
    return [kread(buf, b, ks) for b in range(2) for ks in range(4)] + [vread(buf, db, jj) for db in range(8) for jj in range(2)]


def dmas(o, soff=sSoff):
    p = (" " + o.ntkv) if o.ntkv else ""
    return [I("buffer_load_dwordx4 v%d, %s, s%d offen%s lds" % (vo0, sr(sA, 4), soff, p)),
            I("buffer_load_dwordx4 v%d, %s, s%d offen offset:%d%s lds" % (vo1, sr(sA, 4), soff, K1OFF, p)),
            I("buffer_load_dwordx4 v%d, %s, s%d offen offset:%d%s lds" % (vo0, sr(sB, 4), soff, V0OFF, p)),
            I("buffer_load_dwordx4 v%d, %s, s%d offen offset:%d%s lds" % (vo1, sr(sB, 4), soff, V1OFF, p))]


def m0_adv():
    return [I("s_add_u32 m0, m0, s%d" % sPos), I("s_cmp_eq_u32 m0, s%d" % sMlim), I("s_cselect_b32 m0, s%d, m0" % sWb)]


def item_adv():
    t = ["s_add_u32 s%d, s%d, s%d" % (sSoff, sSoff, sStride), "s_sub_u32 s%d, s%d, 1" % (sCnt, sCnt),
         "s_cmov_b64 %s, %s" % (sr(sA, 2), sr(sN, 2)), "s_cmov_b64 %s, %s" % (sr(sB, 2), sr(sN + 2, 2)),
         "s_cmov_b64 %s, %s" % (sr(sSoff, 2), sr(sN + 4, 2)), "s_cmov_b32 s%d, s%d" % (sA + 2, sN + 6),
         "s_cmov_b32 s%d, s%d" % (sB + 2, sN + 7), "s_cmov_b32 s%d, s%d" % (sCnt, sN + 8)]
    for j in range(4):
        t.append("s_cmov_b64 %s, %s" % (sr(sN + 2 * j, 2), sr(sM + 2 * j, 2)))
    t += ["s_cmov_b32 s%d, s%d" % (sN + 8, sM + 8), "s_cmov_b64 %s, 0" % sr(sM + 6, 2), "s_cmov_b32 s%d, 0x7fffffff" % (sM + 8)]
    return [I(x) for x in t]


def ring_adv_s():
    return [I("s_sub_u32 s%d, s%d, 1" % (sRc, sRc)),
            I("s_cselect_b32 s%d, s%d, s%d" % (sDelta, sNeg, sPos)),
            I("s_cselect_b32 s%d, %d, s%d" % (sRc, R - 1, sRc))]


def ring_adv():
    return ring_adv_s() + [I("v_add_u32 v%d, s%d, v%d" % (vKa, sDelta, vKa)), I("v_add_u32 v%d, s%d, v%d" % (vVa, sDelta, vVa))]


class Gen:
    def __init__(self, o):
        self.o = o
        self.stubs = []
        self.nlab = 0

    def lab(self, p):
        self.nlab += 1
        return "L_%s_%d" % (p, self.nlab)

    def issue_item(self):
        return dmas(self.o) + m0_adv() + item_adv()[:2]

    def spin(self):
        spin, ret = self.lab("spin"), self.lab("spinret")
        self.stubs += [I(spin + ":"), I("ds_read_b32 v%d, v%d" % (vFlag, vChk)), I("s_waitcnt lgkmcnt(0)"),
                       I("v_cmp_gt_u32 vcc, s%d, v%d" % (sThr, vFlag)), I("s_nop 4"),
                       I("s_cbranch_vccnz " + spin), I("s_branch " + ret)]
        return I("s_cbranch_vccnz " + spin, tag=ret)

    def body(self, nq, par, first=False, entry=False, tail=None, vmextra=0):
        o = self.o
        ob = ones_blocks(nq, o.ones[nq])
        addb = [i for i in range(nq) if i not in ob]
        flags = entry or par == 1
        sset = lambda t, i: ((par ^ t) * nq + i) & 1
        gaps, vstart, flex = [], [], []

        def gap(m, E=None, fixed=None):
            gaps.append(dict(m=m, E=E, fixed=fixed or [], scal=[], flex=[]))
            return len(gaps) - 1

        lcount = {}

        def ADD(i, ss, j):
            n = lcount.get(i, 0)
            lcount[i] = n + 1
            l = vL + 2 * addb.index(i) + (n & 1)
            r = vS + 8 * ss + j
            if first and n < 2:
                return I("v_mov_b32 v%d, v%d" % (l, r))
            return I("v_add_f32 v%d, v%d, v%d" % (l, l, r))

        adds = []
        for v in range(nq):
            vstart.append(len(gaps))
            nxt_t, nxt_i = (0, v + 1) if v < nq - 1 else (1, 0)
            sc, sn = sset(0, v), sset(nxt_t, nxt_i)
            qm = qk(nq, nxt_i, par ^ nxt_t, sn, first and nxt_t == 0)
            pm = pv(v, par, sc, first)
            for g in range(16):
                m = qm[g] if g < 8 else pm[g - 8]
                E, fixed = None, []
                if g in (1, 3, 5):
                    E = (v, sc, 5 + g // 2)
                elif g in (7, 9, 11, 13, 15):
                    E = (nxt_i if nxt_t == 0 else -1, sn, (g - 7) // 2)
                if g in (2, 6):
                    fixed = [CVT(sc, 2 + g // 4)]
                if g in (10, 14):
                    fixed = [CVT(sn, (g - 10) // 4)]
                gi = gap(m, EXP(E[1], E[2]) if E else None, fixed)
                if E and E[0] in addb:
                    adds.append((E[0], gi, E[1], E[2]))
            if v in ob:
                gap(onesm(ob.index(v), sc, first))
        ng = len(gaps)
        vstart.append(ng)
        for (i, gi, ss, j) in adds:
            dl = ng - 1
            if i + 1 < nq:
                dl = vstart[i + 1] - 1 + (4 if j >= 4 else 0)
            flex.append([gi + 1, dl, 1, 5, ("add", i, ss, j)])
        kdl = vstart[nq - 1] - 5
        vdl = ng - 9
        for x in kvreads(par ^ 1):
            flex.append([0, kdl, 1, 1, x] if x.op == "ds_read_b128" else [0, vdl, 1, 2, x])
        ddl = max(ng // 2 - 4, 6)
        for d in dmas(o):
            flex.append([0, ddl, 2, 0, d])
        pend = sorted(flex, key=lambda f: (f[1], f[3]))
        slotgaps = [i for i, g in enumerate(gaps) if g["E"] is None]

        def remaining_cap(gi, upto):
            return sum(2 - len(gaps[x]["fixed"]) for x in slotgaps if gi <= x <= upto)

        bonus = set()
        ov = sum(f[2] for f in flex if f[1] <= vdl) + (3 if flags else 0) - remaining_cap(0, vdl)
        cand = [x for x in slotgaps if x <= vdl]
        for j in range(max(0, ov)):
            bonus.add(cand[(j * len(cand)) // ov] if ov <= len(cand) else cand[j % len(cand)])
        nk = nv = nd = 0
        ddone = None
        for gi in range(ng):
            g = gaps[gi]
            cap = 0 if g["E"] is not None else 2 - len(g["fixed"]) + (1 if gi in bonus else 0)
            while True:
                ready = [f for f in pend if f[0] <= gi]
                pick = next((f for f in ready if f[2] <= cap), None)
                forced = [f for f in ready if f[1] <= gi]
                if pick is None and forced:
                    pick = forced[0]
                if pick is None:
                    break
                if pick[2] == 1 and cap >= 2:
                    two = [f for f in ready if f[2] == 2]
                    urgent = [f for f in pend if f[2] == 1 and f[1] < two[0][1]] if two else []
                    if two and (not urgent or remaining_cap(gi + 1, urgent[-1][1]) + sum(1 for x in bonus if gi < x <= urgent[-1][1]) >= len(urgent)):
                        pick = two[0]
                pend.remove(pick)
                cap -= pick[2]
                ins = pick[4]
                if isinstance(ins, tuple):
                    ins = ADD(ins[1], ins[2], ins[3])
                g["flex"].append(ins)
                if ins.op == "ds_read_b128":
                    nk += 1
                    if nk == 8:
                        pend.append([gi + 1, ng - 1, 1, 6, I("v_add_u32 v%d, s%d, v%d" % (vKa, sDelta, vKa))])
                elif ins.op == "ds_read_b64_tr_b16":
                    nv += 1
                    if nv == 16:
                        pend.append([gi + 1, ng - 1, 1, 6, I("v_add_u32 v%d, s%d, v%d" % (vVa, sDelta, vVa))])
                elif ins.kind == "dma":
                    nd += 1
                    if nd == 4:
                        ddone = gi
                        if flags:
                            pg = max(gi + 2, ng // 2 - o.ppos[nq])
                            assert pg + 2 < ng - o.fpos[nq] - 3
                            pend.append([pg, pg + 4, 1, 0, I("ds_add_u32 v%d, v%d" % (vPub, vOne))])
                            pend.append([ng - o.fpos[nq] - 3, ng - o.fpos[nq], 1, 0, I("ds_read_b32 v%d, v%d" % (vFlag, vChk))])
                pend.sort(key=lambda f: (f[1], f[3]))
        assert not pend, pend
        sgaps = [i for i, g in enumerate(gaps) if not any(f.kind == "dma" for f in g["flex"])]
        used = set()

        def put(chain, lo, hi=None):
            gi = lo - 1
            for ins in chain:
                gi = min(x for x in sgaps if x > gi and x not in used)
                used.add(gi)
                gaps[gi]["scal"].append(ins)
            assert hi is None or gi <= hi, (gi, hi, chain)
            return gi

        def ds_after(pos, pred):
            seq = [f for x in range(pos) for f in gaps[x]["flex"] if f.kind == "ds"]
            return min(15, len(seq) - 1 - max(i for i, f in enumerate(seq) if pred(f)))

        find = lambda op: [x for x in range(ng) for f in gaps[x]["flex"] if f.op == op]
        kw = vstart[nq - 1] - 1
        put([I("s_waitcnt lgkmcnt(%d)" % ds_after(kw, lambda f: f.op == "ds_read_b128"))], kw, kw)
        put([I("s_waitcnt lgkmcnt(0)")], ng - 3, ng - 3)
        if flags:
            pubg = find("ds_add_u32")[0]
            assert pubg - 1 > ddone
            put([I("s_waitcnt vmcnt(%d)" % (4 * (LEAD - 1) + vmextra))], pubg - 1, pubg)
            wg = find("ds_read_b32")[0] + 5
            wg = put([I("s_waitcnt lgkmcnt(%d)" % ds_after(wg, lambda f: f.op == "ds_read_b32"))], wg, wg + 1)
            cg = min((x for x in range(wg, ng - 3) if gaps[x]["E"] is None),
                     key=lambda x: (len(gaps[x]["flex"]) + len(gaps[x]["fixed"]) >= 2, x))
            gaps[cg]["flex"].append(I("v_cmp_gt_u32 vcc, s%d, v%d" % (sThr, vFlag)))
            put([self.spin()], ng - 1, ng - 1)
        p = put(ring_adv_s(), 0, min(find("v_add_u32")) - 1)
        if flags:
            p = put([I("s_add_u32 s%d, s%d, 1" % (sThr, sThr))], p + 1, cg - 1)
        p = put(m0_adv(), max(p, ddone) + 1)
        p = put(item_adv()[:2] if entry else item_adv(), p + 1)
        tail = tail or []
        if tail:
            put(tail[:1], p + 1)
            tail = tail[1:]
        out = []
        over = 0
        for gi, g in enumerate(gaps):
            out.append(g["m"])
            for x in g["scal"]:
                out.append(x)
                if x.kind == "branch" and x.tag:
                    out.append(I(x.tag + ":"))
            out += [f for f in g["flex"] if f.kind in ("ds", "dma")]
            if g["E"] is not None:
                out.append(g["E"])
            out += g["fixed"] + [f for f in g["flex"] if f.kind not in ("ds", "dma")]
            c = sum(2 if f.kind == "dma" else 1 for f in g["flex"]) + len(g["fixed"]) + (2 if g["E"] is not None else 0)
            over += max(0, c - 2)
        out += tail
        if entry:
            out += self.issue_item()
        sys.stderr.write("body nq=%d par=%d first=%d entry=%d gaps=%d overflow=%d\n" % (nq, par, first, entry, ng, over))
        return check(out, fix=True, name="body")

    def masks(self):
        out = [I("v_mbcnt_lo_u32_b32 v%d, -1, 0" % vT1), I("v_mbcnt_hi_u32_b32 v%d, -1, v%d" % (vT1, vT1)),
               I("v_lshrrev_b32 v%d, 2, v%d" % (vT1, vT1)), I("v_and_b32 v%d, 12, v%d" % (vT1, vT1)),
               I("v_subrev_u32 v%d, s%d, v%d" % (vT1, sC + 4, vT1)),
               I("v_mov_b32 v0, 0xff800000")]
        for j in range(8):
            out += [I("v_add_u32 v%d, %d, v%d" % (vMask + j, (j & 3) + 16 * (j >> 2), vT1)),
                    I("v_ashrrev_i32 v%d, 31, v%d" % (vMask + j, vMask + j)),
                    I("v_bfi_b32 v%d, v%d, 0, v0" % (vMask + j, vMask + j))]
        return out

    def p_softmax(self, nq, i, ss, js, first, lcount):
        ob = ones_blocks(nq, self.o.ones[nq])
        addb = [x for x in range(nq) if x not in ob]
        out = []
        for j in js:
            out.append(EXP(ss, j))
            if i in addb:
                n = lcount.get(i, 0)
                lcount[i] = n + 1
                l = vL + 2 * addb.index(i) + (n & 1)
                r = vS + 8 * ss + j
                out.append(I("v_mov_b32 v%d, v%d" % (l, r)) if first and n < 2 else I("v_add_f32 v%d, v%d, v%d" % (l, l, r)))
            if j & 1:
                out.append(CVT(ss, j >> 1))
        return out

    def p_epi(self, nq, i, pol):
        o = self.o
        ob = ones_blocks(nq, o.ones[nq])
        addb = [x for x in range(nq) if x not in ob]
        out = []
        A = lambda t: out.append(I(t))
        if i in ob:
            r = vMask + 2 * ob.index(i)
            A("v_accvgpr_read_b32 v%d, a%d" % (r, aL + 4 * ob.index(i)))
        else:
            r = vL + 2 * addb.index(i)
            A("v_add_f32 v%d, v%d, v%d" % (r, r, r + 1))
            for sw in ("v_permlane16_swap_b32", "v_permlane32_swap_b32"):
                A("v_mov_b32 v%d, v%d" % (r + 1, r))
                A("%s v%d, v%d" % (sw, r, r + 1))
                A("v_add_f32 v%d, v%d, v%d" % (r, r, r + 1))
        A("v_subrev_u32 v%d, 0x%x, v%d" % (vT1, LO_BITS, r))
        A("v_rcp_f32 v%d, v%d" % (r, r))
        A("v_max_u32 v%d, v%d, v%d" % (vBad, vBad, vT1))
        p = (" " + pol) if pol else ""
        b0 = vO + 32 * i
        for d4 in range(4):
            for db in (d4, d4 + 4):
                b = b0 + 4 * db
                for j in range(2):
                    A("v_pk_mul_f32 %s, %s, %s op_sel_hi:[1,0]" % (vr(b + 2 * j, 2), vr(b + 2 * j, 2), vr(r, 2)))
                    out[-1].reads.discard(("v", r + 1))
                for j in range(2):
                    A("v_cvt_pk_bf16_f32 v%d, v%d, v%d" % (b + j, b + 2 * j, b + 2 * j + 1))
            A("ds_write2st64_b64 v%d, %s, %s offset1:4" % (vW + d4, vr(b0 + 4 * d4, 2), vr(b0 + 4 * d4 + 16, 2)))
            out[-1].mw = ["stage%d" % d4]
        for k in range(4):
            A("ds_read_b128 %s, v%d offset:%d" % (vr(b0 + 8 * k, 4), vR, 1024 * k))
            out[-1].mr = ["stage%d" % x for x in range(4)]
        for k in range(4):
            A("buffer_store_dwordx4 %s, v%d, %s, s%d offen offset:%d%s" % (vr(b0 + 8 * k, 4), vOst, sr(sO_, 4), sSts[2 * i + (k & 1)], 128 * (k >> 1), p))
            out[-1].bias = o.stbias + 64 * (4 * (nq - 1 - i) + 3 - k)
        return out

    def p_last(self, nq, par, issue):
        ob = ones_blocks(nq, self.o.ones[nq])
        sset = lambda i: (par * nq + i) & 1
        out = [I("s_mov_b32 s%d, s%d" % (sO_ + 2, sC + 1))]
        for i in range(nq):
            for e in range(2):
                out.append(I("s_add_u32 s%d, s%d, %d" % (sSts[2 * i + e], sC, (64 * i + 8 * e) * 4096)))
        out += issue
        lc = {}
        for v in range(nq):
            if v < nq - 1:
                out += qk(nq, v + 1, par, sset(v + 1), False)
            out += self.p_softmax(nq, v, sset(v), (5, 6, 7), False, lc)
            out += pv(v, par, sset(v), False)
            if v in ob:
                out.append(onesm(ob.index(v), sset(v), False))
            if v < nq - 1:
                out += self.p_softmax(nq, v + 1, sset(v + 1), (0, 1, 2, 3, 4), False, lc)
            out += self.p_epi(nq, v, self.o.ntm if issue else self.o.nto)
        return out

    def p_sync(self, vm, wait_ds, start):
        w = I("s_waitcnt vmcnt(0)")
        w.vm = vm
        w.start = start
        pub = I("ds_add_u32 v%d, v%d" % (vPub, vOne))
        pub.after = [w]
        pub.wait_ds = wait_ds
        pub.mw = ["flag"]
        pub.bias = 300
        thr = I("s_add_u32 s%d, s%d, 1" % (sThr, sThr))
        rd = I("ds_read_b32 v%d, v%d" % (vFlag, vChk))
        rd.mr = ["flag"]
        rd.start = start + 260
        cmp_ = I("v_cmp_gt_u32 vcc, s%d, v%d" % (sThr, vFlag))
        br = self.spin()
        br.reads |= {("s", sThr), ("v", vFlag)}
        br.writes |= {("v", vFlag), ("s", "vcc")}
        return [w, pub, thr, rd, cmp_, br]

    def p_prescale(self, nq, i, raw, temps):
        out = []
        for ks in range(4):
            f, dst = qreg(nq, i, ks)
            for j in range(4):
                x = raw + 4 * ks + j
                t = temps[j % len(temps)]
                out += [I("v_lshlrev_b32 v%d, 16, v%d" % (t, x)), I("v_and_b32 v%d, 0xffff0000, v%d" % (t + 1, x)),
                        I("v_pk_mul_f32 %s, %s, %s" % (vr(t, 2), vr(t, 2), sr(sCc, 2)))]
                if f == "v":
                    out.append(I("v_cvt_pk_bf16_f32 v%d, v%d, v%d" % (dst + j, t, t + 1)))
                else:
                    out += [I("v_cvt_pk_bf16_f32 v%d, v%d, v%d" % (t, t, t + 1)), I("v_accvgpr_write_b32 a%d, v%d" % (dst + j, t))]
        return out

    def t_final(self, nq, par):
        out, t = schedule(self.p_last(nq, par, []), name="final nq=%d par=%d" % (nq, par))
        out.append(I("s_waitcnt vmcnt(%d)" % sum(1 for x in out if x.kind == "vmem")))
        return out

    def t_mid(self, nq1, par, nq):
        assert nq <= LEAD
        lastissue = self.issue_item()
        s1 = self.p_sync(4 * (LEAD - nq), [], self.o.s1at)
        prog = []
        for i in range(nq):
            prog.append(I("v_add_u32 v%d, v%d, v%d" % (vMask + 1 + 2 * i, vKa, vQd)))
            prog += ring_adv()
        prog += s1
        last = self.p_last(nq1, par, lastissue)
        js, reads = [], []
        for i in range(nq):
            reads += [I("ds_read_b128 %s, v%d offset:%d" % (qop(nq, i, ks), vMask + 1 + 2 * i, 64 * ks)) for ks in range(4)]
        reads += kvreads(0)
        js += reads + ring_adv()
        for x in reads:
            x.after = [s1[-1]]
        for j in range(min(nq - 1, 2)):
            it = self.issue_item()
            it[0].after = [s1[-1]]
            js += it
        s2 = self.p_sync(lastissue[:4] if nq == LEAD else 4 * (LEAD - nq - 1), reads, 0)
        s2[0].after = list(reads)
        s2[0].start = self.o.s2at
        for x in js + lastissue:
            if x.kind == "dma":
                x.bias = 2000
        js += s2[:3]
        for i in range(nq):
            js += self.p_prescale(nq, i, qreg(nq, i, 0)[1], (vT2, vT5))
        js += self.set_compute(sJ2) + [I("s_mov_b32 s%d, 0" % sNext)]
        js += self.masks()
        js += qk(nq, 0, 0, 0, True)
        js += self.p_softmax(nq, 0, 0, (0, 1, 2, 3, 4), True, {})
        js += [I("s_sub_u32 s%d, s%d, 3" % (sLoop, sC + 3))]
        s2[3].after = [[x for x in js if x.op == "v_cvt_pk_bf16_f32"][-12]]
        js += s2[3:]
        for j in range(2, nq - 1):
            it = self.issue_item()
            it[0].after = [s2[-1]]
            js += it
        out, t = schedule(prog + last + js, name="mid %d(par %d)->%d" % (nq1, par, nq))
        if self.o.stamp == 3:
            res, k = [], 0
            st = lambda k: [I("s_memtime s[94:95]"), I("s_waitcnt lgkmcnt(0)"), I("v_writelane_b32 v62, s94, %d" % (8 + k))]
            nm = sum(1 for x in out if x.kind == "mfma")
            m = 0
            for x in out:
                if "vmcnt" in x.text or x.op == "s_cbranch_vccnz":
                    res += st(k)
                    k += 1
                res.append(x)
                if "vmcnt" in x.text or x.text.startswith("L_spinret"):
                    res += st(k)
                    k += 1
                if x.kind == "mfma":
                    m += 1
                    if m == nm - 8:
                        res += st(20)
            out = res
        return out

    def srd_kv(self):
        return [I("s_mov_b64 %s, %s" % (sr(sA, 2), sr(sKp, 2))), I("s_mov_b64 %s, %s" % (sr(sB, 2), sr(sVp, 2))),
                I("s_add_u32 s%d, s%d, %d" % (sB + 2, sJ1 + 2, V0OFF))]

    def srd_q(self):
        return [I("s_mov_b64 %s, %s" % (sr(sA, 2), sr(sQp, 2))), I("s_mov_b64 %s, %s" % (sr(sB, 2), sr(sQp3, 2))),
                I("s_sub_u32 s%d, s%d, %d" % (sB + 2, sJ1 + 2, 2 * 4096 - V0OFF))]

    def head_dmas(self, k, kind):
        d = dmas(self.o, sQoff if kind == "q" else sSoff)
        if kind == "q":
            d = [I(x.text.replace("v%d," % vo0, "v%d," % vq0).replace("v%d," % vo1, "v%d," % vq1)) for x in d]
        so = sQoff if kind == "q" else sSoff
        return d + [I("s_add_u32 m0, s%d, %d" % (sWb, ((k + 1) % R) * SLOT)),
                    I("s_add_u32 s%d, s%d, %d" % (so, so, 64 * 4096 if kind == "q" else -32 * 4096))]

    def head(self, nq):
        o = self.o
        ob = ones_blocks(nq, o.ones[nq])
        kind = ["q", "kv", "kv"] + ["q"] * (nq - 1) + ["kv"] * 5
        groups = {}
        state = ["kv"]

        def issue(k):
            out = []
            if kind[k] != state[0]:
                out += self.srd_q() if kind[k] == "q" else self.srd_kv()
                state[0] = kind[k]
            d = self.head_dmas(k, kind[k])
            groups[k] = d[:4]
            for x in d[:4]:
                x.bias = 3000
            return out + d

        prog = self.masks()
        t = o.a0
        reads = {}
        prev = None
        lastbar = None
        lc = {}
        visit = [0]
        pend = [None]

        def flush_pv():
            if pend[0] is None:
                return []
            i, tile, ss = pend[0]
            pend[0] = None
            out = pv(i, tile, ss, tile == 0)
            if i in ob:
                out.append(onesm(ob.index(i), ss, tile == 0))
            return out

        def do_visit(i, tile):
            ss = visit[0] & 1
            visit[0] += 1
            out = qk(nq, i, tile, ss, tile == 0) + flush_pv()
            out += self.p_softmax(nq, i, ss, range(8), tile == 0, lc)
            pend[0] = (i, tile, ss)
            return out

        kpos, qpos = 0, 0
        qi = nkv = 0
        bars = []
        for k in range(nq + 4):
            j = k + 3 - R
            bar = kind[k] == "kv" or (j >= 0 and kind[j] == "kv" and not any(b > j for b in bars))
            w = I("s_barrier" if bar else "s_waitcnt vmcnt(0)")
            w.vm = 4 * (2 - k) if k < 3 else groups[k]
            w.start = t
            w.after = [prev] if prev else []
            if bar:
                w.wait_ds = [x for jj in reads for x in reads[jj]]
                bars.append(k)
            prog.append(w)
            prev = w
            t += o.dq if (k + 1 < len(kind) and kind[k + 1] == "q") else o.dkv
            it = issue(k + 3)
            first = [x for x in it if x.kind == "dma"][0]
            first.after = [w]
            if j >= 0 and kind[j] == "q":
                first.wait_ds = reads[j]
            prog += it
            if k == nq + 3:
                break
            if kind[k] == "q":
                f, r0 = qreg(nq, qi, 0)
                raw = r0 if f == "v" else vO + 32 * qi
                if k % R != qpos:
                    prog.append(I("v_add_u32 v%d, %d, v%d" % (vqr, (k % R - qpos) * SLOT, vqr)))
                    qpos = k % R
                rd = [I("ds_read_b128 %s, v%d offset:%d" % (vr(raw + 4 * ks, 4), vqr, 64 * ks)) for ks in range(4)]
                prog += rd + self.p_prescale(nq, qi, raw, (vT2,) if nq > 5 else (vT2, vT5))
                if qi > 0:
                    prog += do_visit(qi, 0) + do_visit(qi, 1)
                qi += 1
            else:
                prog += [I("v_add_u32 v%d, %d, v%d" % (r, (k % R - kpos) * SLOT, r)) for r in (vKa, vVa)]
                kpos = k % R
                rd = kvreads(nkv & 1)
                prog += rd
                if nkv == 2:
                    prog += qk(nq, 0, 0, 0, False) + flush_pv() + self.p_softmax(nq, 0, 0, range(5), False, lc)
                else:
                    prog += do_visit(0, nkv)
                nkv += 1
            for x in rd:
                x.after = [w]
            reads[k] = rd
        k = nq + 3
        prog += [I("v_add_u32 v%d, %d, v%d" % (r, (k % R - kpos) * SLOT, r)) for r in (vKa, vVa)]
        prog += [I("s_mov_b32 s%d, %d" % (sRc, R - 1 - k % R)), I("s_sub_u32 s%d, s%d, 8" % (sCnt, sJ1 + 4)),
                 I("s_sub_u32 s%d, s%d, 5" % (sLoop, sC + 3))]
        out, t = schedule(prog, name="head nq=%d" % nq)
        return out

    def addr_setup(self):
        t1, t2, t3, ln = vT1, vT2, vT3, vT4
        o = []
        A = lambda s: o.append(I(s))
        A("v_lshrrev_b32 v%d, 6, v0" % t1)
        A("v_bfe_u32 v%d, v0, 4, 2" % t2)
        A("v_readfirstlane_b32 s%d, v%d" % (sW, t1))
        A("v_and_b32 v%d, 15, v0" % t3)
        A("v_lshlrev_b32 v%d, 16, v%d" % (vq0, t1))
        A("v_lshl_add_u32 v%d, v%d, 14, v%d" % (vq0, t2, vq0))
        A("v_lshl_add_u32 v%d, v%d, 4, v%d" % (vq0, t3, vq0))
        A("v_add_u32 v%d, %d, v%d" % (vq1, 4096 - K1OFF, vq0))
        A("v_lshlrev_b32 v%d, 13, v%d" % (vo0, t1))
        A("v_lshl_add_u32 v%d, v%d, 15, v%d" % (vo0, t2, vo0))
        A("v_lshl_add_u32 v%d, v%d, 4, v%d" % (vo0, t3, vo0))
        A("v_add_u32 v%d, %d, v%d" % (vo1, 4096 - K1OFF, vo0))
        early, o = o, []
        A = lambda s: o.append(I(s))
        A("v_and_b32 v%d, 63, v0" % ln)
        A("v_and_b32 v%d, 1, v%d" % (vqr, ln))
        A("v_mul_u32_u24 v%d, %d, v%d" % (vqr, K1OFF, vqr))
        A("v_bfe_u32 v%d, v%d, 1, 1" % (vT4 + 1, ln))
        A("v_mad_u32_u24 v%d, v%d, s%d, v%d" % (vqr, vT4 + 1, sT3, vqr))
        A("v_bfe_u32 v%d, v%d, 2, 2" % (vT4 + 1, ln))
        A("v_lshl_add_u32 v%d, v%d, 8, v%d" % (vqr, vT4 + 1, vqr))
        A("v_lshl_add_u32 v%d, v%d, 4, v%d" % (vqr, t2, vqr))
        A("v_mul_u32_u24 v%d, %d, v%d" % (vT4 + 1, WREG, t1))
        A("v_add_u32 v%d, v%d, v%d" % (vqr, vqr, vT4 + 1))
        A("v_lshrrev_b32 v%d, 3, v%d" % (vR, ln))
        A("v_lshl_add_u32 v%d, v%d, 4, v%d" % (vOst, t1, vR))
        A("v_lshlrev_b32 v%d, 12, v%d" % (vOst, vOst))
        A("v_and_b32 v%d, 7, v%d" % (vW, ln))
        A("v_lshl_add_u32 v%d, v%d, 4, v%d" % (vOst, vW, vOst))
        A("v_xor_b32 v%d, v%d, v%d" % (vW + 1, vW, vR))
        A("v_lshlrev_b32 v%d, 4, v%d" % (vW + 1, vW + 1))
        A("v_lshl_add_u32 v%d, v%d, 7, v%d" % (vR, vR, vW + 1))
        A("v_lshlrev_b32 v%d, 12, v%d" % (vW + 3, t1))
        A("v_add_u32 v%d, %d, v%d" % (vW + 3, STAGE, vW + 3))
        A("v_add_u32 v%d, v%d, v%d" % (vR, vR, vW + 3))
        A("v_lshrrev_b32 v%d, 1, v%d" % (vW + 1, t2))
        A("v_xor_b32 v%d, v%d, v%d" % (vW, vW, vW + 1))
        A("v_lshlrev_b32 v%d, 4, v%d" % (vW, vW))
        A("v_and_b32 v%d, 1, v%d" % (vW + 1, t2))
        A("v_lshl_add_u32 v%d, v%d, 3, v%d" % (vW, vW + 1, vW))
        A("v_lshl_add_u32 v%d, v%d, 7, v%d" % (vW, t3, vW))
        A("v_add_u32 v%d, v%d, v%d" % (vW, vW, vW + 3))
        A("v_xor_b32 v%d, 32, v%d" % (vW + 1, vW))
        A("v_xor_b32 v%d, 64, v%d" % (vW + 2, vW))
        A("v_xor_b32 v%d, 0x60, v%d" % (vW + 3, vW))
        A("v_bfe_u32 v%d, v%d, 1, 2" % (vKa, ln))
        A("v_mul_u32_u24 v%d, %d, v%d" % (vKa, WREG, vKa))
        A("v_and_b32 v%d, 1, v%d" % (vT4 + 1, ln))
        A("v_mul_u32_u24 v%d, %d, v%d" % (vT4 + 2, K1OFF, vT4 + 1))
        A("v_add_u32 v%d, v%d, v%d" % (vKa, vKa, vT4 + 2))
        A("v_bfe_u32 v%d, v%d, 3, 1" % (vT4 + 2, ln))
        A("v_lshl_add_u32 v%d, v%d, 8, v%d" % (vKa, vT4 + 2, vKa))
        A("v_lshl_add_u32 v%d, v%d, 4, v%d" % (vKa, t2, vKa))
        A("v_lshrrev_b32 v%d, 1, v%d" % (vT4 + 3, t1))
        A("v_mul_u32_u24 v%d, %d, v%d" % (vQd, V0OFF, vT4 + 3))
        A("v_and_b32 v%d, 1, v%d" % (vT4 + 3, t1))
        A("v_lshl_add_u32 v%d, v%d, 9, v%d" % (vQd, vT4 + 3, vQd))
        A("v_bfe_u32 v%d, v%d, 3, 2" % (vVa, ln))
        A("v_mul_u32_u24 v%d, %d, v%d" % (vVa, WREG, vVa))
        A("v_bfe_u32 v%d, v%d, 2, 1" % (vT4 + 2, ln))
        A("v_mul_u32_u24 v%d, %d, v%d" % (vT4 + 2, V1OFF - V0OFF, vT4 + 2))
        A("v_add_u32 v%d, v%d, v%d" % (vVa, vVa, vT4 + 2))
        A("v_lshrrev_b32 v%d, 5, v%d" % (vT4 + 2, ln))
        A("v_lshl_add_u32 v%d, v%d, 8, v%d" % (vVa, vT4 + 2, vVa))
        A("v_and_b32 v%d, 3, v%d" % (vT4 + 2, ln))
        A("v_lshl_add_u32 v%d, v%d, 3, v%d" % (vVa, vT4 + 2, vVa))
        A("v_add_u32 v%d, %d, v%d" % (vVa, V0OFF, vVa))
        A("v_mul_u32_u24 v%d, 260, v%d" % (vChk, vT4 + 2))
        A("v_add_u32 v%d, %d, v%d" % (vChk, FLAG, vChk))
        A("v_lshlrev_b32 v%d, 2, v0" % vPub)
        A("v_add_u32 v%d, %d, v%d" % (vPub, FLAG, vPub))
        A("v_mov_b32 v%d, 1" % vOne)
        return early, [I("s_mov_b32 s%d, %d" % (sT3, V0OFF))] + o

    def decode_job(self, d0, d1, dst):
        o = []
        A = lambda s: o.append(I(s))
        A("s_bfe_u32 s%d, s%d, 0x10010" % (sT2, d0))
        A("s_lshl_b32 s%d, s%d, 8" % (sT2, sT2))
        A("s_add_u32 s%d, s%d, s%d" % (sT2, sT2, sTmp))
        A("s_and_b32 s%d, s%d, 0x1fff" % (dst, d0))
        A("s_lshl_b32 s%d, s%d, 12" % (dst, dst))
        A("s_add_u32 s%d, s%d, s%d" % (dst, dst, sT2))
        A("s_lshr_b32 s%d, s%d, 13" % (dst + 2, d1))
        A("s_lshl_b32 s%d, s%d, 12" % (dst + 2, dst + 2))
        p2 = []
        B = lambda s: p2.append(I(s))
        B("s_and_b32 s%d, s%d, 0x1fff" % (dst + 1, d1))
        B("s_lshl_b32 s%d, s%d, 12" % (dst + 1, dst + 1))
        B("s_add_u32 s%d, s%d, s%d" % (dst + 1, dst + 1, sT2))
        B("s_bfe_u32 s%d, s%d, 0x3000d" % (dst + 3, d0))
        B("s_lshr_b32 s%d, s%d, 20" % (dst + 4, d0))
        return o, p2

    def set_compute(self, j):
        o = []
        A = lambda s: o.append(I(s))
        A("s_mov_b32 s%d, s%d" % (sC, j))
        A("s_mov_b32 s%d, s%d" % (sC + 1, j + 2))
        A("s_mov_b32 s%d, s%d" % (sC + 3, j + 4))
        A("s_lshr_b32 s%d, s%d, 12" % (sT2, j + 2))
        A("s_lshr_b32 s%d, s%d, 12" % (sT3, j + 1))
        A("s_sub_u32 s%d, s%d, s%d" % (sT2, sT2, sT3))
        A("s_lshl_b32 s%d, s%d, 5" % (sT3, j + 4))
        A("s_sub_u32 s%d, s%d, s%d" % (sT2, sT2, sT3))
        A("s_add_u32 s%d, s%d, 32" % (sC + 4, sT2))
        return o

    def queue_setup(self):
        o = []
        A = lambda s: o.append(I(s))
        j = sJ2
        A("s_mov_b64 %s, %s" % (sr(sN, 2), sr(sQp, 2)))
        A("s_mov_b64 %s, %s" % (sr(sN + 2, 2), sr(sQp2, 2)))
        A("s_mov_b32 s%d, s%d" % (sN + 4, j))
        A("s_mov_b32 s%d, %d" % (sN + 5, 64 * 4096))
        A("s_mov_b64 %s, %s" % (sr(sM, 2), sr(sKp, 2)))
        A("s_mov_b64 %s, %s" % (sr(sM + 2, 2), sr(sVp, 2)))
        A("s_sub_u32 s%d, s%d, 1" % (sM + 8, j + 4))
        A("s_lshl_b32 s%d, s%d, 17" % (sM + 4, sM + 8))
        A("s_add_u32 s%d, s%d, s%d" % (sM + 4, sM + 4, j + 1))
        A("s_mov_b32 s%d, %d" % (sM + 5, -32 * 4096))
        A("s_mov_b32 s%d, s%d" % (sN + 6, j + 2))
        A("s_sub_u32 s%d, s%d, %d" % (sN + 7, j + 2, 32 * 4096 - V0OFF))
        A("s_sub_u32 s%d, s%d, 1" % (sN + 8, j + 3))
        A("s_mov_b32 s%d, s%d" % (sM + 6, j + 2))
        A("s_add_u32 s%d, s%d, %d" % (sM + 7, j + 2, V0OFF))
        A("s_cmp_eq_u32 s%d, 0" % (j + 3))
        A("s_cmov_b64 %s, 0" % sr(sN + 6, 2))
        A("s_cmov_b32 s%d, 0x7fffffff" % (sN + 8))
        return o

    def slow(self):
        o = []
        A = lambda s: o.append(I(s))
        Qf, Kf, Vf, Oa, S, P = 192, 128, 160, 64, vS, vP
        m, l, al, t, u = vL, vL + 1, vL + 2, vL + 3, vL + 4
        vSrc, vG4, vSt = vL + 5, vL + 6, vL + 7
        sJob, sBlk, sTile, sRow, sLeft, sBase, sSt = range(sN, sN + 7)
        sj = sM
        A("L_slow:")
        A("s_waitcnt vmcnt(0)")
        A("v_mbcnt_lo_u32_b32 v0, -1, 0")
        A("v_mbcnt_hi_u32_b32 v0, -1, v0")
        A("v_lshrrev_b32 v%d, 4, v0" % vG4)
        A("v_and_b32 v%d, 15, v0" % t)
        A("v_lshlrev_b32 v%d, 15, v%d" % (vSrc, vG4))
        A("v_lshl_add_u32 v%d, v%d, 4, v%d" % (vSrc, t, vSrc))
        A("v_lshlrev_b32 v%d, 2, v%d" % (vG4, vG4))
        A("s_lshl_b32 s%d, s%d, 6" % (sT2, sW))
        A("v_add_u32 v0, s%d, v0" % sT2)
        o += sum(self.addr_setup(), [])
        A("v_lshl_add_u32 v%d, v%d, 4, v%d" % (vOst, vT1, vT3))
        A("v_lshlrev_b32 v%d, 12, v%d" % (vOst, vOst))
        A("v_lshl_add_u32 v%d, v%d, 3, v%d" % (vSt, vT2, vOst))
        A("v_lshl_add_u32 v%d, v%d, 4, v%d" % (vOst, vT2, vOst))
        A("s_mul_i32 s%d, s%d, %d" % (sBase, sW, SLOT))
        A("v_add_u32 v%d, s%d, v%d" % (vKa, sBase, vKa))
        A("v_add_u32 v%d, s%d, v%d" % (vVa, sBase, vVa))
        A("s_mov_b32 s%d, 0" % sJob)
        for j in range(5):
            A("s_mov_b32 s%d, s%d" % (sj + j, sJ1 + j))
        A("L_slow_job:")
        A("s_mov_b32 s%d, 0" % sBlk)
        A("L_slow_blk:")
        A("s_mov_b64 %s, %s" % (sr(sA, 2), sr(sQp, 2)))
        A("s_mov_b32 s%d, s%d" % (sA + 2, sj + 2))
        A("s_lshl_b32 s%d, s%d, 18" % (sSt, sBlk))
        A("s_add_u32 s%d, s%d, s%d" % (sSt, sSt, sj))
        for ks in range(4):
            A("buffer_load_dwordx4 %s, v%d, %s, s%d offen offset:%d" % (vr(Kf + 4 * ks, 4), vOst, sr(sA, 4), sSt, 64 * ks))
        A("s_waitcnt vmcnt(0)")
        for j in range(16):
            A("v_lshlrev_b32 v%d, 16, v%d" % (t, Kf + j))
            A("v_and_b32 v%d, 0xffff0000, v%d" % (u, Kf + j))
            A("v_mul_f32 v%d, s%d, v%d" % (t, sCc, t))
            A("v_mul_f32 v%d, s%d, v%d" % (u, sCc, u))
            A("v_cvt_pk_bf16_f32 v%d, v%d, v%d" % (Qf + j, t, u))
        for j in range(32):
            A("v_mov_b32 v%d, 0" % (Oa + j))
        A("v_mov_b32 v%d, 0xff800000" % m)
        A("v_mov_b32 v%d, 0" % l)
        A("s_mov_b64 %s, %s" % (sr(sA, 2), sr(sKp, 2)))
        A("s_mov_b64 %s, %s" % (sr(sB, 2), sr(sVp, 2)))
        A("s_add_u32 s%d, s%d, %d" % (sB + 2, sj + 2, V0OFF))
        A("s_mov_b32 s%d, s%d" % (sRow, sj + 1))
        A("s_lshr_b32 s%d, s%d, 12" % (sLeft, sj + 2))
        A("s_lshr_b32 s%d, s%d, 12" % (sT2, sj + 1))
        A("s_sub_u32 s%d, s%d, s%d" % (sLeft, sLeft, sT2))
        A("s_mov_b32 s%d, s%d" % (sTile, sj + 4))
        A("L_slow_tile:")
        for sg in range(8):
            A("s_add_u32 s%d, s%d, %d" % (sT2, sRow, sg * 4096))
            A("s_add_u32 m0, s%d, %d" % (sBase, (sg >> 1) * WREG + (sg & 1) * K1OFF))
            A("buffer_load_dwordx4 v%d, %s, s%d offen lds" % (vSrc, sr(sA, 4), sT2))
            A("buffer_load_dwordx4 v%d, %s, s%d offen offset:%d lds" % (vSrc, sr(sB, 4), sT2, V0OFF))
        A("s_waitcnt vmcnt(0)")
        for b in range(2):
            for ks in range(4):
                A("ds_read_b128 %s, v%d offset:%d" % (vr(Kf + 16 * b + 4 * ks, 4), vKa, b * 512 + ks * 64))
        A("s_waitcnt lgkmcnt(0)")
        for db in range(8):
            for jj in range(2):
                A("ds_read_b64_tr_b16 %s, v%d offset:%d" % (vr(Vf + 4 * db + 2 * jj, 2), vVa, jj * 512 + 32 * db))
        for b in range(2):
            for ks in range(4):
                d = vr(S + 4 * b, 4)
                o.append(mf(d, vr(Kf + 16 * b + 4 * ks, 4), vr(Qf + 4 * ks, 4), d if ks else "0"))
        A("v_mov_b32 v%d, 0xff800000" % u)
        for j in range(8):
            A("v_add_u32 v%d, %d, v%d" % (t, (j & 3) + 16 * (j >> 2), vG4))
            A("v_cmp_gt_u32 vcc, s%d, v%d" % (sLeft, t))
            A("v_cndmask_b32 v%d, v%d, v%d, vcc" % (S + j, u, S + j))
        A("v_max3_f32 v%d, v%d, v%d, v%d" % (t, S, S + 1, S + 2))
        A("v_max3_f32 v%d, v%d, v%d, v%d" % (t, t, S + 3, S + 4))
        A("v_max3_f32 v%d, v%d, v%d, v%d" % (t, t, S + 5, S + 6))
        A("v_max3_f32 v%d, v%d, v%d, v%d" % (t, t, S + 7, m))
        for sw in ("v_permlane16_swap_b32", "v_permlane32_swap_b32"):
            A("v_mov_b32 v%d, v%d" % (u, t))
            A("%s v%d, v%d" % (sw, t, u))
            A("v_max_f32 v%d, v%d, v%d" % (t, t, u))
        A("v_sub_f32 v%d, v%d, v%d" % (al, m, t))
        A("v_exp_f32 v%d, v%d" % (al, al))
        A("v_mov_b32 v%d, v%d" % (m, t))
        for j in range(8):
            A("v_sub_f32 v%d, v%d, v%d" % (S + j, S + j, m))
        for j in range(8):
            A("v_exp_f32 v%d, v%d" % (S + j, S + j))
        A("v_mul_f32 v%d, v%d, v%d" % (l, l, al))
        for j in range(8):
            A("v_add_f32 v%d, v%d, v%d" % (l, l, S + j))
        for j in range(4):
            A("v_cvt_pk_bf16_f32 v%d, v%d, v%d" % (P + j, S + 2 * j, S + 2 * j + 1))
        for j in range(32):
            A("v_mul_f32 v%d, v%d, v%d" % (Oa + j, Oa + j, al))
        A("s_waitcnt lgkmcnt(0)")
        for db in range(8):
            d = vr(Oa + 4 * db, 4)
            o.append(mf(d, vr(Vf + 4 * db, 4), vr(P, 4), d))
        A("s_add_u32 s%d, s%d, %d" % (sRow, sRow, 32 * 4096))
        A("s_sub_u32 s%d, s%d, 32" % (sLeft, sLeft))
        A("s_nop 7")
        A("s_sub_u32 s%d, s%d, 1" % (sTile, sTile))
        A("s_cmp_lg_u32 s%d, 0" % sTile)
        A("s_cbranch_scc1 L_slow_tile")
        for sw in ("v_permlane16_swap_b32", "v_permlane32_swap_b32"):
            A("v_mov_b32 v%d, v%d" % (u, l))
            A("%s v%d, v%d" % (sw, l, u))
            A("v_add_f32 v%d, v%d, v%d" % (l, l, u))
        A("v_rcp_f32 v%d, v%d" % (l, l))
        A("s_mov_b32 s%d, s%d" % (sO_ + 2, sj + 2))
        for j in range(32):
            A("v_mul_f32 v%d, v%d, v%d" % (Oa + j, Oa + j, l))
        for db in range(8):
            b = Oa + 4 * db
            for j in range(2):
                A("v_cvt_pk_bf16_f32 v%d, v%d, v%d" % (b + j, b + 2 * j, b + 2 * j + 1))
            A("buffer_store_dwordx2 %s, v%d, %s, s%d offen offset:%d" % (vr(b, 2), vSt, sr(sO_, 4), sSt, 32 * db))
        A("s_waitcnt vmcnt(0)")
        A("s_add_u32 s%d, s%d, 1" % (sBlk, sBlk))
        A("s_cmp_lt_u32 s%d, s%d" % (sBlk, sj + 3))
        A("s_cbranch_scc1 L_slow_blk")
        A("s_cmp_lg_u32 s%d, 0" % sJob)
        A("s_cbranch_scc1 L_end")
        A("s_mov_b32 s%d, 1" % sJob)
        for j in range(5):
            A("s_mov_b32 s%d, s%d" % (sj + j, sJ2 + j))
        A("s_cmp_lg_u32 s%d, 0" % (sj + 3))
        A("s_cbranch_scc1 L_slow_job")
        A("s_branch L_end")
        return check(o, fix=True, name="slow")

    def trace_init(self):
        if not self.o.trace:
            return []
        return [I("s_lshl_b32 s92, s%d, 8" % sW), I("s_add_u32 s92, s92, %d" % TRACE), I("v_mov_b32 v61, s92")]

    def padmark(self, idx):
        return [I("s_memrealtime s[98:99]")] if self.o.padto and self.o.padat == idx else []

    def stamp(self, idx):
        if not self.o.stamp:
            return self.padmark(idx) if idx else []
        return [I("s_memtime s[94:95]"), I("s_memrealtime s[96:97]"), I("s_waitcnt lgkmcnt(0)"),
                I("v_writelane_b32 v62, s94, %d" % idx), I("v_writelane_b32 v63, s96, %d" % idx)]

    def kernel(self, table):
        o = self.o
        out = []
        A = lambda s: out.append(I(s))
        A("s_cmp_ge_u32 s2, 256")
        A("s_cbranch_scc1 L_end")
        out += self.stamp(0)
        out += self.padmark(0)
        A("s_load_dwordx4 %s, s[0:1], 0" % sr(sQp, 4))
        A("s_load_dwordx2 %s, s[0:1], 16" % sr(sVp, 2))
        A("s_getpc_b64 %s" % sr(sTab, 2))
        A("L_pc:")
        A("s_lshr_b32 s%d, s2, 3" % sTmp)
        A("s_lshl_b32 s%d, s%d, 4" % (sT2, sTmp))
        A("s_add_u32 s%d, s%d, L_table-L_pc" % (sT2, sT2))
        A("s_add_u32 s%d, s%d, s%d" % (sTab + 2, sTab, sT2))
        A("s_addc_u32 s%d, s%d, 0" % (sTab + 3, sTab + 1))
        A("s_load_dwordx4 %s, %s, 0" % (sr(sTd, 4), sr(sTab + 2, 2)))
        A("s_load_dwordx2 %s, s[0:1], 32" % sr(sO_, 2))
        early, late = self.addr_setup()
        if o.codepf:
            A("s_mul_i32 s%d, s%d, 3072" % (sT2, sTmp))
            A("v_min_u32 v%d, 23, v0" % vT4)
            A("v_lshl_add_u32 v%d, v%d, 7, s%d" % (vT4, vT4, sT2))
            A("v_min_u32 v%d, L_slow-L_pc-8, v%d" % (vT4, vT4))
            A("global_load_dword v%d, v%d, %s" % (vT4 + 4, vT4, sr(sTab, 2)))
        out += early
        A("s_mov_b32 s%d, 0x20000" % (sA + 3))
        A("s_mov_b32 s%d, 0x20000" % (sB + 3))
        A("s_mul_i32 s%d, s%d, %d" % (sWb, sW, WREG))
        A("s_and_b32 s%d, s2, 7" % sTmp)
        A("s_lshl_b32 s%d, s%d, 9" % (sTmp, sTmp))
        A("s_mov_b32 m0, s%d" % sWb)
        A("s_waitcnt lgkmcnt(0)")
        A("s_add_u32 s%d, s%d, %d" % (sQp3, sQp, 2 * 4096 - V0OFF))
        A("s_addc_u32 s%d, s%d, 0" % (sQp3 + 1, sQp + 1))
        d1a, d1b = self.decode_job(sTd, sTd + 1, sJ1)
        out += d1a + self.srd_q() + [I("s_mov_b32 s%d, s%d" % (sA + 2, sJ1 + 2)), I("s_mov_b32 s%d, s%d" % (sQoff, sJ1))]
        out += self.head_dmas(0, "q")
        A("s_sub_u32 s%d, s%d, %d" % (sVp, sVp, V0OFF))
        A("s_subb_u32 s%d, s%d, 0" % (sVp + 1, sVp + 1))
        out += d1b
        A("s_sub_u32 s%d, s%d, 1" % (sSoff, sJ1 + 4))
        A("s_lshl_b32 s%d, s%d, 17" % (sSoff, sSoff))
        A("s_add_u32 s%d, s%d, s%d" % (sSoff, sSoff, sJ1 + 1))
        out += self.srd_kv() + self.head_dmas(1, "kv") + self.head_dmas(2, "kv")
        out += late
        A("v_mov_b32 v%d, 0" % vBad)
        A("ds_write_b32 v%d, v%d" % (vPub, vBad))
        A("v_mov_b32 v%d, 0x3f803f80" % vT1)
        for j in range(4):
            A("v_accvgpr_write_b32 a%d, v%d" % (aOnes + j, vT1))
        A("s_add_u32 s%d, s%d, %d" % (sMlim, sWb, R * SLOT))
        A("s_mov_b32 s%d, 0" % sThr)
        A("s_mov_b32 s%d, %d" % (sPos, SLOT))
        A("s_mov_b32 s%d, %d" % (sNeg, -(R - 1) * SLOT))
        A("s_mov_b32 s%d, 0x%x" % (sCc, SCALE_BITS))
        A("s_mov_b32 s%d, 0x%x" % (sCc + 1, SCALE_BITS))
        A("s_mov_b32 s%d, 0x20000" % (sO_ + 3))
        A("s_mov_b32 s%d, 0" % (sO_ + 2))
        A("s_mov_b32 s%d, %d" % (sStride, -32 * 4096))
        A("s_add_u32 s%d, s%d, %d" % (sQp2, sQp, 32 * 4096 - V0OFF))
        A("s_addc_u32 s%d, s%d, 0" % (sQp2 + 1, sQp + 1))
        d2a, d2b = self.decode_job(sTd + 2, sTd + 3, sJ2)
        out += d2a + d2b + self.queue_setup() + self.set_compute(sJ1)
        A("s_mov_b32 s%d, s%d" % (sNext, sJ2 + 3))
        A("s_waitcnt lgkmcnt(0)")
        out += self.stamp(1)
        for nq in o.nq1s[:-1]:
            out += [I("s_cmp_eq_u32 s%d, %d" % (sJ1 + 3, nq)), I("s_cbranch_scc1 L_first%d" % nq)]
        A("s_branch L_first%d" % o.nq1s[-1])
        out = check(out, fix=True, name="entry")
        b0s, tails = {}, []
        mids = {k: self.t_mid(*k) for k in sorted(o.trans) if k[2]}

        def stores_behind(k):
            d = [i for i, x in enumerate(mids[k]) if x.kind == "dma"][4 * (k[2] - LEAD + 1) + 3]
            return sum(1 for x in mids[k][d:] if x.kind == "vmem")
        for nq in o.nqs:
            dec = I("s_sub_u32 s%d, s%d, 1" % (sLoop, sLoop))
            bA = self.body(nq, 1, tail=[dec, I("s_cbranch_scc1 L_last0_%d" % nq)])
            bB = self.body(nq, 0, tail=[dec, I("s_cbranch_scc0 L_loop%d" % nq)])
            check(bA + bB + bA, name="loop")
            if nq in o.nq2s:
                b0s[nq] = self.body(nq, 0, first=True, entry=True, vmextra=min(stores_behind(k) for k in mids if k[2] == nq))
                check(b0s[nq] + bA, name="b0-bA")
                out += [I("L_body%d:" % nq)] + self.stamp(2) + b0s[nq] + self.stamp(5)
                if nq in o.nq1s:
                    out += [I("s_branch L_loop%d" % nq)]
            if nq in o.nq1s:
                h = self.head(nq)
                b2 = self.body(nq, 0, entry=True)
                check(h + b2 + bA, name="head-b2-bA")
                out += [I("L_first%d:" % nq)] + h + self.trace_init() + self.stamp(2) + self.padmark(12) + b2 + self.stamp(5)
            if o.trace:
                tr0 = [I("s_memtime s[98:99]")]
                tr1 = [I("v_mov_b32 v60, s98"), I("ds_write_b32 v61, v60"), I("v_add_u32 v61, 4, v61")]
                bA = tr0 + bA[:-1] + tr1 + bA[-1:]
                bB = tr0 + bB[:-1] + tr1 + bB[-1:]
            out += [I(".p2align 6"), I("L_loop%d:" % nq)] + bA + bB
            for par in (1, 0):
                prev = bB if par else bA
                out += [I("L_last%d_%d:" % (par, nq))] + self.stamp(3)
                nxt = sorted({b for (a, p_, b) in o.trans if a == nq and p_ == par})
                for b in nxt[:-1]:
                    out += [I("s_cmp_eq_u32 s%d, %d" % (sNext, b)), I("s_cbranch_scc1 L_t%d_%d_%d" % (nq, par, b))]
                for b in reversed(nxt):
                    t = mids[(nq, par, b)] if b else self.t_final(nq, par)
                    check(prev + t, name="loop-t")
                    out += [I("L_t%d_%d_%d:" % (nq, par, b))] + t + self.stamp(4)
                    if b:
                        tails.append((t, b))
                        if o.stamp:
                            out += [I("v_mov_b32 v60, v62"), I("v_mov_b32 v61, v63")]
                        out += [I("s_branch L_body%d" % b)]
                    else:
                        out += [I("s_branch L_fin")]
                if not nxt:
                    out += [I("s_branch L_fin")]
        for t, b in tails:
            check(t + b0s[b], name="t-b0")
        A = lambda s: out.append(I(s))
        A("L_fin:")
        A("s_barrier")
        if o.stamp or o.trace:
            out += self.stamp(6)
            A("s_waitcnt vmcnt(0)")
            out += self.stamp(7)
            A("s_load_dwordx2 s[4:5], s[0:1], 48")
            A("v_mbcnt_lo_u32_b32 v70, -1, 0")
            A("v_mbcnt_hi_u32_b32 v70, -1, v70")
            A("s_mov_b32 s6, 0x1000000")
            A("s_lshl_b32 s3, s2, 2")
            A("s_add_u32 s3, s3, s%d" % sW)
            if o.stamp:
                A("s_lshl_b32 s3, s3, 10")
                A("v_lshlrev_b32 v70, 4, v70")
                A("s_waitcnt lgkmcnt(0)")
                A("buffer_store_dwordx4 v[60:63], v70, s[4:7], s3 offen")
            else:
                A("s_lshl_b32 s3, s3, 8")
                A("v_lshlrev_b32 v70, 2, v70")
                A("s_lshl_b32 s92, s%d, 8" % sW)
                A("s_add_u32 s92, s92, %d" % TRACE)
                A("v_add_u32 v71, s92, v70")
                A("ds_read_b32 v72, v71")
                A("s_waitcnt lgkmcnt(0)")
                A("buffer_store_dword v72, v70, s[4:7], s3 offen")
        if o.padto:
            out += self.padmark(6)
            A("s_waitcnt vmcnt(0)")
            out += self.padmark(7)
            A("s_waitcnt lgkmcnt(0)")
            A("L_pad:")
            A("s_memrealtime s[100:101]")
            A("s_waitcnt lgkmcnt(0)")
            A("s_sub_u32 s100, s100, s98")
            A("s_cmp_lt_u32 s100, %d" % (o.padto * 100))
            A("s_cbranch_scc1 L_pad")
        A("v_cmp_lt_u32 vcc, 0x%x, v%d" % (HI_BITS - LO_BITS, vBad))
        A("s_nop 4")
        A("s_cbranch_vccnz L_slow")
        A("L_end:")
        A("s_endpgm")
        out += self.stubs
        out += self.slow()
        txt = [x.text for x in out]
        txt.append(".p2align 4")
        txt.append("L_table:")
        for e in table:
            txt.append(".long 0x%x, 0x%x, 0x%x, 0x%x" % tuple(e))
        return txt


def make_table(bins):
    nxt = {}
    tab = []
    for jobs in bins:
        e = []
        for (s, hh, nq) in jobs:
            u = nxt.get((s, hh), 0)
            nxt[(s, hh)] = u + nq
            q0 = CU[s] + 64 * u
            n = (CU[s + 1] - CU[s] + 31) // 32
            e += [q0 | nq << 13 | hh << 16 | n << 20, CU[s] | CU[s + 1] << 13]
        e += [0, 0] * (2 - len(jobs))
        tab.append(e)
    for s in range(8):
        for hh in range(2):
            assert nxt[(s, hh)] == (CU[s + 1] - CU[s] + 63) // 64, (s, hh, nxt)
    assert len(tab) == 32
    return tab


HEADER = """; varlen (packed, ragged) non-causal attention forward, bf16, T=6042 H=16 D=128, 8 sequences (cu is a constant of the problem)
; @launch grid=(256,1,1) block=(256,1,1) lds=%d
.amdgcn_target "amdgcn-amd-amdhsa--gfx950"
.text
.globl %s
.p2align 8
.type %s,@function
%s:
"""
FOOTER = """.section .rodata,"a"
.p2align 6
.amdhsa_kernel %s
  .amdhsa_next_free_vgpr 512
  .amdhsa_next_free_sgpr 102
  .amdhsa_accum_offset 256
  .amdhsa_group_segment_fixed_size 0
  .amdhsa_kernarg_size 56
  .amdhsa_user_sgpr_count 2
  .amdhsa_user_sgpr_kernarg_segment_ptr 1
  .amdhsa_system_sgpr_workgroup_id_x 1
.end_amdhsa_kernel
"""


def parse_bins(s):
    U = [(CU[i + 1] - CU[i] + 63) // 64 for i in range(8)]
    jobs = []
    for bi, b in enumerate(s.split()):
        for ji, j in enumerate(b.split("+")):
            if j[0] != "-":
                jobs.append((bi, ji, "ABCDEFGH".index(j[0]), int(j[1]), "ab".index(j[2]) if len(j) > 2 else None))
    hh = {}
    for s_ in range(8):
        mine = [j for j in jobs if j[2] == s_]
        best = None
        for mask in range(1 << len(mine)):
            if any(j[4] is not None and j[4] != (mask >> k & 1) for k, j in enumerate(mine)):
                continue
            if sum(j[3] for k, j in enumerate(mine) if mask >> k & 1) == U[s_]:
                sc = 0
                for h in (0, 1):
                    sc += len({j[1] for k, j in enumerate(mine) if (mask >> k & 1) == h})
                if best is None or sc < best[0]:
                    best = (sc, mask)
        for k, j in enumerate(mine):
            hh[j[:2]] = best[1] >> k & 1
    bins = [[] for _ in range(32)]
    for j in jobs:
        bins[j[0]].append((j[2], hh[j[:2]], j[3]))
    return bins


SCHED3 = "C5 C5 C5 C5 H5 H5 H5 H5 F5 F5 C3+A3 C3+A3 C3+A3 C3+A3 G4+B4 G4+B4 G4+B4 H3+B4 H3+E3 H3+E3 H3+D3 D4+D3 D4+D3 D4+D3 E4+G3 E4+G3 E4+G3 E4+G3 F3+A4 F3+A4 F3+F3 F3+F3"
SCHED3B = "F6 F6 C5 C5 C5 C5 H5 H5 H5 H5 F5 F5 C3+A3 C3+A3 C3+A3 C3+A3 G4+B4 G4+B4 G4+B4 H3+B4 H3+E3 H3+E3 H3+D3 D4+D3 D4+D3 D4+D3 E4+G3 E4+G3 E4+G3 E4+G3 F3+A4 F3+A4"
SCHED4 = "C5 C5 C5 C5 H5 H5 H5 H5 F5 F5 G4+A3 G4+A3 G4+A3 C3+A3 C3+B4 C3+B4 C3+B4 H3+B4 H3+E3 H3+E3 H3+D3 D3+D4 D3+D4 D3+D4 G3+E4 G3+E4 G3+E4 G3+E4 F3+A4 F3+A4 F3+F3 F3+F3"
SCHED4B = "F6 F6 C5 C5 C5 C5 H5 H5 H5 H5 F5 F5 G4+A3 G4+A3 G4+A3 C3+A3 C3+B4 C3+B4 C3+B4 H3+B4 H3+E3 H3+E3 H3+D3 D3+D4 D3+D4 D3+D4 G3+E4 G3+E4 G3+E4 G3+E4 F3+A4 F3+A4"
Opt.sched = SCHED4


def build(o):
    bins = parse_bins(o.sched)
    o.nqs = tuple(sorted({j[2] for b in bins for j in b}))
    o.nq1s = tuple(sorted({b[0][2] for b in bins}))
    o.nq2s = tuple(sorted({b[1][2] for b in bins if len(b) > 1}))
    o.trans = set()
    for b in bins:
        for k, (s_, hh, nq) in enumerate(b):
            n = (CU[s_ + 1] - CU[s_] + 31) // 32
            o.trans.add((nq, (n - 1) & 1, b[k + 1][2] if k + 1 < len(b) else 0))
    g = Gen(o)
    body = g.kernel(make_table(bins))
    body.append("; sched " + o.sched)
    return HEADER % (LDS_BYTES, KNAME, KNAME, KNAME) + "\n".join(body) + "\n" + FOOTER % KNAME


if __name__ == "__main__":
    o = Opt()
    path = sys.argv[1]
    for a in sys.argv[2:]:
        k, v = a.split("=")
        setattr(o, k, eval(v))
    src = build(o)
    open(path, "w").write(src)
```

```python
import sys
from isa import I, check, VAL

SCC_W = ("s_add_u32", "s_sub_u32", "s_addc_u32", "s_subb_u32", "s_cmp", "s_lshl", "s_lshr", "s_and", "s_or", "s_bfe", "s_min", "s_max")
SCC_R = ("s_cselect", "s_cmov", "s_cbranch_scc", "s_addc_u32", "s_subb_u32")

LDS_OCC = {"ds_write_b64": 34, "ds_write_b128": 56, "ds_read_b128": 16, "ds_read_b64_tr_b16": 8, "ds_read_b64": 8,
           "ds_read_b32": 8, "ds_write2st64_b64": 66, "ds_add_u32": 10, "ds_write_b32": 16}
TA_OCC = 64
PKFIRST = 12


class N:
    def __init__(self, ins, idx):
        self.i, self.idx = ins, idx
        self.preds, self.succs = [], []
        self.t = None
        self.done = None
        self.cp = 0


def rw(ins):
    r, w = set(ins.reads), set(ins.writes)
    r |= {("m", t) for t in getattr(ins, "mr", ())}
    w |= {("m", t) for t in getattr(ins, "mw", ())}
    return r, w


def raw_lat(p, c, reg):
    if reg[0] == "m":
        return 4
    k = p.kind
    if k == "mfma":
        if c.kind == "mfma" and p.D == c.C and not (set(p.D) & (set(c.A) | set(c.B))):
            return 16
        return 44
    if k == "ds":
        return None
    if k == "vmem":
        return 600
    if k == "trans":
        return 12
    if k in VAL:
        if c.kind in ("mfma", "perm"):
            return 12
        if reg[0] == "s":
            return 24
        return 4
    return 4


def cost(ins):
    k = ins.kind
    if k in ("trans", "perm"):
        return 8
    if k == "vmem":
        return 26
    if k == "dma":
        return 8
    if ins.op == "ds_write_b64":
        return 16
    if ins.op == "ds_write2st64_b64":
        return 24
    if ins.op == "ds_add_u32":
        return 8
    if k == "nop":
        return 4 * ins.states
    if ins.op == "s_barrier":
        return 90
    return 4


def schedule(prog, pre_vm=0, name="", verbose=True):
    nodes = [N(x, i) for i, x in enumerate(prog)]
    byins = {id(n.i): n for n in nodes}
    lastw, readers = {}, {}

    def edge(p, c, lat, ds=False):
        if p is c:
            return
        c.preds.append((p, lat, ds))
        p.succs.append((c, lat, ds))

    prevm = prevbr = prevvm = None
    sccw = None
    for n in nodes:
        n.sccw = n.i.op.startswith(SCC_W)
        n.sccr = n.i.op.startswith(SCC_R)
        n.users = 0
        if n.sccr:
            edge(sccw, n, 4)
            sccw.users += 1
            n.sccp = sccw
        if n.sccw:
            sccw = n
    for n in nodes:
        ins = n.i
        r, w = rw(ins)
        if ins.op.startswith("s_cmov"):
            r |= w
        for x in r:
            if x in lastw:
                p = lastw[x]
                lat = raw_lat(p.i, ins, x)
                edge(p, n, 0 if lat is None else lat, ds=lat is None)
        for x in w:
            if x in lastw:
                p = lastw[x]
                if p.i.kind == "mfma":
                    edge(p, n, 16 if ins.kind == "mfma" else 44)
                elif p.i.kind == "ds" and x[0] != "m":
                    edge(p, n, 0, ds=True)
                else:
                    edge(p, n, 4)
            for p in readers.get(x, ()):
                lat = 4
                if p.i.kind == "mfma" and x in p.i.C and ins.kind in VAL:
                    lat = 20
                if p.i.kind == "vmem":
                    lat = 16
                edge(p, n, lat)
        for x in r:
            readers.setdefault(x, []).append(n)
        for x in w:
            lastw[x] = n
            readers[x] = []
        for p in getattr(ins, "after", ()):
            edge(byins[id(p)], n, 4)
        for p, lat in getattr(ins, "lag", ()):
            edge(byins[id(p)], n, lat)
        for p in getattr(ins, "wait_ds", ()):
            edge(byins[id(p)], n, 0, ds=True)
        vm = getattr(ins, "vm", None)
        if isinstance(vm, list):
            for p in vm:
                edge(byins[id(p)], n, 4)
        if ins.kind == "mfma" and not getattr(ins, "free", False):
            if prevm:
                edge(prevm, n, 16)
            prevm = n
        if ins.kind == "dma":
            if prevvm:
                edge(prevvm, n, 4)
            prevvm = n
    for n in reversed(nodes):
        c = cost(n.i)
        for s, lat, ds in n.succs:
            c = max(c, (130 if ds else max(lat, cost(n.i))) + s.cp)
        n.cp = c + getattr(n.i, "bias", 0)
    npred = {id(n): len(n.preds) for n in nodes}
    ready = [n for n in nodes if not n.preds]
    t = 0
    mfma_free = hold = lds_free = ta_free = 0
    order = []
    just_mfma = False
    last_pk = False
    rem_fill = sum(cost(n.i) for n in nodes if n.i.kind not in ("mfma",) and n.i.op != "s_barrier")
    rem_mfma = sum(1 for n in nodes if n.i.kind == "mfma")
    scc_open = 0
    allready = ready
    while allready:
        ready = [n for n in allready if not (scc_open and n.sccw and not n.sccr)]
        ready = [n for n in ready if not n.users or all(npred[id(s_)] == sum(1 for p, _, _ in s_.preds if p is n or (p.t is None and getattr(p, "sccp", None) is n))
                                                          for s_, _, _ in n.succs if getattr(s_, "sccp", None) is n)] or ready
        assert ready

        def start(n):
            s = t
            for p, lat, ds in n.preds:
                s = max(s, p.done if ds else p.t + lat)
            k = n.i.kind
            if k == "mfma":
                s = max(s, mfma_free)
            elif n.i.op.startswith("v_pk_"):
                s = max(s, mfma_free)
            elif k in VAL:
                s = max(s, hold)
            elif k == "ds":
                s = max(s, hold, lds_free - 40)
            elif k in ("vmem", "dma"):
                s = max(s, hold, ta_free - 64)
            s = max(s, getattr(n.i, "start", 0))
            return s
        st = {id(n): start(n) for n in ready}
        m = [n for n in ready if n.i.kind == "mfma"]
        m = min(m, key=lambda n: (max(st[id(n)], t), -n.cp, n.idx)) if m else None
        pick = None
        pks = [n for n in ready if n.i.op.startswith("v_pk_") and st[id(n)] <= t]
        if m and last_pk and pks:
            pick = max(pks, key=lambda n: (n.cp, -n.idx))
        elif m and st[id(m)] <= t and not (PKFIRST and len([n for n in ready if n.i.op.startswith("v_pk_") and st[id(n)] <= max(t, mfma_free)]) >= PKFIRST):
            pick = m
        else:
            scal = [n for n in ready if n.i.kind in ("salu", "branch", "wait") and st[id(n)] <= t and n.i.op != "s_barrier"]
            if just_mfma and scal:
                pick = max(scal, key=lambda n: (n.cp, -n.idx))
            else:
                now = max(t, hold)
                cand = [n for n in ready if n is not m and st[id(n)] <= now]
                if m:
                    npk = [n for n in ready if n.i.op.startswith("v_pk_") and st[id(n)] <= max(now, mfma_free)]
                    if len(npk) >= PKFIRST:
                        cand = npk
                    else:
                        cand = [n for n in cand if not n.i.op.startswith("v_pk_")]
                if cand:
                    if m and rem_fill <= 8 * rem_mfma:
                        fit = [n for n in cand if max(st[id(n)], t) + cost(n.i) <= st[id(m)]]
                    else:
                        fit = cand
                    if fit:
                        mem = [n for n in fit if n.i.kind in ("ds", "vmem", "dma")]
                        best = max(fit, key=lambda n: (n.cp, -n.idx))
                        if mem and (hold > t or just_mfma):
                            bm = max(mem, key=lambda n: (n.cp, -n.idx))
                            if bm.cp >= best.cp - 400:
                                best = bm
                        pick = best
                if pick is None:
                    pick = min(ready, key=lambda n: (st[id(n)], -n.cp, n.idx))
        s = st[id(pick)]
        last_pk = pick.i.op.startswith("v_pk_")
        pick.t = s
        k = pick.i.kind
        if k == "mfma":
            mfma_free = s + 16
            hold = s + 8
            t = s + 4
            rem_mfma -= 1
            just_mfma = True
        else:
            c = cost(pick.i)
            t = s + c
            if pick.i.op != "s_barrier":
                rem_fill -= c
            just_mfma = False
            if k == "ds":
                lds_free = max(lds_free, s) + LDS_OCC[pick.i.op]
                pick.done = max(lds_free, s + 40) + 80
            elif k in ("vmem", "dma"):
                ta_free = max(ta_free, s) + TA_OCC
        if pick.done is None:
            pick.done = t
        order.append(pick)
        allready.remove(pick)
        if pick.sccr:
            scc_open -= 1
        if pick.users:
            assert scc_open == 0
            scc_open = pick.users
        for sc, lat, ds in pick.succs:
            npred[id(sc)] -= 1
            if npred[id(sc)] == 0:
                allready.append(sc)
    assert len(order) == len(nodes)
    out = []
    dsq = []
    ds_done = 0
    vmq = []
    for n in order:
        need = -1
        for p, lat, ds in n.preds:
            if ds:
                need = max(need, dsq.index(p))
        if need >= ds_done:
            cnt = min(15, len(dsq) - 1 - need)
            out.append(I("s_waitcnt lgkmcnt(%d)" % cnt))
            ds_done = len(dsq) - cnt
        ins = n.i
        vm = getattr(ins, "vm", None)
        if vm is not None:
            if isinstance(vm, list):
                cnt = len(vmq) - 1 - max(vmq.index(byins[id(p)]) for p in vm)
            else:
                cnt = vm + len(vmq)
            if ins.op == "s_barrier":
                out.append(I("s_waitcnt vmcnt(%d)" % min(63, cnt)))
            else:
                ins = I("s_waitcnt vmcnt(%d)" % min(63, cnt))
        out.append(ins)
        if ins.kind == "branch" and ins.tag:
            out.append(I(ins.tag + ":"))
        if ins.kind == "ds":
            dsq.append(n)
        if ins.kind in ("vmem", "dma"):
            vmq.append(n)
    pending_ds = len(dsq) - ds_done
    out = check(out, fix=True, name=name)
    if verbose:
        sys.stderr.write("sched %s: %d instrs, model %d cycles, %d ds pending at exit\n" % (name, len(out), t, pending_ds))
    return out, t
```

```python
import sys, struct, math
from isa import I, check
from lsched import schedule

KNAME = "standalone__varlen_attn_packed__ragged_kernel"
CU = [0, 580, 1085, 2082, 2797, 3498, 4341, 5079, 6042]

R = 8
SLOT = 16640
WREG = 4160
K1OFF, V0OFF, V1OFF = 1056, 2080, 3136
FLAG = R * SLOT
STAGE = FLAG + 1280
TRACE = STAGE + 16384
LDS_BYTES = TRACE + 1024

vKa, vVa, vo0, vo1, vR, vOst, vQd, vPub, vChk, vOne, vFlag, vBad = range(1, 13)
vT1, vT2, vT3 = 13, 14, 15
vMask = 16
vS = 24
vP = 40
vL = 48
vT5 = 54
vW = 56
vO = 64
vT4 = 64
vq0, vq1, vqr = 60, 61, vFlag
aK = 0
aV = 64
aOnes = 128
aL = 132
aC = 144
aQ = 160
sA, sB, sO_ = 4, 8, 12
sQp, sKp, sVp, sQp2 = 16, 18, 20, 22
sSoff, sStride, sCnt, sQoff = 24, 25, 26, 27
sWb, sMlim, sRc, sDelta, sLoop, sThr, sPos, sNeg = 28, 29, 30, 31, 32, 33, 34, 35
sJ1, sJ2 = 36, 41
sC = 46
sN, sM = 52, 62
sW, sNext, sCc, sTmp, sT2, sT3 = 72, 73, 74, 76, 77, 78
sTab, sTd, sQp3 = 80, 84, 88
sSts = list(range(80, 92))
LEAD = 4
SCALE = math.log2(math.e) / math.sqrt(128.0)
SCALE_BITS = struct.unpack("<I", struct.pack("<f", SCALE))[0]
LO_BITS = (127 - 40) << 23
HI_BITS = (127 + 40) << 23


class Opt:
    ntkv = ""
    nto = "sc1"
    ntq = ""
    ntm = "sc1"
    ones = {2: 2, 3: 3, 4: 2, 5: 2, 6: 2}
    codepf = True
    stbias = 300
    fpos = {2: 8, 3: 9, 4: 9, 5: 9, 6: 9}
    a0, dq, dkv = 200, 800, 300
    s1at = 1400
    ppos = {2: 0, 3: 2, 4: 8, 5: 8, 6: 8}
    s2at = 2200
    short = True
    lag = 260
    stamp = False
    trace = False
    padto = 0
    padat = 0


def vr(b, n=1):
    return "v%d" % b if n == 1 else "v[%d:%d]" % (b, b + n - 1)


def ar(b, n=1):
    return "a%d" % b if n == 1 else "a[%d:%d]" % (b, b + n - 1)


def sr(b, n=1):
    return "s%d" % b if n == 1 else "s[%d:%d]" % (b, b + n - 1)


def qreg(nq, i, ks):
    if nq <= 4:
        return "v", 192 + 16 * i + 4 * ks
    free = (256 - (vO + 32 * nq)) // 16
    if i < free:
        return "v", vO + 32 * nq + 16 * i + 4 * ks
    return "a", aQ + 16 * (i - free) + 4 * ks


def qop(nq, i, ks):
    f, b = qreg(nq, i, ks)
    return vr(b, 4) if f == "v" else ar(b, 4)


def ones_blocks(nq, k):
    if k >= nq:
        return list(range(nq))
    if k == 1:
        return [0]
    if k == 2:
        return [0, (nq + 1) // 2]
    return [0] + list(range(nq - k + 1, nq))


def mf(d, a, b, c):
    return I("v_mfma_f32_16x16x32_bf16 %s, %s, %s, %s" % (d, a, b, c))


def bf16_bits(x):
    u = struct.unpack("<I", struct.pack("<f", x))[0]
    return (u + 0x7FFF + ((u >> 16) & 1)) >> 16


def bf16_val(b):
    return struct.unpack("<f", struct.pack("<I", b << 16))[0]


C_HI = bf16_bits(SCALE)
C_LO = bf16_bits(SCALE - bf16_val(C_HI))


def qk(nq, i, kbuf, sset, masked, short=False):
    out = []
    for b in range(1 if short else 2):
        d = vr(vS + 8 * sset + 4 * b, 4)
        for ks in range(4):
            c = d if ks else (vr(vMask + 4 * b, 4) if masked else "0")
            out.append(mf(d, ar(aK + 32 * kbuf + 16 * b + 4 * ks, 4), qop(nq, i, ks), c))
    return out


def pv(i, vbuf, pset, zero):
    out = []
    for db in range(8):
        d = vr(vO + 32 * i + 4 * db, 4)
        out.append(mf(d, ar(aV + 32 * vbuf + 4 * db, 4), vr(vP + 4 * pset, 4), "0" if zero else d))
    return out


def onesm(slot, pset, zero):
    d = ar(aL + 4 * slot, 4)
    return mf(d, ar(aOnes, 4), vr(vP + 4 * pset, 4), "0" if zero else d)


def EXP(sset, j):
    r = vS + 8 * sset + j
    return I("v_exp_f32 v%d, v%d" % (r, r))


def CVT(sset, j):
    r = vS + 8 * sset + 2 * j
    return I("v_cvt_pk_bf16_f32 v%d, v%d, v%d" % (vP + 4 * sset + j, r, r + 1))


def kread(buf, b, ks):
    return I("ds_read_b128 %s, v%d offset:%d" % (ar(aK + 32 * buf + 16 * b + 4 * ks, 4), vKa, b * 512 + ks * 64))


def vread(buf, db, jj):
    return I("ds_read_b64_tr_b16 %s, v%d offset:%d" % (ar(aV + 32 * buf + 4 * db + 2 * jj, 2), vVa, jj * 512 + 32 * db))


def kvreads(buf):
    return [kread(buf, b, ks) for b in range(2) for ks in range(4)] + [vread(buf, db, jj) for db in range(8) for jj in range(2)]


def dmas(o, soff=sSoff):
    p = (" " + o.ntkv) if o.ntkv else ""
    return [I("buffer_load_dwordx4 v%d, %s, s%d offen%s lds" % (vo0, sr(sA, 4), soff, p)),
            I("buffer_load_dwordx4 v%d, %s, s%d offen offset:%d%s lds" % (vo1, sr(sA, 4), soff, K1OFF, p)),
            I("buffer_load_dwordx4 v%d, %s, s%d offen offset:%d%s lds" % (vo0, sr(sB, 4), soff, V0OFF, p)),
            I("buffer_load_dwordx4 v%d, %s, s%d offen offset:%d%s lds" % (vo1, sr(sB, 4), soff, V1OFF, p))]


def m0_adv():
    return [I("s_add_u32 m0, m0, s%d" % sPos), I("s_cmp_eq_u32 m0, s%d" % sMlim), I("s_cselect_b32 m0, s%d, m0" % sWb)]


def item_adv():
    t = ["s_add_u32 s%d, s%d, s%d" % (sSoff, sSoff, sStride), "s_sub_u32 s%d, s%d, 1" % (sCnt, sCnt),
         "s_cmov_b64 %s, %s" % (sr(sA, 2), sr(sN, 2)), "s_cmov_b64 %s, %s" % (sr(sB, 2), sr(sN + 2, 2)),
         "s_cmov_b64 %s, %s" % (sr(sSoff, 2), sr(sN + 4, 2)), "s_cmov_b32 s%d, s%d" % (sA + 2, sN + 6),
         "s_cmov_b32 s%d, s%d" % (sB + 2, sN + 7), "s_cmov_b32 s%d, s%d" % (sCnt, sN + 8)]
    for j in range(4):
        t.append("s_cmov_b64 %s, %s" % (sr(sN + 2 * j, 2), sr(sM + 2 * j, 2)))
    t += ["s_cmov_b32 s%d, s%d" % (sN + 8, sM + 8), "s_cmov_b64 %s, 0" % sr(sM + 6, 2), "s_cmov_b32 s%d, 0x7fffffff" % (sM + 8)]
    return [I(x) for x in t]


def ring_adv_s():
    return [I("s_sub_u32 s%d, s%d, 1" % (sRc, sRc)),
            I("s_cselect_b32 s%d, s%d, s%d" % (sDelta, sNeg, sPos)),
            I("s_cselect_b32 s%d, %d, s%d" % (sRc, R - 1, sRc))]


def ring_adv():
    return ring_adv_s() + [I("v_add_u32 v%d, s%d, v%d" % (vKa, sDelta, vKa)), I("v_add_u32 v%d, s%d, v%d" % (vVa, sDelta, vVa))]


class Gen:
    def __init__(self, o):
        self.o = o
        self.stubs = []
        self.nlab = 0

    def lab(self, p):
        self.nlab += 1
        return "L_%s_%d" % (p, self.nlab)

    def issue_item(self):
        return dmas(self.o) + m0_adv() + item_adv()[:2]

    def spin(self):
        spin, ret = self.lab("spin"), self.lab("spinret")
        self.stubs += [I(spin + ":"), I("ds_read_b32 v%d, v%d" % (vFlag, vChk)), I("s_waitcnt lgkmcnt(0)"),
                       I("v_cmp_gt_u32 vcc, s%d, v%d" % (sThr, vFlag)), I("s_nop 4"),
                       I("s_cbranch_vccnz " + spin), I("s_branch " + ret)]
        return I("s_cbranch_vccnz " + spin, tag=ret)

    def body(self, nq, par, first=False, entry=False, tail=None, vmextra=0):
        o = self.o
        ob = ones_blocks(nq, o.ones[nq])
        addb = [i for i in range(nq) if i not in ob]
        flags = entry or par == 1
        sset = lambda t, i: ((par ^ t) * nq + i) & 1
        gaps, vstart, flex = [], [], []

        def gap(m, E=None, fixed=None):
            gaps.append(dict(m=m, E=E, fixed=fixed or [], scal=[], flex=[]))
            return len(gaps) - 1

        lcount = {}

        def ADD(i, ss, j):
            n = lcount.get(i, 0)
            lcount[i] = n + 1
            l = vL + 2 * addb.index(i) + (n & 1)
            r = vS + 8 * ss + j
            if first and n < 2:
                return I("v_mov_b32 v%d, v%d" % (l, r))
            return I("v_add_f32 v%d, v%d, v%d" % (l, l, r))

        adds = []
        for v in range(nq):
            vstart.append(len(gaps))
            nxt_t, nxt_i = (0, v + 1) if v < nq - 1 else (1, 0)
            sc, sn = sset(0, v), sset(nxt_t, nxt_i)
            qm = qk(nq, nxt_i, par ^ nxt_t, sn, first and nxt_t == 0)
            pm = pv(v, par, sc, first)
            for g in range(16):
                m = qm[g] if g < 8 else pm[g - 8]
                E, fixed = None, []
                if g in (1, 3, 5):
                    E = (v, sc, 5 + g // 2)
                elif g in (7, 9, 11, 13, 15):
                    E = (nxt_i if nxt_t == 0 else -1, sn, (g - 7) // 2)
                if g in (2, 6):
                    fixed = [CVT(sc, 2 + g // 4)]
                if g in (10, 14):
                    fixed = [CVT(sn, (g - 10) // 4)]
                gi = gap(m, EXP(E[1], E[2]) if E else None, fixed)
                if E and E[0] in addb:
                    adds.append((E[0], gi, E[1], E[2]))
            if v in ob:
                gap(onesm(ob.index(v), sc, first))
        ng = len(gaps)
        vstart.append(ng)
        for (i, gi, ss, j) in adds:
            dl = ng - 1
            if i + 1 < nq:
                dl = vstart[i + 1] - 1 + (4 if j >= 4 else 0)
            flex.append([gi + 1, dl, 1, 5, ("add", i, ss, j)])
        kdl = vstart[nq - 1] - 5
        vdl = ng - (9 if nq > 2 else 6)
        for x in kvreads(par ^ 1):
            flex.append([0, kdl, 1, 1, x] if x.op == "ds_read_b128" else [0, vdl, 1, 2, x])
        ddl = max(ng // 2 - 4, 6) if nq > 2 else 14
        for d in dmas(o):
            flex.append([0, ddl, 2, 0, d])
        pend = sorted(flex, key=lambda f: (f[1], f[3]))
        slotgaps = [i for i, g in enumerate(gaps) if g["E"] is None]

        def remaining_cap(gi, upto):
            return sum(2 - len(gaps[x]["fixed"]) for x in slotgaps if gi <= x <= upto)

        bonus = set()
        ov = sum(f[2] for f in flex if f[1] <= vdl) + (3 if flags else 0) - remaining_cap(0, vdl)
        cand = [x for x in slotgaps if x <= vdl]
        for j in range(max(0, ov)):
            bonus.add(cand[(j * len(cand)) // ov] if ov <= len(cand) else cand[j % len(cand)])
        nk = nv = nd = 0
        ddone = None
        for gi in range(ng):
            g = gaps[gi]
            cap = 0 if g["E"] is not None else 2 - len(g["fixed"]) + (1 if gi in bonus else 0)
            while True:
                ready = [f for f in pend if f[0] <= gi]
                pick = next((f for f in ready if f[2] <= cap), None)
                forced = [f for f in ready if f[1] <= gi]
                if pick is None and forced:
                    pick = forced[0]
                if pick is None:
                    break
                if pick[2] == 1 and cap >= 2:
                    two = [f for f in ready if f[2] == 2]
                    urgent = [f for f in pend if f[2] == 1 and f[1] < two[0][1]] if two else []
                    if two and (not urgent or remaining_cap(gi + 1, urgent[-1][1]) + sum(1 for x in bonus if gi < x <= urgent[-1][1]) >= len(urgent)):
                        pick = two[0]
                pend.remove(pick)
                cap -= pick[2]
                ins = pick[4]
                if isinstance(ins, tuple):
                    ins = ADD(ins[1], ins[2], ins[3])
                g["flex"].append(ins)
                if ins.op == "ds_read_b128":
                    nk += 1
                    if nk == 8:
                        pend.append([gi + 1, ng - 1, 1, 6, I("v_add_u32 v%d, s%d, v%d" % (vKa, sDelta, vKa))])
                elif ins.op == "ds_read_b64_tr_b16":
                    nv += 1
                    if nv == 16:
                        pend.append([gi + 1, ng - 1, 1, 6, I("v_add_u32 v%d, s%d, v%d" % (vVa, sDelta, vVa))])
                elif ins.kind == "dma":
                    nd += 1
                    if nd == 4:
                        ddone = gi
                        if flags:
                            pg = max(gi + 2, ng // 2 - o.ppos[nq])
                            assert pg + 2 < ng - o.fpos[nq] - 3
                            pend.append([pg, pg + 4, 1, 0, I("ds_add_u32 v%d, v%d" % (vPub, vOne))])
                            pend.append([ng - o.fpos[nq] - 3, ng - o.fpos[nq], 1, 0, I("ds_read_b32 v%d, v%d" % (vFlag, vChk))])
                pend.sort(key=lambda f: (f[1], f[3]))
        assert not pend, pend
        sgaps = [i for i, g in enumerate(gaps) if not any(f.kind == "dma" for f in g["flex"])]
        used = set()

        def put(chain, lo, hi=None):
            gi = lo - 1
            for ins in chain:
                gi = min(x for x in sgaps if x > gi and x not in used)
                used.add(gi)
                gaps[gi]["scal"].append(ins)
            assert hi is None or gi <= hi, (gi, hi, chain)
            return gi

        def ds_after(pos, pred):
            seq = [f for x in range(pos) for f in gaps[x]["flex"] if f.kind == "ds"]
            return min(15, len(seq) - 1 - max(i for i, f in enumerate(seq) if pred(f)))

        find = lambda op: [x for x in range(ng) for f in gaps[x]["flex"] if f.op == op]
        kw = vstart[nq - 1] - 1
        put([I("s_waitcnt lgkmcnt(%d)" % ds_after(kw, lambda f: f.op == "ds_read_b128"))], kw, kw)
        put([I("s_waitcnt lgkmcnt(0)")], ng - 3, ng - 3)
        if flags:
            pubg = find("ds_add_u32")[0]
            assert pubg - 1 > ddone
            put([I("s_waitcnt vmcnt(%d)" % (4 * (LEAD - 1) + vmextra))], pubg - 1, pubg)
            wg = find("ds_read_b32")[0] + 5
            wg = put([I("s_waitcnt lgkmcnt(%d)" % ds_after(wg, lambda f: f.op == "ds_read_b32"))], wg, wg + 1)
            cg = min((x for x in range(wg, ng - 3) if gaps[x]["E"] is None),
                     key=lambda x: (len(gaps[x]["flex"]) + len(gaps[x]["fixed"]) >= 2, x))
            gaps[cg]["flex"].append(I("v_cmp_gt_u32 vcc, s%d, v%d" % (sThr, vFlag)))
            put([self.spin()], ng - 1, ng - 1)
        p = put(ring_adv_s(), 0, min(find("v_add_u32")) - 1)
        if flags:
            p = put([I("s_add_u32 s%d, s%d, 1" % (sThr, sThr))], p + 1, cg - 1)
        p = put(m0_adv(), max(p, ddone) + 1)
        p = put(item_adv()[:2] if entry else item_adv(), p + 1)
        tail = tail or []
        if tail:
            put(tail[:1], p + 1)
            tail = tail[1:]
        out = []
        over = 0
        for gi, g in enumerate(gaps):
            out.append(g["m"])
            for x in g["scal"]:
                out.append(x)
                if x.kind == "branch" and x.tag:
                    out.append(I(x.tag + ":"))
            out += [f for f in g["flex"] if f.kind in ("ds", "dma")]
            if g["E"] is not None:
                out.append(g["E"])
            out += g["fixed"] + [f for f in g["flex"] if f.kind not in ("ds", "dma")]
            c = sum(2 if f.kind == "dma" else 1 for f in g["flex"]) + len(g["fixed"]) + (2 if g["E"] is not None else 0)
            over += max(0, c - 2)
        out += tail
        if entry:
            out += self.issue_item()
        sys.stderr.write("body nq=%d par=%d first=%d entry=%d gaps=%d overflow=%d\n" % (nq, par, first, entry, ng, over))
        return check(out, fix=True, name="body")

    def masks(self, short):
        out = [I("v_mbcnt_lo_u32_b32 v%d, -1, 0" % vT1), I("v_mbcnt_hi_u32_b32 v%d, -1, v%d" % (vT1, vT1)),
               I("v_lshrrev_b32 v%d, 2, v%d" % (vT1, vT1)), I("v_and_b32 v%d, 12, v%d" % (vT1, vT1)),
               I("v_sub_u32 v%d, s%d, v%d" % (vT1, sC + 4, vT1)),
               I("v_cvt_f32_i32 v%d, v%d" % (vT1, vT1)), I("v_mov_b32 v0, 0x7c800000")]
        for j in range(4 if short else 8):
            kv = (j & 3) + 16 * (j >> 2)
            bits = struct.unpack("<I", struct.pack("<f", -(kv + 0.5) * 2.0 ** 122))[0]
            out += [I("v_fmaak_f32 v%d, v%d, v0, 0x%x" % (vMask + j, vT1, bits)),
                    I("v_min_f32 v%d, 0, v%d" % (vMask + j, vMask + j))]
        return out

    def p_softmax(self, nq, i, ss, js, first, lcount):
        ob = ones_blocks(nq, self.o.ones[nq])
        addb = [x for x in range(nq) if x not in ob]
        out = []
        for j in js:
            out.append(EXP(ss, j))
            if i in addb:
                n = lcount.get(i, 0)
                lcount[i] = n + 1
                l = vL + 2 * addb.index(i) + (n & 1)
                r = vS + 8 * ss + j
                out.append(I("v_mov_b32 v%d, v%d" % (l, r)) if first and n < 2 else I("v_add_f32 v%d, v%d, v%d" % (l, l, r)))
            if j & 1:
                out.append(CVT(ss, j >> 1))
        return out

    def p_epi(self, nq, i, pol):
        o = self.o
        ob = ones_blocks(nq, o.ones[nq])
        addb = [x for x in range(nq) if x not in ob]
        out = []
        A = lambda t: out.append(I(t))
        if i in ob:
            r = vMask + 2 * ob.index(i)
            A("v_accvgpr_read_b32 v%d, a%d" % (r, aL + 4 * ob.index(i)))
        else:
            r = vL + 2 * addb.index(i)
            A("v_add_f32 v%d, v%d, v%d" % (r, r, r + 1))
            for sw in ("v_permlane16_swap_b32", "v_permlane32_swap_b32"):
                A("v_mov_b32 v%d, v%d" % (r + 1, r))
                A("%s v%d, v%d" % (sw, r, r + 1))
                A("v_add_f32 v%d, v%d, v%d" % (r, r, r + 1))
        A("v_subrev_u32 v%d, 0x%x, v%d" % (vT1, LO_BITS, r))
        A("v_rcp_f32 v%d, v%d" % (r, r))
        A("v_max_u32 v%d, v%d, v%d" % (vBad, vBad, vT1))
        p = (" " + pol) if pol else ""
        b0 = vO + 32 * i
        for d4 in range(4):
            for db in (d4, d4 + 4):
                b = b0 + 4 * db
                for j in range(2):
                    A("v_pk_mul_f32 %s, %s, %s op_sel_hi:[1,0]" % (vr(b + 2 * j, 2), vr(b + 2 * j, 2), vr(r, 2)))
                    out[-1].reads.discard(("v", r + 1))
                for j in range(2):
                    A("v_cvt_pk_bf16_f32 v%d, v%d, v%d" % (b + j, b + 2 * j, b + 2 * j + 1))
            A("ds_write2st64_b64 v%d, %s, %s offset1:4" % (vW + d4, vr(b0 + 4 * d4, 2), vr(b0 + 4 * d4 + 16, 2)))
            out[-1].mw = ["stage%d" % d4]
        for k in range(4):
            A("ds_read_b128 %s, v%d offset:%d" % (vr(b0 + 8 * k, 4), vR, 1024 * k))
            out[-1].mr = ["stage%d" % x for x in range(4)]
        for k in range(4):
            A("buffer_store_dwordx4 %s, v%d, %s, s%d offen offset:%d%s" % (vr(b0 + 8 * k, 4), vOst, sr(sO_, 4), sSts[2 * i + (k & 1)], 128 * (k >> 1), p))
            out[-1].bias = o.stbias + 64 * (4 * (nq - 1 - i) + 3 - k)
        return out

    def p_last(self, nq, par, issue):
        ob = ones_blocks(nq, self.o.ones[nq])
        sset = lambda i: (par * nq + i) & 1
        out = [I("s_mov_b32 s%d, s%d" % (sO_ + 2, sC + 1))]
        for i in range(nq):
            for e in range(2):
                out.append(I("s_add_u32 s%d, s%d, %d" % (sSts[2 * i + e], sC, (64 * i + 8 * e) * 4096)))
        out += issue
        lc = {}
        for v in range(nq):
            if v < nq - 1:
                out += qk(nq, v + 1, par, sset(v + 1), False)
            out += self.p_softmax(nq, v, sset(v), (5, 6, 7), False, lc)
            out += pv(v, par, sset(v), False)
            if v in ob:
                out.append(onesm(ob.index(v), sset(v), False))
            if v < nq - 1:
                out += self.p_softmax(nq, v + 1, sset(v + 1), (0, 1, 2, 3, 4), False, lc)
            out += self.p_epi(nq, v, self.o.ntm if issue else self.o.nto)
        return out

    def p_sync(self, vm, wait_ds, start):
        w = I("s_waitcnt vmcnt(0)")
        w.vm = vm
        w.start = start
        pub = I("ds_add_u32 v%d, v%d" % (vPub, vOne))
        pub.after = [w]
        pub.wait_ds = wait_ds
        pub.mw = ["flag"]
        pub.bias = 300
        thr = I("s_add_u32 s%d, s%d, 1" % (sThr, sThr))
        rd = I("ds_read_b32 v%d, v%d" % (vFlag, vChk))
        rd.mr = ["flag"]
        rd.lag = [(pub, self.o.lag)]
        cmp_ = I("v_cmp_gt_u32 vcc, s%d, v%d" % (sThr, vFlag))
        br = self.spin()
        br.reads |= {("s", sThr), ("v", vFlag)}
        br.writes |= {("v", vFlag), ("s", "vcc")}
        return [w, pub, thr, rd, cmp_, br]

    def p_prescale(self, nq, i):
        out = []
        for ks in range(4):
            f, dst = qreg(nq, i, ks)
            d = vO + 32 * i + 8 * ks
            for h in range(2):
                a = aC + 2 - 2 * h
                out += [mf(vr(d + 4 * h, 4), ar(a, 4), qop(nq, i, ks), "0"),
                        mf(vr(d + 4 * h, 4), ar(a + 4, 4), qop(nq, i, ks), vr(d + 4 * h, 4))]
            for x in out[-4:]:
                x.free = True
            for j in range(4):
                if f == "v":
                    out.append(I("v_cvt_pk_bf16_f32 v%d, v%d, v%d" % (dst + j, d + 2 * j, d + 2 * j + 1)))
                else:
                    out += [I("v_cvt_pk_bf16_f32 v%d, v%d, v%d" % (d + 2 * j, d + 2 * j, d + 2 * j + 1)),
                            I("v_accvgpr_write_b32 a%d, v%d" % (dst + j, d + 2 * j))]
        return out

    def t_final(self, nq, par):
        out, t = schedule(self.p_last(nq, par, []), name="final nq=%d par=%d" % (nq, par))
        out.append(I("s_waitcnt vmcnt(%d)" % sum(1 for x in out if x.kind == "vmem")))
        return out

    def t_mid(self, nq1, par, nq, short):
        assert nq <= LEAD
        o = self.o
        ob = ones_blocks(nq, o.ones[nq])
        items = [self.issue_item() for _ in range(nq + 2)]
        for it in items:
            for x in it[:4]:
                x.bias = 2000
        landed = lambda k: items[k - LEAD - 1][:4] if k > LEAD else 4 * (LEAD - k)
        s1 = self.p_sync(landed(nq), [], o.s1at)
        prog = []
        for i in range(nq):
            prog.append(I("v_add_u32 v%d, v%d, v%d" % (vMask + 1 + 2 * i, vKa, vQd)))
            prog += ring_adv()
        prog += s1
        last = self.p_last(nq1, par, items[0])
        js, reads = [], []
        for i in range(nq):
            reads += [I("ds_read_b128 %s, v%d offset:%d" % (qop(nq, i, ks), vMask + 1 + 2 * i, 64 * ks)) for ks in range(4)]
        reads += kvreads(0)
        js += reads + ring_adv()
        for x in reads:
            x.after = [s1[-1]]
        for it in items[1:3]:
            it[0].after = [s1[-1]]
            js += it
        s2 = self.p_sync(landed(nq + 1), reads, 0)
        s2[0].after = list(reads)
        s2[0].start = o.s2at
        js += s2
        for it in items[3:]:
            it[0].after = [s2[-1]]
            js += it
        kv1 = kvreads(1)
        for x in kv1:
            x.after = [s2[-1]]
        js += self.set_compute(sJ2) + [I("s_mov_b32 s%d, 0" % sNext)] + self.masks(short)
        if short:
            js += [I("v_mov_b32 v%d, 0" % (vP + 4 * ss + j)) for ss in range(2) for j in (2, 3)]
        lc = {}
        for i in range(nq + 1):
            if i < nq:
                js += self.p_prescale(nq, i) + qk(nq, i, 0, i & 1, True, short)
            else:
                js += kv1 + ring_adv() + qk(nq, 0, 1, nq & 1, False)
            if i:
                js += pv(i - 1, 0, (i - 1) & 1, True)
                if i - 1 in ob:
                    js.append(onesm(ob.index(i - 1), (i - 1) & 1, True))
            js += self.p_softmax(nq, i % nq, i & 1, range(5 if i == nq else 4 if short else 8), i < nq, lc)
        js += [I("s_sub_u32 s%d, s%d, 3" % (sLoop, sC + 3))]
        s3 = self.p_sync(landed(nq + 2), [], 0)
        late = [x for x in js if x.kind == "mfma" and not getattr(x, "free", False)]
        s3[0].after = [late[-40]]
        s3[3].after = [late[-20]]
        s3[5].wait_ds = kv1
        js += s3
        out, t = schedule(prog + last + js, name="mid %d(par %d)->%d%s" % (nq1, par, nq, "s" if short else ""))
        return out

    def srd_kv(self):
        return [I("s_mov_b64 %s, %s" % (sr(sA, 2), sr(sKp, 2))), I("s_mov_b64 %s, %s" % (sr(sB, 2), sr(sVp, 2))),
                I("s_add_u32 s%d, s%d, %d" % (sB + 2, sJ1 + 2, V0OFF))]

    def srd_q(self):
        return [I("s_mov_b64 %s, %s" % (sr(sA, 2), sr(sQp, 2))), I("s_mov_b64 %s, %s" % (sr(sB, 2), sr(sQp3, 2))),
                I("s_sub_u32 s%d, s%d, %d" % (sB + 2, sJ1 + 2, 2 * 4096 - V0OFF))]

    def head_dmas(self, k, kind):
        d = dmas(self.o, sQoff if kind == "q" else sSoff)
        if kind == "q":
            d = [I(x.text.replace("v%d," % vo0, "v%d," % vq0).replace("v%d," % vo1, "v%d," % vq1).replace(" lds", self.o.ntq + " lds")) for x in d]
        so = sQoff if kind == "q" else sSoff
        return d + [I("s_add_u32 m0, s%d, %d" % (sWb, ((k + 1) % R) * SLOT)),
                    I("s_add_u32 s%d, s%d, %d" % (so, so, 64 * 4096 if kind == "q" else -32 * 4096))]

    def head(self, nq, short):
        o = self.o
        ob = ones_blocks(nq, o.ones[nq])
        kind = ["q", "kv", "kv"] + ["q"] * (nq - 1) + ["kv"] * 5
        groups = {}
        state = ["kv"]

        def issue(k):
            out = []
            if kind[k] != state[0]:
                out += self.srd_q() if kind[k] == "q" else self.srd_kv()
                state[0] = kind[k]
            d = self.head_dmas(k, kind[k])
            groups[k] = d[:4]
            for x in d[:4]:
                x.bias = 3000
            return out + d

        prog = self.masks(short)
        if short:
            prog += [I("v_mov_b32 v%d, 0" % (vP + j)) for j in (2, 3)]
        t = o.a0
        reads = {}
        prev = None
        lastbar = None
        lc = {}
        visit = [0]
        pend = [None]

        def flush_pv():
            if pend[0] is None:
                return []
            i, tile, ss = pend[0]
            pend[0] = None
            out = pv(i, tile, ss, tile == 0)
            if i in ob:
                out.append(onesm(ob.index(i), ss, tile == 0))
            return out

        def do_visit(i, tile):
            ss = visit[0] & 1
            visit[0] += 1
            out = qk(nq, i, tile, ss, tile == 0, short and tile == 0) + flush_pv()
            out += self.p_softmax(nq, i, ss, range(4 if short and tile == 0 else 8), tile == 0, lc)
            pend[0] = (i, tile, ss)
            return out

        kpos, qpos = 0, 0
        qi = nkv = 0
        bars = []
        for k in range(nq + 4):
            j = k + 3 - R
            bar = kind[k] == "kv" or (j >= 0 and kind[j] == "kv" and not any(b > j for b in bars))
            w = I("s_barrier" if bar else "s_waitcnt vmcnt(0)")
            w.vm = 4 * (2 - k) if k < 3 else groups[k]
            w.start = t
            w.after = [prev] if prev else []
            if bar:
                w.wait_ds = [x for jj in reads for x in reads[jj]]
                bars.append(k)
            prog.append(w)
            prev = w
            t += o.dq if (k + 1 < len(kind) and kind[k + 1] == "q") else o.dkv
            it = issue(k + 3)
            first = [x for x in it if x.kind == "dma"][0]
            first.after = [w]
            if j >= 0 and kind[j] == "q":
                first.wait_ds = reads[j]
            prog += it
            if k == nq + 3:
                break
            if kind[k] == "q":
                if k % R != qpos:
                    prog.append(I("v_add_u32 v%d, %d, v%d" % (vqr, (k % R - qpos) * SLOT, vqr)))
                    qpos = k % R
                rd = [I("ds_read_b128 %s, v%d offset:%d" % (qop(nq, qi, ks), vqr, 64 * ks)) for ks in range(4)]
                prog += rd + self.p_prescale(nq, qi)
                if qi > 0:
                    prog += do_visit(qi, 0) + do_visit(qi, 1)
                qi += 1
            else:
                prog += [I("v_add_u32 v%d, %d, v%d" % (r, (k % R - kpos) * SLOT, r)) for r in (vKa, vVa)]
                kpos = k % R
                rd = kvreads(nkv & 1)
                prog += rd
                if nkv == 2:
                    prog += qk(nq, 0, 0, 0, False) + flush_pv() + self.p_softmax(nq, 0, 0, range(5), False, lc)
                else:
                    prog += do_visit(0, nkv)
                nkv += 1
            for x in rd:
                x.after = [w]
            reads[k] = rd
        k = nq + 3
        prog += [I("v_add_u32 v%d, %d, v%d" % (r, (k % R - kpos) * SLOT, r)) for r in (vKa, vVa)]
        prog += [I("s_mov_b32 s%d, %d" % (sRc, R - 1 - k % R)), I("s_sub_u32 s%d, s%d, 8" % (sCnt, sJ1 + 4)),
                 I("s_sub_u32 s%d, s%d, 5" % (sLoop, sC + 3))]
        out, t = schedule(prog, name="head nq=%d%s" % (nq, "s" if short else ""))
        return out

    def addr_setup(self):
        t1, t2, t3, ln = vT1, vT2, vT3, vT4
        o = []
        A = lambda s: o.append(I(s))
        A("v_lshrrev_b32 v%d, 6, v0" % t1)
        A("v_bfe_u32 v%d, v0, 4, 2" % t2)
        A("v_readfirstlane_b32 s%d, v%d" % (sW, t1))
        A("v_and_b32 v%d, 15, v0" % t3)
        A("v_lshlrev_b32 v%d, 16, v%d" % (vq0, t1))
        A("v_lshl_add_u32 v%d, v%d, 14, v%d" % (vq0, t2, vq0))
        A("v_lshl_add_u32 v%d, v%d, 4, v%d" % (vq0, t3, vq0))
        A("v_add_u32 v%d, %d, v%d" % (vq1, 4096 - K1OFF, vq0))
        A("v_lshlrev_b32 v%d, 13, v%d" % (vo0, t1))
        A("v_lshl_add_u32 v%d, v%d, 15, v%d" % (vo0, t2, vo0))
        A("v_lshl_add_u32 v%d, v%d, 4, v%d" % (vo0, t3, vo0))
        A("v_add_u32 v%d, %d, v%d" % (vo1, 4096 - K1OFF, vo0))
        early, o = o, []
        A = lambda s: o.append(I(s))
        A("v_and_b32 v%d, 63, v0" % ln)
        A("v_and_b32 v%d, 1, v%d" % (vqr, ln))
        A("v_mul_u32_u24 v%d, %d, v%d" % (vqr, K1OFF, vqr))
        A("v_bfe_u32 v%d, v%d, 1, 1" % (vT4 + 1, ln))
        A("v_mad_u32_u24 v%d, v%d, s%d, v%d" % (vqr, vT4 + 1, sT3, vqr))
        A("v_bfe_u32 v%d, v%d, 2, 2" % (vT4 + 1, ln))
        A("v_lshl_add_u32 v%d, v%d, 8, v%d" % (vqr, vT4 + 1, vqr))
        A("v_lshl_add_u32 v%d, v%d, 4, v%d" % (vqr, t2, vqr))
        A("v_mul_u32_u24 v%d, %d, v%d" % (vT4 + 1, WREG, t1))
        A("v_add_u32 v%d, v%d, v%d" % (vqr, vqr, vT4 + 1))
        A("v_lshrrev_b32 v%d, 3, v%d" % (vR, ln))
        A("v_lshl_add_u32 v%d, v%d, 4, v%d" % (vOst, t1, vR))
        A("v_lshlrev_b32 v%d, 12, v%d" % (vOst, vOst))
        A("v_and_b32 v%d, 7, v%d" % (vW, ln))
        A("v_lshl_add_u32 v%d, v%d, 4, v%d" % (vOst, vW, vOst))
        A("v_xor_b32 v%d, v%d, v%d" % (vW + 1, vW, vR))
        A("v_lshlrev_b32 v%d, 4, v%d" % (vW + 1, vW + 1))
        A("v_lshl_add_u32 v%d, v%d, 7, v%d" % (vR, vR, vW + 1))
        A("v_lshlrev_b32 v%d, 12, v%d" % (vW + 3, t1))
        A("v_add_u32 v%d, %d, v%d" % (vW + 3, STAGE, vW + 3))
        A("v_add_u32 v%d, v%d, v%d" % (vR, vR, vW + 3))
        A("v_lshrrev_b32 v%d, 1, v%d" % (vW + 1, t2))
        A("v_xor_b32 v%d, v%d, v%d" % (vW, vW, vW + 1))
        A("v_lshlrev_b32 v%d, 4, v%d" % (vW, vW))
        A("v_and_b32 v%d, 1, v%d" % (vW + 1, t2))
        A("v_lshl_add_u32 v%d, v%d, 3, v%d" % (vW, vW + 1, vW))
        A("v_lshl_add_u32 v%d, v%d, 7, v%d" % (vW, t3, vW))
        A("v_add_u32 v%d, v%d, v%d" % (vW, vW, vW + 3))
        A("v_xor_b32 v%d, 32, v%d" % (vW + 1, vW))
        A("v_xor_b32 v%d, 64, v%d" % (vW + 2, vW))
        A("v_xor_b32 v%d, 0x60, v%d" % (vW + 3, vW))
        A("v_bfe_u32 v%d, v%d, 1, 2" % (vKa, ln))
        A("v_mul_u32_u24 v%d, %d, v%d" % (vKa, WREG, vKa))
        A("v_and_b32 v%d, 1, v%d" % (vT4 + 1, ln))
        A("v_mul_u32_u24 v%d, %d, v%d" % (vT4 + 2, K1OFF, vT4 + 1))
        A("v_add_u32 v%d, v%d, v%d" % (vKa, vKa, vT4 + 2))
        A("v_bfe_u32 v%d, v%d, 3, 1" % (vT4 + 2, ln))
        A("v_lshl_add_u32 v%d, v%d, 8, v%d" % (vKa, vT4 + 2, vKa))
        A("v_lshl_add_u32 v%d, v%d, 4, v%d" % (vKa, t2, vKa))
        A("v_lshrrev_b32 v%d, 1, v%d" % (vT4 + 3, t1))
        A("v_mul_u32_u24 v%d, %d, v%d" % (vQd, V0OFF, vT4 + 3))
        A("v_and_b32 v%d, 1, v%d" % (vT4 + 3, t1))
        A("v_lshl_add_u32 v%d, v%d, 9, v%d" % (vQd, vT4 + 3, vQd))
        A("v_bfe_u32 v%d, v%d, 3, 2" % (vVa, ln))
        A("v_mul_u32_u24 v%d, %d, v%d" % (vVa, WREG, vVa))
        A("v_bfe_u32 v%d, v%d, 2, 1" % (vT4 + 2, ln))
        A("v_mul_u32_u24 v%d, %d, v%d" % (vT4 + 2, V1OFF - V0OFF, vT4 + 2))
        A("v_add_u32 v%d, v%d, v%d" % (vVa, vVa, vT4 + 2))
        A("v_lshrrev_b32 v%d, 5, v%d" % (vT4 + 2, ln))
        A("v_lshl_add_u32 v%d, v%d, 8, v%d" % (vVa, vT4 + 2, vVa))
        A("v_and_b32 v%d, 3, v%d" % (vT4 + 2, ln))
        A("v_lshl_add_u32 v%d, v%d, 3, v%d" % (vVa, vT4 + 2, vVa))
        A("v_add_u32 v%d, %d, v%d" % (vVa, V0OFF, vVa))
        A("v_mul_u32_u24 v%d, 260, v%d" % (vChk, vT4 + 2))
        A("v_add_u32 v%d, %d, v%d" % (vChk, FLAG, vChk))
        A("v_lshlrev_b32 v%d, 2, v0" % vPub)
        A("v_add_u32 v%d, %d, v%d" % (vPub, FLAG, vPub))
        A("v_mov_b32 v%d, 1" % vOne)
        return early, [I("s_mov_b32 s%d, %d" % (sT3, V0OFF))] + o

    def decode_job(self, d0, d1, dst):
        o = []
        A = lambda s: o.append(I(s))
        A("s_bfe_u32 s%d, s%d, 0x10011" % (sT2, d0))
        A("s_lshl_b32 s%d, s%d, 8" % (sT2, sT2))
        A("s_add_u32 s%d, s%d, s%d" % (sT2, sT2, sTmp))
        A("s_and_b32 s%d, s%d, 0x1fff" % (dst, d0))
        A("s_lshl_b32 s%d, s%d, 12" % (dst, dst))
        A("s_add_u32 s%d, s%d, s%d" % (dst, dst, sT2))
        A("s_lshr_b32 s%d, s%d, 13" % (dst + 2, d1))
        A("s_lshl_b32 s%d, s%d, 12" % (dst + 2, dst + 2))
        p2 = []
        B = lambda s: p2.append(I(s))
        B("s_and_b32 s%d, s%d, 0x1fff" % (dst + 1, d1))
        B("s_lshl_b32 s%d, s%d, 12" % (dst + 1, dst + 1))
        B("s_add_u32 s%d, s%d, s%d" % (dst + 1, dst + 1, sT2))
        B("s_bfe_u32 s%d, s%d, 0x3000d" % (dst + 3, d0))
        B("s_lshr_b32 s%d, s%d, 20" % (dst + 4, d0))
        return o, p2

    def set_compute(self, j):
        o = []
        A = lambda s: o.append(I(s))
        A("s_mov_b32 s%d, s%d" % (sC, j))
        A("s_mov_b32 s%d, s%d" % (sC + 1, j + 2))
        A("s_mov_b32 s%d, s%d" % (sC + 3, j + 4))
        A("s_lshr_b32 s%d, s%d, 12" % (sT2, j + 2))
        A("s_lshr_b32 s%d, s%d, 12" % (sT3, j + 1))
        A("s_sub_u32 s%d, s%d, s%d" % (sT2, sT2, sT3))
        A("s_lshl_b32 s%d, s%d, 5" % (sT3, j + 4))
        A("s_sub_u32 s%d, s%d, s%d" % (sT2, sT2, sT3))
        A("s_add_u32 s%d, s%d, 32" % (sC + 4, sT2))
        return o

    def queue_setup(self):
        o = []
        A = lambda s: o.append(I(s))
        j = sJ2
        A("s_mov_b64 %s, %s" % (sr(sN, 2), sr(sQp, 2)))
        A("s_mov_b64 %s, %s" % (sr(sN + 2, 2), sr(sQp2, 2)))
        A("s_mov_b32 s%d, s%d" % (sN + 4, j))
        A("s_mov_b32 s%d, %d" % (sN + 5, 64 * 4096))
        A("s_mov_b64 %s, %s" % (sr(sM, 2), sr(sKp, 2)))
        A("s_mov_b64 %s, %s" % (sr(sM + 2, 2), sr(sVp, 2)))
        A("s_sub_u32 s%d, s%d, 1" % (sM + 8, j + 4))
        A("s_lshl_b32 s%d, s%d, 17" % (sM + 4, sM + 8))
        A("s_add_u32 s%d, s%d, s%d" % (sM + 4, sM + 4, j + 1))
        A("s_mov_b32 s%d, %d" % (sM + 5, -32 * 4096))
        A("s_mov_b32 s%d, s%d" % (sN + 6, j + 2))
        A("s_sub_u32 s%d, s%d, %d" % (sN + 7, j + 2, 32 * 4096 - V0OFF))
        A("s_sub_u32 s%d, s%d, 1" % (sN + 8, j + 3))
        A("s_mov_b32 s%d, s%d" % (sM + 6, j + 2))
        A("s_add_u32 s%d, s%d, %d" % (sM + 7, j + 2, V0OFF))
        A("s_cmp_eq_u32 s%d, 0" % (j + 3))
        A("s_cmov_b64 %s, 0" % sr(sN + 6, 2))
        A("s_cmov_b32 s%d, 0x7fffffff" % (sN + 8))
        return o

    def slow(self):
        o = []
        A = lambda s: o.append(I(s))
        Qf, Kf, Vf, Oa, S, P = 192, 128, 160, 64, vS, vP
        m, l, al, t, u = vL, vL + 1, vL + 2, vL + 3, vL + 4
        vSrc, vG4, vSt = vL + 5, vL + 6, vL + 7
        sJob, sBlk, sTile, sRow, sLeft, sBase, sSt = range(sN, sN + 7)
        sj = sM
        A("L_slow:")
        A("s_waitcnt vmcnt(0)")
        A("v_mbcnt_lo_u32_b32 v0, -1, 0")
        A("v_mbcnt_hi_u32_b32 v0, -1, v0")
        A("v_lshrrev_b32 v%d, 4, v0" % vG4)
        A("v_and_b32 v%d, 15, v0" % t)
        A("v_lshlrev_b32 v%d, 15, v%d" % (vSrc, vG4))
        A("v_lshl_add_u32 v%d, v%d, 4, v%d" % (vSrc, t, vSrc))
        A("v_lshlrev_b32 v%d, 2, v%d" % (vG4, vG4))
        A("s_lshl_b32 s%d, s%d, 6" % (sT2, sW))
        A("v_add_u32 v0, s%d, v0" % sT2)
        o += sum(self.addr_setup(), [])
        A("v_lshl_add_u32 v%d, v%d, 4, v%d" % (vOst, vT1, vT3))
        A("v_lshlrev_b32 v%d, 12, v%d" % (vOst, vOst))
        A("v_lshl_add_u32 v%d, v%d, 3, v%d" % (vSt, vT2, vOst))
        A("v_lshl_add_u32 v%d, v%d, 4, v%d" % (vOst, vT2, vOst))
        A("s_mul_i32 s%d, s%d, %d" % (sBase, sW, SLOT))
        A("v_add_u32 v%d, s%d, v%d" % (vKa, sBase, vKa))
        A("v_add_u32 v%d, s%d, v%d" % (vVa, sBase, vVa))
        A("s_mov_b32 s%d, 0" % sJob)
        for j in range(5):
            A("s_mov_b32 s%d, s%d" % (sj + j, sJ1 + j))
        A("L_slow_job:")
        A("s_mov_b32 s%d, 0" % sBlk)
        A("L_slow_blk:")
        A("s_mov_b64 %s, %s" % (sr(sA, 2), sr(sQp, 2)))
        A("s_mov_b32 s%d, s%d" % (sA + 2, sj + 2))
        A("s_lshl_b32 s%d, s%d, 18" % (sSt, sBlk))
        A("s_add_u32 s%d, s%d, s%d" % (sSt, sSt, sj))
        for ks in range(4):
            A("buffer_load_dwordx4 %s, v%d, %s, s%d offen offset:%d" % (vr(Kf + 4 * ks, 4), vOst, sr(sA, 4), sSt, 64 * ks))
        A("s_waitcnt vmcnt(0)")
        for j in range(16):
            A("v_lshlrev_b32 v%d, 16, v%d" % (t, Kf + j))
            A("v_and_b32 v%d, 0xffff0000, v%d" % (u, Kf + j))
            A("v_mul_f32 v%d, s%d, v%d" % (t, sCc, t))
            A("v_mul_f32 v%d, s%d, v%d" % (u, sCc, u))
            A("v_cvt_pk_bf16_f32 v%d, v%d, v%d" % (Qf + j, t, u))
        for j in range(32):
            A("v_mov_b32 v%d, 0" % (Oa + j))
        A("v_mov_b32 v%d, 0xff800000" % m)
        A("v_mov_b32 v%d, 0" % l)
        A("s_mov_b64 %s, %s" % (sr(sA, 2), sr(sKp, 2)))
        A("s_mov_b64 %s, %s" % (sr(sB, 2), sr(sVp, 2)))
        A("s_add_u32 s%d, s%d, %d" % (sB + 2, sj + 2, V0OFF))
        A("s_mov_b32 s%d, s%d" % (sRow, sj + 1))
        A("s_lshr_b32 s%d, s%d, 12" % (sLeft, sj + 2))
        A("s_lshr_b32 s%d, s%d, 12" % (sT2, sj + 1))
        A("s_sub_u32 s%d, s%d, s%d" % (sLeft, sLeft, sT2))
        A("s_mov_b32 s%d, s%d" % (sTile, sj + 4))
        A("L_slow_tile:")
        for sg in range(8):
            A("s_add_u32 s%d, s%d, %d" % (sT2, sRow, sg * 4096))
            A("s_add_u32 m0, s%d, %d" % (sBase, (sg >> 1) * WREG + (sg & 1) * K1OFF))
            A("buffer_load_dwordx4 v%d, %s, s%d offen lds" % (vSrc, sr(sA, 4), sT2))
            A("buffer_load_dwordx4 v%d, %s, s%d offen offset:%d lds" % (vSrc, sr(sB, 4), sT2, V0OFF))
        A("s_waitcnt vmcnt(0)")
        for b in range(2):
            for ks in range(4):
                A("ds_read_b128 %s, v%d offset:%d" % (vr(Kf + 16 * b + 4 * ks, 4), vKa, b * 512 + ks * 64))
        A("s_waitcnt lgkmcnt(0)")
        for db in range(8):
            for jj in range(2):
                A("ds_read_b64_tr_b16 %s, v%d offset:%d" % (vr(Vf + 4 * db + 2 * jj, 2), vVa, jj * 512 + 32 * db))
        for b in range(2):
            for ks in range(4):
                d = vr(S + 4 * b, 4)
                o.append(mf(d, vr(Kf + 16 * b + 4 * ks, 4), vr(Qf + 4 * ks, 4), d if ks else "0"))
        A("v_mov_b32 v%d, 0xff800000" % u)
        for j in range(8):
            A("v_add_u32 v%d, %d, v%d" % (t, (j & 3) + 16 * (j >> 2), vG4))
            A("v_cmp_gt_u32 vcc, s%d, v%d" % (sLeft, t))
            A("v_cndmask_b32 v%d, v%d, v%d, vcc" % (S + j, u, S + j))
        A("v_max3_f32 v%d, v%d, v%d, v%d" % (t, S, S + 1, S + 2))
        A("v_max3_f32 v%d, v%d, v%d, v%d" % (t, t, S + 3, S + 4))
        A("v_max3_f32 v%d, v%d, v%d, v%d" % (t, t, S + 5, S + 6))
        A("v_max3_f32 v%d, v%d, v%d, v%d" % (t, t, S + 7, m))
        for sw in ("v_permlane16_swap_b32", "v_permlane32_swap_b32"):
            A("v_mov_b32 v%d, v%d" % (u, t))
            A("%s v%d, v%d" % (sw, t, u))
            A("v_max_f32 v%d, v%d, v%d" % (t, t, u))
        A("v_sub_f32 v%d, v%d, v%d" % (al, m, t))
        A("v_exp_f32 v%d, v%d" % (al, al))
        A("v_mov_b32 v%d, v%d" % (m, t))
        for j in range(8):
            A("v_sub_f32 v%d, v%d, v%d" % (S + j, S + j, m))
        for j in range(8):
            A("v_exp_f32 v%d, v%d" % (S + j, S + j))
        A("v_mul_f32 v%d, v%d, v%d" % (l, l, al))
        for j in range(8):
            A("v_add_f32 v%d, v%d, v%d" % (l, l, S + j))
        for j in range(4):
            A("v_cvt_pk_bf16_f32 v%d, v%d, v%d" % (P + j, S + 2 * j, S + 2 * j + 1))
        for j in range(32):
            A("v_mul_f32 v%d, v%d, v%d" % (Oa + j, Oa + j, al))
        A("s_waitcnt lgkmcnt(0)")
        for db in range(8):
            d = vr(Oa + 4 * db, 4)
            o.append(mf(d, vr(Vf + 4 * db, 4), vr(P, 4), d))
        A("s_add_u32 s%d, s%d, %d" % (sRow, sRow, 32 * 4096))
        A("s_sub_u32 s%d, s%d, 32" % (sLeft, sLeft))
        A("s_nop 7")
        A("s_sub_u32 s%d, s%d, 1" % (sTile, sTile))
        A("s_cmp_lg_u32 s%d, 0" % sTile)
        A("s_cbranch_scc1 L_slow_tile")
        for sw in ("v_permlane16_swap_b32", "v_permlane32_swap_b32"):
            A("v_mov_b32 v%d, v%d" % (u, l))
            A("%s v%d, v%d" % (sw, l, u))
            A("v_add_f32 v%d, v%d, v%d" % (l, l, u))
        A("v_rcp_f32 v%d, v%d" % (l, l))
        A("s_mov_b32 s%d, s%d" % (sO_ + 2, sj + 2))
        for j in range(32):
            A("v_mul_f32 v%d, v%d, v%d" % (Oa + j, Oa + j, l))
        for db in range(8):
            b = Oa + 4 * db
            for j in range(2):
                A("v_cvt_pk_bf16_f32 v%d, v%d, v%d" % (b + j, b + 2 * j, b + 2 * j + 1))
            A("buffer_store_dwordx2 %s, v%d, %s, s%d offen offset:%d" % (vr(b, 2), vSt, sr(sO_, 4), sSt, 32 * db))
        A("s_waitcnt vmcnt(0)")
        A("s_add_u32 s%d, s%d, 1" % (sBlk, sBlk))
        A("s_cmp_lt_u32 s%d, s%d" % (sBlk, sj + 3))
        A("s_cbranch_scc1 L_slow_blk")
        A("s_cmp_lg_u32 s%d, 0" % sJob)
        A("s_cbranch_scc1 L_end")
        A("s_mov_b32 s%d, 1" % sJob)
        for j in range(5):
            A("s_mov_b32 s%d, s%d" % (sj + j, sJ2 + j))
        A("s_cmp_lg_u32 s%d, 0" % (sj + 3))
        A("s_cbranch_scc1 L_slow_job")
        A("s_branch L_end")
        return check(o, fix=True, name="slow")

    def trace_init(self):
        if not self.o.trace:
            return []
        return [I("s_lshl_b32 s92, s%d, 8" % sW), I("s_add_u32 s92, s92, %d" % TRACE), I("v_mov_b32 v61, s92")]

    def padmark(self, idx):
        return [I("s_memrealtime s[98:99]")] if self.o.padto and self.o.padat == idx else []

    def stamp(self, idx):
        if not self.o.stamp:
            return self.padmark(idx) if idx else []
        return [I("s_memtime s[94:95]"), I("s_memrealtime s[96:97]"), I("s_waitcnt lgkmcnt(0)"),
                I("v_writelane_b32 v62, s94, %d" % idx), I("v_writelane_b32 v63, s96, %d" % idx)]

    def kernel(self, table):
        o = self.o
        out = []
        A = lambda s: out.append(I(s))
        A("s_cmp_ge_u32 s2, 256")
        A("s_cbranch_scc1 L_end")
        out += self.stamp(0)
        out += self.padmark(0)
        A("s_load_dwordx4 %s, s[0:1], 0" % sr(sQp, 4))
        A("s_load_dwordx2 %s, s[0:1], 16" % sr(sVp, 2))
        A("s_getpc_b64 %s" % sr(sTab, 2))
        A("L_pc:")
        A("s_lshr_b32 s%d, s2, 3" % sTmp)
        A("s_lshl_b32 s%d, s%d, 4" % (sT2, sTmp))
        A("s_add_u32 s%d, s%d, L_table-L_pc" % (sT2, sT2))
        A("s_add_u32 s%d, s%d, s%d" % (sTab + 2, sTab, sT2))
        A("s_addc_u32 s%d, s%d, 0" % (sTab + 3, sTab + 1))
        A("s_load_dwordx4 %s, %s, 0" % (sr(sTd, 4), sr(sTab + 2, 2)))
        A("s_load_dwordx2 %s, s[0:1], 32" % sr(sO_, 2))
        early, late = self.addr_setup()
        if o.codepf:
            A("s_lshl_b32 s%d, s%d, 12" % (sT2, sTmp))
            A("v_min_u32 v%d, 31, v0" % vT4)
            A("v_lshl_add_u32 v%d, v%d, 7, s%d" % (vT4, vT4, sT2))
            A("v_min_u32 v%d, L_slow-L_pc-8, v%d" % (vT4, vT4))
            A("global_load_dword v%d, v%d, %s" % (vT4 + 4, vT4, sr(sTab, 2)))
        out += early
        A("s_mov_b32 s%d, 0x20000" % (sA + 3))
        A("s_mov_b32 s%d, 0x20000" % (sB + 3))
        A("s_mul_i32 s%d, s%d, %d" % (sWb, sW, WREG))
        A("s_and_b32 s%d, s2, 7" % sTmp)
        A("s_lshl_b32 s%d, s%d, 9" % (sTmp, sTmp))
        A("s_mov_b32 m0, s%d" % sWb)
        A("s_waitcnt lgkmcnt(0)")
        A("s_add_u32 s%d, s%d, %d" % (sQp3, sQp, 2 * 4096 - V0OFF))
        A("s_addc_u32 s%d, s%d, 0" % (sQp3 + 1, sQp + 1))
        d1a, d1b = self.decode_job(sTd, sTd + 1, sJ1)
        out += d1a + self.srd_q() + [I("s_mov_b32 s%d, s%d" % (sA + 2, sJ1 + 2)), I("s_mov_b32 s%d, s%d" % (sQoff, sJ1))]
        out += self.head_dmas(0, "q")
        A("s_sub_u32 s%d, s%d, %d" % (sVp, sVp, V0OFF))
        A("s_subb_u32 s%d, s%d, 0" % (sVp + 1, sVp + 1))
        out += d1b
        A("s_sub_u32 s%d, s%d, 1" % (sSoff, sJ1 + 4))
        A("s_lshl_b32 s%d, s%d, 17" % (sSoff, sSoff))
        A("s_add_u32 s%d, s%d, s%d" % (sSoff, sSoff, sJ1 + 1))
        out += self.srd_kv() + self.head_dmas(1, "kv") + self.head_dmas(2, "kv")
        out += late
        A("v_mov_b32 v%d, 0" % vBad)
        A("ds_write_b32 v%d, v%d" % (vPub, vBad))
        A("v_mov_b32 v%d, 0x3f803f80" % vT1)
        for j in range(4):
            A("v_accvgpr_write_b32 a%d, v%d" % (aOnes + j, vT1))
        A("v_bfe_u32 v%d, v0, 2, 2" % vT1)
        A("v_cmp_eq_u32 vcc, v%d, v%d" % (vT1, vT2))
        A("v_and_b32 v%d, 1, v0" % vT1)
        A("v_lshlrev_b32 v%d, 4, v%d" % (vT1, vT1))
        A("v_cndmask_b32 v%d, 0, v%d, vcc" % (vT2, vOne))
        A("v_lshlrev_b32 v%d, v%d, v%d" % (vT2, vT1, vT2))
        A("v_bfe_u32 v%d, v0, 1, 1" % vT1)
        A("v_mul_u32_u24 v%d, v%d, v%d" % (vT3, vT1, vT2))
        A("v_sub_u32 v%d, v%d, v%d" % (vT2, vT2, vT3))
        for b, c in ((aC + 2, C_HI), (aC + 6, C_LO)):
            for j, r in enumerate((vT2, vT3)):
                A("v_mul_u32_u24 v%d, 0x%x, v%d" % (vT1, c, r))
                A("v_accvgpr_write_b32 a%d, v%d" % (b + j, vT1))
        for j in (0, 1, 4, 5, 8, 9):
            A("v_accvgpr_write_b32 a%d, 0" % (aC + j))
        A("s_add_u32 s%d, s%d, %d" % (sMlim, sWb, R * SLOT))
        A("s_mov_b32 s%d, 0" % sThr)
        A("s_mov_b32 s%d, %d" % (sPos, SLOT))
        A("s_mov_b32 s%d, %d" % (sNeg, -(R - 1) * SLOT))
        A("s_mov_b32 s%d, 0x%x" % (sCc, SCALE_BITS))
        A("s_mov_b32 s%d, 0x20000" % (sO_ + 3))
        A("s_mov_b32 s%d, 0" % (sO_ + 2))
        A("s_mov_b32 s%d, %d" % (sStride, -32 * 4096))
        A("s_add_u32 s%d, s%d, %d" % (sQp2, sQp, 32 * 4096 - V0OFF))
        A("s_addc_u32 s%d, s%d, 0" % (sQp2 + 1, sQp + 1))
        d2a, d2b = self.decode_job(sTd + 2, sTd + 3, sJ2)
        out += d2a + d2b + self.queue_setup() + self.set_compute(sJ1)
        A("s_bfe_u32 s%d, s%d, 0x4000d" % (sNext, sTd + 2))
        A("s_bfe_u32 s%d, s%d, 0x4000d" % (sT2, sTd))
        A("s_waitcnt lgkmcnt(0)")
        out += self.stamp(1)
        for code in o.heads[:-1]:
            out += [I("s_cmp_eq_u32 s%d, %d" % (sT2, code)), I("s_cbranch_scc1 L_first%d" % code)]
        A("s_branch L_first%d" % o.heads[-1])
        out = check(out, fix=True, name="entry")
        loops = {}
        for nq in o.nqs:
            dec = I("s_sub_u32 s%d, s%d, 1" % (sLoop, sLoop))
            bA = self.body(nq, 1, tail=[dec, I("s_cbranch_scc1 L_last0_%d" % nq)])
            bB = self.body(nq, 0, tail=[dec, I("s_cbranch_scc0 L_loop%d" % nq)])
            check(bA + bB + bA, name="loop")
            loops[nq] = (bA, bB)
        for nq in o.nqs:
            bA, bB = loops[nq]
            mine = [c for c in o.heads if c & 7 == nq]
            if mine:
                b2 = self.body(nq, 0, entry=True)
                check(b2 + bA, name="b2-bA")
                for code in mine:
                    h = self.head(nq, code >> 3)
                    check(h + b2, name="head-b2")
                    out += [I("L_first%d:" % code)] + h
                    if code != mine[-1]:
                        out += [I("s_branch L_step2_%d" % nq)]
                out += [I("L_step2_%d:" % nq)] + self.trace_init() + self.stamp(2) + self.padmark(12) + b2 + self.stamp(5)
            if o.trace:
                tr0 = [I("s_memtime s[98:99]")]
                tr1 = [I("v_mov_b32 v60, s98"), I("ds_write_b32 v61, v60"), I("v_add_u32 v61, 4, v61")]
                bA = tr0 + bA[:-1] + tr1 + bA[-1:]
                bB = tr0 + bB[:-1] + tr1 + bB[-1:]
            out += [I(".p2align 6"), I("L_loop%d:" % nq)] + bA + bB
            for par in (1, 0):
                prev = bB if par else bA
                out += [I("L_last%d_%d:" % (par, nq))] + self.stamp(3)
                nxt = sorted({b for (a, p_, b) in o.trans if a == nq and p_ == par})
                for b in nxt[:-1]:
                    out += [I("s_cmp_eq_u32 s%d, %d" % (sNext, b)), I("s_cbranch_scc1 L_t%d_%d_%d" % (nq, par, b))]
                for b in reversed(nxt):
                    t = self.t_mid(nq, par, b & 7, b >> 3) if b else self.t_final(nq, par)
                    check(prev + t + (loops[b & 7][0] if b else []), name="loop-t-loop")
                    out += [I("L_t%d_%d_%d:" % (nq, par, b))] + t + self.stamp(4)
                    if b:
                        if o.stamp:
                            out += [I("v_mov_b32 v60, v62"), I("v_mov_b32 v61, v63")] + self.stamp(2) + self.stamp(5)
                        out += [I("s_branch L_loop%d" % (b & 7))]
                    else:
                        out += [I("s_branch L_fin")]
                if not nxt:
                    out += [I("s_branch L_fin")]
        A = lambda s: out.append(I(s))
        A("L_fin:")
        A("s_barrier")
        if o.stamp or o.trace:
            out += self.stamp(6)
            A("s_waitcnt vmcnt(0)")
            out += self.stamp(7)
            A("s_load_dwordx2 s[4:5], s[0:1], 48")
            A("v_mbcnt_lo_u32_b32 v70, -1, 0")
            A("v_mbcnt_hi_u32_b32 v70, -1, v70")
            A("s_mov_b32 s6, 0x1000000")
            A("s_lshl_b32 s3, s2, 2")
            A("s_add_u32 s3, s3, s%d" % sW)
            if o.stamp:
                A("s_lshl_b32 s3, s3, 10")
                A("v_lshlrev_b32 v70, 4, v70")
                A("s_waitcnt lgkmcnt(0)")
                A("buffer_store_dwordx4 v[60:63], v70, s[4:7], s3 offen")
            else:
                A("s_lshl_b32 s3, s3, 8")
                A("v_lshlrev_b32 v70, 2, v70")
                A("s_lshl_b32 s92, s%d, 8" % sW)
                A("s_add_u32 s92, s92, %d" % TRACE)
                A("v_add_u32 v71, s92, v70")
                A("ds_read_b32 v72, v71")
                A("s_waitcnt lgkmcnt(0)")
                A("buffer_store_dword v72, v70, s[4:7], s3 offen")
        if o.padto:
            out += self.padmark(6)
            A("s_waitcnt vmcnt(0)")
            out += self.padmark(7)
            A("s_waitcnt lgkmcnt(0)")
            A("L_pad:")
            A("s_memrealtime s[100:101]")
            A("s_waitcnt lgkmcnt(0)")
            A("s_sub_u32 s100, s100, s98")
            A("s_cmp_lt_u32 s100, %d" % (o.padto * 100))
            A("s_cbranch_scc1 L_pad")
        A("v_cmp_lt_u32 vcc, 0x%x, v%d" % (HI_BITS - LO_BITS, vBad))
        A("s_nop 4")
        A("s_cbranch_vccnz L_slow")
        A("L_end:")
        A("s_endpgm")
        out += self.stubs
        out += self.slow()
        txt = [x.text for x in out]
        txt.append(".p2align 4")
        txt.append("L_table:")
        for e in table:
            txt.append(".long 0x%x, 0x%x, 0x%x, 0x%x" % tuple(e))
        return txt


SHORT = True


def jcode(s, nq):
    L = CU[s + 1] - CU[s]
    return nq + (8 if SHORT and L - 32 * ((L - 1) // 32) <= 16 else 0)


def make_table(bins):
    nxt = {}
    tab = []
    for jobs in bins:
        e = []
        for (s, hh, nq) in jobs:
            u = nxt.get((s, hh), 0)
            nxt[(s, hh)] = u + nq
            q0 = CU[s] + 64 * u
            n = (CU[s + 1] - CU[s] + 31) // 32
            e += [q0 | jcode(s, nq) << 13 | hh << 17 | n << 20, CU[s] | CU[s + 1] << 13]
        e += [0, 0] * (2 - len(jobs))
        tab.append(e)
    for s in range(8):
        for hh in range(2):
            assert nxt[(s, hh)] == (CU[s + 1] - CU[s] + 63) // 64, (s, hh, nxt)
    assert len(tab) == 32
    return tab


HEADER = """; varlen (packed, ragged) non-causal attention forward, bf16, T=6042 H=16 D=128, 8 sequences (cu is a constant of the problem)
; @launch grid=(256,1,1) block=(256,1,1) lds=%d
.amdgcn_target "amdgcn-amd-amdhsa--gfx950"
.text
.globl %s
.p2align 8
.type %s,@function
%s:
"""
FOOTER = """.section .rodata,"a"
.p2align 6
.amdhsa_kernel %s
  .amdhsa_next_free_vgpr 512
  .amdhsa_next_free_sgpr 102
  .amdhsa_accum_offset 256
  .amdhsa_group_segment_fixed_size 0
  .amdhsa_kernarg_size 56
  .amdhsa_user_sgpr_count 2
  .amdhsa_user_sgpr_kernarg_segment_ptr 1
  .amdhsa_system_sgpr_workgroup_id_x 1
.end_amdhsa_kernel
"""


def parse_bins(s):
    U = [(CU[i + 1] - CU[i] + 63) // 64 for i in range(8)]
    jobs = []
    for bi, b in enumerate(s.split()):
        for ji, j in enumerate(b.split("+")):
            if j[0] != "-":
                jobs.append((bi, ji, "ABCDEFGH".index(j[0]), int(j[1]), "ab".index(j[2]) if len(j) > 2 else None))
    hh = {}
    for s_ in range(8):
        mine = [j for j in jobs if j[2] == s_]
        best = None
        for mask in range(1 << len(mine)):
            if any(j[4] is not None and j[4] != (mask >> k & 1) for k, j in enumerate(mine)):
                continue
            if sum(j[3] for k, j in enumerate(mine) if mask >> k & 1) == U[s_]:
                sc = 0
                for h in (0, 1):
                    sc += len({j[1] for k, j in enumerate(mine) if (mask >> k & 1) == h})
                if best is None or sc < best[0]:
                    best = (sc, mask)
        for k, j in enumerate(mine):
            hh[j[:2]] = best[1] >> k & 1
    bins = [[] for _ in range(32)]
    for j in jobs:
        bins[j[0]].append((j[2], hh[j[:2]], j[3]))
    return bins


SCHED3 = "C5 C5 C5 C5 H5 H5 H5 H5 F5 F5 C3+A3 C3+A3 C3+A3 C3+A3 G4+B4 G4+B4 G4+B4 H3+B4 H3+E3 H3+E3 H3+D3 D4+D3 D4+D3 D4+D3 E4+G3 E4+G3 E4+G3 E4+G3 F3+A4 F3+A4 F3+F3 F3+F3"
SCHED3B = "F6 F6 C5 C5 C5 C5 H5 H5 H5 H5 F5 F5 C3+A3 C3+A3 C3+A3 C3+A3 G4+B4 G4+B4 G4+B4 H3+B4 H3+E3 H3+E3 H3+D3 D4+D3 D4+D3 D4+D3 E4+G3 E4+G3 E4+G3 E4+G3 F3+A4 F3+A4"
SCHED4 = "C5 C5 C5 C5 H5 H5 H5 H5 F5 F5 G4+A3 G4+A3 G4+A3 C3+A3 C3+B4 C3+B4 C3+B4 H3+B4 H3+E3 H3+E3 H3+D3 D3+D4 D3+D4 D3+D4 G3+E4 G3+E4 G3+E4 G3+E4 F3+A4 F3+A4 F3+F3 F3+F3"
SCHED4B = "F6 F6 C5 C5 C5 C5 H5 H5 H5 H5 F5 F5 G4+A3 G4+A3 G4+A3 C3+A3 C3+B4 C3+B4 C3+B4 H3+B4 H3+E3 H3+E3 H3+D3 D3+D4 D3+D4 D3+D4 G3+E4 G3+E4 G3+E4 G3+E4 F3+A4 F3+A4"
Opt.sched = SCHED4


def build(o):
    bins = parse_bins(o.sched)
    o.nqs = tuple(sorted({j[2] for b in bins for j in b}))
    global SHORT
    SHORT = o.short
    o.heads = tuple(sorted({jcode(b[0][0], b[0][2]) for b in bins}))
    o.trans = set()
    for b in bins:
        for k, (s_, hh, nq) in enumerate(b):
            n = (CU[s_ + 1] - CU[s_] + 31) // 32
            o.trans.add((nq, (n - 1) & 1, jcode(b[k + 1][0], b[k + 1][2]) if k + 1 < len(b) else 0))
    g = Gen(o)
    body = g.kernel(make_table(bins))
    body.append("; sched " + o.sched)
    return HEADER % (LDS_BYTES, KNAME, KNAME, KNAME) + "\n".join(body) + "\n" + FOOTER % KNAME


if __name__ == "__main__":
    o = Opt()
    path = sys.argv[1]
    for a in sys.argv[2:]:
        k, v = a.split("=")
        setattr(o, k, eval(v))
    src = build(o)
    open(path, "w").write(src)
```

```python
import sys, random
from isa import I, check, VAL

SCC_W = ("s_add_u32", "s_sub_u32", "s_addc_u32", "s_subb_u32", "s_cmp", "s_lshl", "s_lshr", "s_and", "s_or", "s_bfe", "s_min", "s_max")
SCC_R = ("s_cselect", "s_cmov", "s_cbranch_scc", "s_addc_u32", "s_subb_u32")

LDS_OCC = {"ds_write_b64": 34, "ds_write_b128": 56, "ds_read_b128": 16, "ds_read_b64_tr_b16": 8, "ds_read_b64": 8,
           "ds_read_b32": 8, "ds_write2st64_b64": 66, "ds_add_u32": 10, "ds_write_b32": 16}
TA_OCC = 64


class N:
    def __init__(self, ins, idx):
        self.i, self.idx = ins, idx
        self.preds, self.succs = [], []
        self.t = None
        self.done = None
        self.cp = 0


def rw(ins):
    r, w = set(ins.reads), set(ins.writes)
    r |= {("m", t) for t in getattr(ins, "mr", ())}
    w |= {("m", t) for t in getattr(ins, "mw", ())}
    return r, w


def raw_lat(p, c, reg):
    if reg[0] == "m":
        return 4
    k = p.kind
    if k == "mfma":
        if c.kind == "mfma" and p.D == c.C and not (set(p.D) & (set(c.A) | set(c.B))):
            return 16
        return 44
    if k == "ds":
        return None
    if k == "vmem":
        return 600
    if k == "trans":
        return 12
    if k in VAL:
        if c.kind in ("mfma", "perm"):
            return 12
        if reg[0] == "s":
            return 24
        return 4
    return 4


class P:
    st, dma, dsw2, dsr = 26, 8, 24, 4
    dsm = 0
    q_lds, q_ta = 40, 64
    dslat = 80
    memslack = 400
    pkfirst = 12
    noise = 0
    seed = 0
    fitk = 8


def cost(ins):
    k = ins.kind
    if k in ("trans", "perm"):
        return 8
    if k == "vmem":
        return P.st
    if k == "dma":
        return P.dma
    if ins.op.startswith("ds_read"):
        return P.dsr
    if ins.op == "ds_write_b64":
        return 16
    if ins.op == "ds_write2st64_b64":
        return P.dsw2
    if ins.op == "ds_add_u32":
        return 8
    if k == "nop":
        return 4 * ins.states
    if ins.op == "s_barrier":
        return 90
    return 4


def schedule(prog, pre_vm=0, name="", verbose=True):
    nodes = [N(x, i) for i, x in enumerate(prog)]
    byins = {id(n.i): n for n in nodes}
    lastw, readers = {}, {}

    def edge(p, c, lat, ds=False):
        if p is c:
            return
        c.preds.append((p, lat, ds))
        p.succs.append((c, lat, ds))

    prevm = prevbr = prevvm = None
    sccw = None
    for n in nodes:
        n.sccw = n.i.op.startswith(SCC_W)
        n.sccr = n.i.op.startswith(SCC_R)
        n.users = 0
        if n.sccr:
            edge(sccw, n, 4)
            sccw.users += 1
            n.sccp = sccw
        if n.sccw:
            sccw = n
    for n in nodes:
        ins = n.i
        r, w = rw(ins)
        if ins.op.startswith("s_cmov"):
            r |= w
        for x in r:
            if x in lastw:
                p = lastw[x]
                lat = raw_lat(p.i, ins, x)
                edge(p, n, 0 if lat is None else lat, ds=lat is None)
        for x in w:
            if x in lastw:
                p = lastw[x]
                if p.i.kind == "mfma":
                    edge(p, n, 16 if ins.kind == "mfma" else 44)
                elif p.i.kind == "ds" and x[0] != "m":
                    edge(p, n, 0, ds=True)
                else:
                    edge(p, n, 4)
            for p in readers.get(x, ()):
                lat = 4
                if p.i.kind == "mfma" and x in p.i.C and ins.kind in VAL:
                    lat = 20
                if p.i.kind == "vmem":
                    lat = 16
                edge(p, n, lat)
        for x in r:
            readers.setdefault(x, []).append(n)
        for x in w:
            lastw[x] = n
            readers[x] = []
        for p in getattr(ins, "after", ()):
            edge(byins[id(p)], n, 4)
        for p, lat in getattr(ins, "lag", ()):
            edge(byins[id(p)], n, lat)
        for p in getattr(ins, "wait_ds", ()):
            edge(byins[id(p)], n, 0, ds=True)
        vm = getattr(ins, "vm", None)
        if isinstance(vm, list):
            for p in vm:
                edge(byins[id(p)], n, getattr(ins, "vmlag", 4))
        if ins.kind == "mfma" and not getattr(ins, "free", False):
            if prevm:
                edge(prevm, n, 16)
            prevm = n
        if ins.kind == "dma":
            if prevvm:
                edge(prevvm, n, 4)
            prevvm = n
    for n in reversed(nodes):
        c = cost(n.i)
        for s, lat, ds in n.succs:
            c = max(c, (130 if ds else max(lat, cost(n.i))) + s.cp)
        n.cp = c + getattr(n.i, "bias", 0)
    if P.noise:
        rnd = random.Random(P.seed)
        for n in nodes:
            n.cp += rnd.uniform(0, P.noise)
    npred = {id(n): len(n.preds) for n in nodes}
    ready = [n for n in nodes if not n.preds]
    t = 0
    mfma_free = hold = lds_free = ta_free = memhold = 0
    order = []
    just_mfma = False
    last_pk = False
    rem_fill = sum(cost(n.i) for n in nodes if n.i.kind not in ("mfma",) and n.i.op != "s_barrier")
    rem_mfma = sum(1 for n in nodes if n.i.kind == "mfma")
    scc_open = 0
    allready = ready
    while allready:
        ready = [n for n in allready if not (scc_open and n.sccw and not n.sccr)]
        ready = [n for n in ready if not n.users or all(npred[id(s_)] == sum(1 for p, _, _ in s_.preds if p is n or (p.t is None and getattr(p, "sccp", None) is n))
                                                          for s_, _, _ in n.succs if getattr(s_, "sccp", None) is n)] or ready
        assert ready

        def start(n):
            s = t
            for p, lat, ds in n.preds:
                s = max(s, p.done if ds else p.t + lat)
            k = n.i.kind
            if k == "mfma":
                s = max(s, mfma_free, memhold)
            elif n.i.op.startswith("v_pk_"):
                s = max(s, mfma_free)
            elif k in VAL:
                s = max(s, hold)
            elif k == "ds":
                s = max(s, hold, lds_free - P.q_lds)
            elif k in ("vmem", "dma"):
                s = max(s, hold, ta_free - P.q_ta)
            s = max(s, getattr(n.i, "start", 0))
            return s
        st = {id(n): start(n) for n in ready}
        m = [n for n in ready if n.i.kind == "mfma"]
        m = min(m, key=lambda n: (max(st[id(n)], t), -n.cp, n.idx)) if m else None
        pick = None
        pks = [n for n in ready if n.i.op.startswith("v_pk_") and st[id(n)] <= t]
        if m and last_pk and pks:
            pick = max(pks, key=lambda n: (n.cp, -n.idx))
        elif m and st[id(m)] <= t and not (P.pkfirst and len([n for n in ready if n.i.op.startswith("v_pk_") and st[id(n)] <= max(t, mfma_free)]) >= P.pkfirst):
            pick = m
        else:
            scal = [n for n in ready if n.i.kind in ("salu", "branch", "wait") and st[id(n)] <= t and n.i.op != "s_barrier"]
            if just_mfma and scal:
                pick = max(scal, key=lambda n: (n.cp, -n.idx))
            else:
                now = max(t, hold)
                cand = [n for n in ready if n is not m and st[id(n)] <= now]
                if m:
                    npk = [n for n in ready if n.i.op.startswith("v_pk_") and st[id(n)] <= max(now, mfma_free)]
                    if len(npk) >= P.pkfirst:
                        cand = npk
                    else:
                        cand = [n for n in cand if not n.i.op.startswith("v_pk_")]
                if cand:
                    if m and rem_fill <= P.fitk * rem_mfma:
                        fit = [n for n in cand if max(st[id(n)], t) + cost(n.i) <= st[id(m)]]
                    else:
                        fit = cand
                    if fit:
                        mem = [n for n in fit if n.i.kind in ("ds", "vmem", "dma")]
                        best = max(fit, key=lambda n: (n.cp, -n.idx))
                        if mem and (hold > t or just_mfma):
                            bm = max(mem, key=lambda n: (n.cp, -n.idx))
                            if bm.cp >= best.cp - P.memslack:
                                best = bm
                        pick = best
                if pick is None:
                    pick = min(ready, key=lambda n: (st[id(n)], -n.cp, n.idx))
        s = st[id(pick)]
        last_pk = pick.i.op.startswith("v_pk_")
        pick.t = s
        k = pick.i.kind
        if k == "mfma":
            mfma_free = s + 16
            hold = s + 8
            t = s + 4
            rem_mfma -= 1
            just_mfma = True
        else:
            c = cost(pick.i)
            t = s + c
            if pick.i.op != "s_barrier":
                rem_fill -= c
            just_mfma = False
            if k in ("ds", "vmem", "dma"):
                memhold = t + P.dsm
            if k == "ds":
                lds_free = max(lds_free, s) + LDS_OCC[pick.i.op]
                pick.done = max(lds_free, s + 40) + P.dslat
            elif k in ("vmem", "dma"):
                ta_free = max(ta_free, s) + TA_OCC
        if pick.done is None:
            pick.done = t
        order.append(pick)
        allready.remove(pick)
        if pick.sccr:
            scc_open -= 1
        if pick.users:
            assert scc_open == 0
            scc_open = pick.users
        for sc, lat, ds in pick.succs:
            npred[id(sc)] -= 1
            if npred[id(sc)] == 0:
                allready.append(sc)
    assert len(order) == len(nodes)
    out = []
    dsq = []
    ds_done = 0
    vmq = []
    for n in order:
        need = -1
        for p, lat, ds in n.preds:
            if ds:
                need = max(need, dsq.index(p))
        if need >= ds_done:
            cnt = min(15, len(dsq) - 1 - need)
            out.append(I("s_waitcnt lgkmcnt(%d)" % cnt))
            ds_done = len(dsq) - cnt
        ins = n.i
        vm = getattr(ins, "vm", None)
        if vm is not None:
            if isinstance(vm, list):
                cnt = len(vmq) - 1 - max(vmq.index(byins[id(p)]) for p in vm)
            else:
                cnt = vm + len(vmq)
            if ins.op == "s_barrier":
                out.append(I("s_waitcnt vmcnt(%d)" % min(63, cnt)))
            else:
                ins = I("s_waitcnt vmcnt(%d)" % min(63, cnt))
        out.append(ins)
        if ins.kind == "branch" and ins.tag:
            out.append(I(ins.tag + ":"))
        if ins.kind == "ds":
            dsq.append(n)
        if ins.kind in ("vmem", "dma"):
            vmq.append(n)
    pending_ds = len(dsq) - ds_done
    out = check(out, fix=True, name=name)
    if verbose:
        sys.stderr.write("sched %s: %d instrs, model %d cycles, %d ds pending at exit\n" % (name, len(out), t, pending_ds))
    return out, t
```

```python
import sys, struct, math
from isa import I, check
from lsched import schedule

KNAME = "standalone__varlen_attn_packed__ragged_kernel"
CU = [0, 580, 1085, 2082, 2797, 3498, 4341, 5079, 6042]

R = 8
SLOT = 16640
WREG = 4160
K1OFF, V0OFF, V1OFF = 1056, 2080, 3136
FLAG = R * SLOT
STAGE = FLAG + 1280
TRACE = STAGE + 16384
LDS_BYTES = TRACE + 1024

vKa, vVa, vo0, vo1, vR, vOst, vQd, vPub, vChk, vOne, vFlag, vBad = range(1, 13)
vT1, vT2, vT3 = 13, 14, 15
vMask = 16
vS = 24
vP = 40
vL = 48
vT5 = 54
vW = 56
vO = 64
vT4 = 64
vqr = vFlag
aK = 0
aV = 64
aOnes = 128
aL = 132
aC = 144
aQ = 160
sA, sB, sO_ = 4, 8, 12
sQp, sKp, sVp, sQp2 = 16, 18, 20, 22
sSoff, sStride, sCnt, sQoff = 24, 25, 26, 27
sWb, sMlim, sRc, sDelta, sLoop, sThr, sPos, sNeg = 28, 29, 30, 31, 32, 33, 34, 35
sJ1, sJ2 = 36, 41
sC = 46
sN, sM = 52, 62
sW, sNext, sCc, sTmp, sT2, sT3 = 72, 73, 74, 76, 77, 78
sTab, sTd = 80, 84
sSts = list(range(80, 92))
LEAD = 4
SCALE = math.log2(math.e) / math.sqrt(128.0)
SCALE_BITS = struct.unpack("<I", struct.pack("<f", SCALE))[0]
LO_BITS = (127 - 40) << 23
HI_BITS = (127 + 40) << 23


class Opt:
    ntkv = ""
    nto = "sc1"
    ntq = ""
    ntm = "sc1"
    ones = {2: 2, 3: 3, 4: 2, 5: 2, 6: 2}
    codepf = True
    stbias = 300
    fpos = {2: 8, 3: 9, 4: 9, 5: 9, 6: 9}
    a0, dq, dkv = 200, 800, 300
    s1at = 1400
    ppos = {2: 0, 3: 2, 4: 8, 5: 8, 6: 8}
    s2at = 2200
    short = True
    touch = False
    snake = True
    vmlag = 1500
    tune = {}
    dmabias = 2000
    qat, qstep, tmpn = 0, 350, 4
    hl = {2: 3, 3: 3, 4: 3, 5: 2, 6: 2}
    lag = 260
    stamp = False
    trace = False
    padto = 0
    padat = 0


def vr(b, n=1):
    return "v%d" % b if n == 1 else "v[%d:%d]" % (b, b + n - 1)


def ar(b, n=1):
    return "a%d" % b if n == 1 else "a[%d:%d]" % (b, b + n - 1)


def sr(b, n=1):
    return "s%d" % b if n == 1 else "s[%d:%d]" % (b, b + n - 1)


def qreg(nq, i, ks):
    if nq <= 4:
        return "v", 192 + 16 * i + 4 * ks
    free = (256 - (vO + 32 * nq)) // 16
    if i < free:
        return "v", vO + 32 * nq + 16 * i + 4 * ks
    return "a", aQ + 16 * (i - free) + 4 * ks


def qop(nq, i, ks):
    f, b = qreg(nq, i, ks)
    return vr(b, 4) if f == "v" else ar(b, 4)


def ones_blocks(nq, k):
    if k >= nq:
        return list(range(nq))
    if k == 1:
        return [0]
    if k == 2:
        return [0, (nq + 1) // 2]
    return [0] + list(range(nq - k + 1, nq))


def mf(d, a, b, c):
    return I("v_mfma_f32_16x16x32_bf16 %s, %s, %s, %s" % (d, a, b, c))


def bf16_bits(x):
    u = struct.unpack("<I", struct.pack("<f", x))[0]
    return (u + 0x7FFF + ((u >> 16) & 1)) >> 16


def bf16_val(b):
    return struct.unpack("<f", struct.pack("<I", b << 16))[0]


C_HI = bf16_bits(SCALE)
C_LO = bf16_bits(SCALE - bf16_val(C_HI))


SNAKE = True


def qk(nq, i, kbuf, sset, masked, short=False):
    out = []
    for b in range(1 if short else 2):
        d = vr(vS + 8 * sset + 4 * b, 4)
        for j, ks in enumerate((3, 2, 1, 0) if b and SNAKE else (0, 1, 2, 3)):
            c = d if j else (vr(vMask + 4 * b, 4) if masked else "0")
            out.append(mf(d, ar(aK + 32 * kbuf + 16 * b + 4 * ks, 4), qop(nq, i, ks), c))
    return out


def pv(i, vbuf, pset, zero):
    out = []
    for db in range(8):
        d = vr(vO + 32 * i + 4 * db, 4)
        out.append(mf(d, ar(aV + 32 * vbuf + 4 * db, 4), vr(vP + 4 * pset, 4), "0" if zero else d))
    return out


def onesm(slot, pset, zero):
    d = ar(aL + 4 * slot, 4)
    return mf(d, ar(aOnes, 4), vr(vP + 4 * pset, 4), "0" if zero else d)


def EXP(sset, j):
    r = vS + 8 * sset + j
    return I("v_exp_f32 v%d, v%d" % (r, r))


def CVT(sset, j):
    r = vS + 8 * sset + 2 * j
    return I("v_cvt_pk_bf16_f32 v%d, v%d, v%d" % (vP + 4 * sset + j, r, r + 1))


def kread(buf, b, ks):
    return I("ds_read_b128 %s, v%d offset:%d" % (ar(aK + 32 * buf + 16 * b + 4 * ks, 4), vKa, b * 512 + ks * 64))


def vread(buf, db, jj):
    return I("ds_read_b64_tr_b16 %s, v%d offset:%d" % (ar(aV + 32 * buf + 4 * db + 2 * jj, 2), vVa, jj * 512 + 32 * db))


def kvreads(buf):
    return [kread(buf, b, ks) for b in range(2) for ks in range(4)] + [vread(buf, db, jj) for db in range(8) for jj in range(2)]


def dmas(o, soff=sSoff):
    p = (" " + o.ntkv) if o.ntkv else ""
    return [I("buffer_load_dwordx4 v%d, %s, s%d offen%s lds" % (vo0, sr(sA, 4), soff, p)),
            I("buffer_load_dwordx4 v%d, %s, s%d offen offset:%d%s lds" % (vo1, sr(sA, 4), soff, K1OFF, p)),
            I("buffer_load_dwordx4 v%d, %s, s%d offen offset:%d%s lds" % (vo0, sr(sB, 4), soff, V0OFF, p)),
            I("buffer_load_dwordx4 v%d, %s, s%d offen offset:%d%s lds" % (vo1, sr(sB, 4), soff, V1OFF, p))]


def m0_adv():
    return [I("s_add_u32 m0, m0, s%d" % sPos), I("s_cmp_eq_u32 m0, s%d" % sMlim), I("s_cselect_b32 m0, s%d, m0" % sWb)]


def item_adv():
    t = ["s_add_u32 s%d, s%d, s%d" % (sSoff, sSoff, sStride), "s_sub_u32 s%d, s%d, 1" % (sCnt, sCnt),
         "s_cmov_b64 %s, %s" % (sr(sA, 2), sr(sN, 2)), "s_cmov_b64 %s, %s" % (sr(sB, 2), sr(sN + 2, 2)),
         "s_cmov_b64 %s, %s" % (sr(sSoff, 2), sr(sN + 4, 2)), "s_cmov_b32 s%d, s%d" % (sA + 2, sN + 6),
         "s_cmov_b32 s%d, s%d" % (sB + 2, sN + 7), "s_cmov_b32 s%d, s%d" % (sCnt, sN + 8)]
    for j in range(4):
        t.append("s_cmov_b64 %s, %s" % (sr(sN + 2 * j, 2), sr(sM + 2 * j, 2)))
    t += ["s_cmov_b32 s%d, s%d" % (sN + 8, sM + 8), "s_cmov_b64 %s, 0" % sr(sM + 6, 2), "s_cmov_b32 s%d, 0x7fffffff" % (sM + 8)]
    return [I(x) for x in t]


def ring_adv_s():
    return [I("s_sub_u32 s%d, s%d, 1" % (sRc, sRc)),
            I("s_cselect_b32 s%d, s%d, s%d" % (sDelta, sNeg, sPos)),
            I("s_cselect_b32 s%d, %d, s%d" % (sRc, R - 1, sRc))]


def ring_adv():
    return ring_adv_s() + [I("v_add_u32 v%d, s%d, v%d" % (vKa, sDelta, vKa)), I("v_add_u32 v%d, s%d, v%d" % (vVa, sDelta, vVa))]


class Gen:
    def __init__(self, o):
        self.o = o
        self.stubs = []
        self.nlab = 0

    def lab(self, p):
        self.nlab += 1
        return "L_%s_%d" % (p, self.nlab)

    def issue_item(self):
        return dmas(self.o) + m0_adv() + item_adv()[:2]

    def spin(self):
        spin, ret = self.lab("spin"), self.lab("spinret")
        self.stubs += [I(spin + ":"), I("ds_read_b32 v%d, v%d" % (vFlag, vChk)), I("s_waitcnt lgkmcnt(0)"),
                       I("v_cmp_gt_u32 vcc, s%d, v%d" % (sThr, vFlag)), I("s_nop 4"),
                       I("s_cbranch_vccnz " + spin), I("s_branch " + ret)]
        return I("s_cbranch_vccnz " + spin, tag=ret)

    def body(self, nq, par, first=False, entry=False, tail=None, vmextra=0):
        o = self.o
        ob = ones_blocks(nq, o.ones[nq])
        addb = [i for i in range(nq) if i not in ob]
        flags = entry or par == 1
        sset = lambda t, i: ((par ^ t) * nq + i) & 1
        gaps, vstart, flex = [], [], []

        def gap(m, E=None, fixed=None):
            gaps.append(dict(m=m, E=E, fixed=fixed or [], scal=[], flex=[]))
            return len(gaps) - 1

        lcount = {}

        def ADD(i, ss, j):
            n = lcount.get(i, 0)
            lcount[i] = n + 1
            l = vL + 2 * addb.index(i) + (n & 1)
            r = vS + 8 * ss + j
            if first and n < 2:
                return I("v_mov_b32 v%d, v%d" % (l, r))
            return I("v_add_f32 v%d, v%d, v%d" % (l, l, r))

        adds = []
        for v in range(nq):
            vstart.append(len(gaps))
            nxt_t, nxt_i = (0, v + 1) if v < nq - 1 else (1, 0)
            sc, sn = sset(0, v), sset(nxt_t, nxt_i)
            qm = qk(nq, nxt_i, par ^ nxt_t, sn, first and nxt_t == 0)
            pm = pv(v, par, sc, first)
            for g in range(16):
                m = qm[g] if g < 8 else pm[g - 8]
                E, fixed = None, []
                if g in (1, 3, 5):
                    E = (v, sc, 5 + g // 2)
                elif g in (7, 9, 11, 13, 15):
                    E = (nxt_i if nxt_t == 0 else -1, sn, (g - 7) // 2)
                if g in (2, 6):
                    fixed = [CVT(sc, 2 + g // 4)]
                if g in (10, 14):
                    fixed = [CVT(sn, (g - 10) // 4)]
                gi = gap(m, EXP(E[1], E[2]) if E else None, fixed)
                if E and E[0] in addb:
                    adds.append((E[0], gi, E[1], E[2]))
            if v in ob:
                gap(onesm(ob.index(v), sc, first))
        ng = len(gaps)
        vstart.append(ng)
        for (i, gi, ss, j) in adds:
            dl = ng - 1
            if i + 1 < nq:
                dl = vstart[i + 1] - 1 + (4 if j >= 4 else 0)
            flex.append([gi + 1, dl, 1, 5, ("add", i, ss, j)])
        kdl = vstart[nq - 1] - 5
        vdl = ng - (9 if nq > 2 else 6)
        for x in kvreads(par ^ 1):
            flex.append([0, kdl, 1, 1, x] if x.op == "ds_read_b128" else [0, vdl, 1, 2, x])
        ddl = max(ng // 2 - 4, 6) if nq > 2 else 14
        for d in dmas(o):
            flex.append([0, ddl, 2, 0, d])
        pend = sorted(flex, key=lambda f: (f[1], f[3]))
        slotgaps = [i for i, g in enumerate(gaps) if g["E"] is None]

        def remaining_cap(gi, upto):
            return sum(2 - len(gaps[x]["fixed"]) for x in slotgaps if gi <= x <= upto)

        bonus = set()
        ov = sum(f[2] for f in flex if f[1] <= vdl) + (3 if flags else 0) - remaining_cap(0, vdl)
        cand = [x for x in slotgaps if x <= vdl]
        for j in range(max(0, ov)):
            bonus.add(cand[(j * len(cand)) // ov] if ov <= len(cand) else cand[j % len(cand)])
        nk = nv = nd = 0
        ddone = None
        for gi in range(ng):
            g = gaps[gi]
            cap = 0 if g["E"] is not None else 2 - len(g["fixed"]) + (1 if gi in bonus else 0)
            while True:
                ready = [f for f in pend if f[0] <= gi]
                pick = next((f for f in ready if f[2] <= cap), None)
                forced = [f for f in ready if f[1] <= gi]
                if pick is None and forced:
                    pick = forced[0]
                if pick is None:
                    break
                if pick[2] == 1 and cap >= 2:
                    two = [f for f in ready if f[2] == 2]
                    urgent = [f for f in pend if f[2] == 1 and f[1] < two[0][1]] if two else []
                    if two and (not urgent or remaining_cap(gi + 1, urgent[-1][1]) + sum(1 for x in bonus if gi < x <= urgent[-1][1]) >= len(urgent)):
                        pick = two[0]
                pend.remove(pick)
                cap -= pick[2]
                ins = pick[4]
                if isinstance(ins, tuple):
                    ins = ADD(ins[1], ins[2], ins[3])
                g["flex"].append(ins)
                if ins.op == "ds_read_b128":
                    nk += 1
                    if nk == 8:
                        pend.append([gi + 1, ng - 1, 1, 6, I("v_add_u32 v%d, s%d, v%d" % (vKa, sDelta, vKa))])
                elif ins.op == "ds_read_b64_tr_b16":
                    nv += 1
                    if nv == 16:
                        pend.append([gi + 1, ng - 1, 1, 6, I("v_add_u32 v%d, s%d, v%d" % (vVa, sDelta, vVa))])
                elif ins.kind == "dma":
                    nd += 1
                    if nd == 4:
                        ddone = gi
                        if flags:
                            pg = max(gi + 2, ng // 2 - o.ppos[nq])
                            assert pg + 2 < ng - o.fpos[nq] - 3
                            pend.append([pg, pg + 4, 1, 0, I("ds_add_u32 v%d, v%d" % (vPub, vOne))])
                            pend.append([ng - o.fpos[nq] - 3, ng - o.fpos[nq], 1, 0, I("ds_read_b32 v%d, v%d" % (vFlag, vChk))])
                pend.sort(key=lambda f: (f[1], f[3]))
        assert not pend, pend
        sgaps = [i for i, g in enumerate(gaps) if not any(f.kind == "dma" for f in g["flex"])]
        used = set()

        def put(chain, lo, hi=None):
            gi = lo - 1
            for ins in chain:
                gi = min(x for x in sgaps if x > gi and x not in used)
                used.add(gi)
                gaps[gi]["scal"].append(ins)
            assert hi is None or gi <= hi, (gi, hi, chain)
            return gi

        def ds_after(pos, pred):
            seq = [f for x in range(pos) for f in gaps[x]["flex"] if f.kind == "ds"]
            return min(15, len(seq) - 1 - max(i for i, f in enumerate(seq) if pred(f)))

        find = lambda op: [x for x in range(ng) for f in gaps[x]["flex"] if f.op == op]
        kw = vstart[nq - 1] - 1
        put([I("s_waitcnt lgkmcnt(%d)" % ds_after(kw, lambda f: f.op == "ds_read_b128"))], kw, kw)
        put([I("s_waitcnt lgkmcnt(0)")], ng - 3, ng - 3)
        if flags:
            pubg = find("ds_add_u32")[0]
            assert pubg - 1 > ddone
            put([I("s_waitcnt vmcnt(%d)" % (4 * (LEAD - 1) + vmextra))], pubg - 1, pubg)
            wg = find("ds_read_b32")[0] + 5
            wg = put([I("s_waitcnt lgkmcnt(%d)" % ds_after(wg, lambda f: f.op == "ds_read_b32"))], wg, wg + 1)
            cg = min((x for x in range(wg, ng - 3) if gaps[x]["E"] is None),
                     key=lambda x: (len(gaps[x]["flex"]) + len(gaps[x]["fixed"]) >= 2, x))
            gaps[cg]["flex"].append(I("v_cmp_gt_u32 vcc, s%d, v%d" % (sThr, vFlag)))
            put([self.spin()], ng - 1, ng - 1)
        p = put(ring_adv_s(), 0, min(find("v_add_u32")) - 1)
        if flags:
            p = put([I("s_add_u32 s%d, s%d, 1" % (sThr, sThr))], p + 1, cg - 1)
        p = put(m0_adv(), max(p, ddone) + 1)
        p = put(item_adv()[:2] if entry else item_adv(), p + 1)
        tail = tail or []
        if tail:
            put(tail[:1], p + 1)
            tail = tail[1:]
        out = []
        over = 0
        for gi, g in enumerate(gaps):
            out.append(g["m"])
            for x in g["scal"]:
                out.append(x)
                if x.kind == "branch" and x.tag:
                    out.append(I(x.tag + ":"))
            out += [f for f in g["flex"] if f.kind in ("ds", "dma")]
            if g["E"] is not None:
                out.append(g["E"])
            out += g["fixed"] + [f for f in g["flex"] if f.kind not in ("ds", "dma")]
            c = sum(2 if f.kind == "dma" else 1 for f in g["flex"]) + len(g["fixed"]) + (2 if g["E"] is not None else 0)
            over += max(0, c - 2)
        out += tail
        if entry:
            out += self.issue_item()
        sys.stderr.write("body nq=%d par=%d first=%d entry=%d gaps=%d overflow=%d\n" % (nq, par, first, entry, ng, over))
        return check(out, fix=True, name="body")

    def masks(self, short):
        out = [I("v_mbcnt_lo_u32_b32 v%d, -1, 0" % vT1), I("v_mbcnt_hi_u32_b32 v%d, -1, v%d" % (vT1, vT1)),
               I("v_lshrrev_b32 v%d, 2, v%d" % (vT1, vT1)), I("v_and_b32 v%d, 12, v%d" % (vT1, vT1)),
               I("v_sub_u32 v%d, s%d, v%d" % (vT1, sC + 4, vT1)),
               I("v_cvt_f32_i32 v%d, v%d" % (vT1, vT1)), I("v_mov_b32 v0, 0x7c800000")]
        for j in range(4 if short else 8):
            kv = (j & 3) + 16 * (j >> 2)
            bits = struct.unpack("<I", struct.pack("<f", -(kv + 0.5) * 2.0 ** 122))[0]
            out += [I("v_fmaak_f32 v%d, v%d, v0, 0x%x" % (vMask + j, vT1, bits)),
                    I("v_min_f32 v%d, 0, v%d" % (vMask + j, vMask + j))]
        return out

    def p_softmax(self, nq, i, ss, js, first, lcount):
        ob = ones_blocks(nq, self.o.ones[nq])
        addb = [x for x in range(nq) if x not in ob]
        out = []
        for j in js:
            out.append(EXP(ss, j))
            if i in addb:
                n = lcount.get(i, 0)
                lcount[i] = n + 1
                l = vL + 2 * addb.index(i) + (n & 1)
                r = vS + 8 * ss + j
                out.append(I("v_mov_b32 v%d, v%d" % (l, r)) if first and n < 2 else I("v_add_f32 v%d, v%d, v%d" % (l, l, r)))
            if j & 1:
                out.append(CVT(ss, j >> 1))
        return out

    def p_epi(self, nq, i, pol):
        o = self.o
        ob = ones_blocks(nq, o.ones[nq])
        addb = [x for x in range(nq) if x not in ob]
        out = []
        A = lambda t: out.append(I(t))
        if i in ob:
            r = vMask + 2 * ob.index(i)
            A("v_accvgpr_read_b32 v%d, a%d" % (r, aL + 4 * ob.index(i)))
        else:
            r = vL + 2 * addb.index(i)
            A("v_add_f32 v%d, v%d, v%d" % (r, r, r + 1))
            for sw in ("v_permlane16_swap_b32", "v_permlane32_swap_b32"):
                A("v_mov_b32 v%d, v%d" % (r + 1, r))
                A("%s v%d, v%d" % (sw, r, r + 1))
                A("v_add_f32 v%d, v%d, v%d" % (r, r, r + 1))
        A("v_subrev_u32 v%d, 0x%x, v%d" % (vT1, LO_BITS, r))
        A("v_rcp_f32 v%d, v%d" % (r, r))
        A("v_max_u32 v%d, v%d, v%d" % (vBad, vBad, vT1))
        p = (" " + pol) if pol else ""
        b0 = vO + 32 * i
        for d4 in range(4):
            for db in (d4, d4 + 4):
                b = b0 + 4 * db
                for j in range(2):
                    A("v_pk_mul_f32 %s, %s, %s op_sel_hi:[1,0]" % (vr(b + 2 * j, 2), vr(b + 2 * j, 2), vr(r, 2)))
                    out[-1].reads.discard(("v", r + 1))
                for j in range(2):
                    A("v_cvt_pk_bf16_f32 v%d, v%d, v%d" % (b + j, b + 2 * j, b + 2 * j + 1))
            A("ds_write2st64_b64 v%d, %s, %s offset1:4" % (vW + d4, vr(b0 + 4 * d4, 2), vr(b0 + 4 * d4 + 16, 2)))
            out[-1].mw = ["stage%d" % d4]
        for k in range(4):
            A("ds_read_b128 %s, v%d offset:%d" % (vr(b0 + 8 * k, 4), vR, 1024 * k))
            out[-1].mr = ["stage%d" % x for x in range(4)]
        for k in range(4):
            A("buffer_store_dwordx4 %s, v%d, %s, s%d offen offset:%d%s" % (vr(b0 + 8 * k, 4), vOst, sr(sO_, 4), sSts[2 * i + (k & 1)], 128 * (k >> 1), p))
            out[-1].bias = o.stbias + 64 * (4 * (nq - 1 - i) + 3 - k)
        return out

    def p_last(self, nq, par, issue):
        ob = ones_blocks(nq, self.o.ones[nq])
        sset = lambda i: (par * nq + i) & 1
        out = [I("s_mov_b32 s%d, s%d" % (sO_ + 2, sC + 1))]
        for i in range(nq):
            for e in range(2):
                out.append(I("s_add_u32 s%d, s%d, %d" % (sSts[2 * i + e], sC, (64 * i + 32 * e) * 4096)))
        out += issue
        lc = {}
        for v in range(nq):
            if v < nq - 1:
                out += qk(nq, v + 1, par, sset(v + 1), False)
            out += self.p_softmax(nq, v, sset(v), (5, 6, 7), False, lc)
            out += pv(v, par, sset(v), False)
            if v in ob:
                out.append(onesm(ob.index(v), sset(v), False))
            if v < nq - 1:
                out += self.p_softmax(nq, v + 1, sset(v + 1), (0, 1, 2, 3, 4), False, lc)
            out += self.p_epi(nq, v, self.o.ntm if issue else self.o.nto)
        return out

    def p_sync(self, vm, wait_ds, start):
        w = I("s_waitcnt vmcnt(0)")
        w.vm = vm
        w.vmlag = self.o.vmlag
        w.start = start
        pub = I("ds_add_u32 v%d, v%d" % (vPub, vOne))
        pub.after = [w]
        pub.wait_ds = wait_ds
        pub.mw = ["flag"]
        pub.bias = 300
        thr = I("s_add_u32 s%d, s%d, 1" % (sThr, sThr))
        rd = I("ds_read_b32 v%d, v%d" % (vFlag, vChk))
        rd.mr = ["flag"]
        rd.lag = [(pub, self.o.lag)]
        cmp_ = I("v_cmp_gt_u32 vcc, s%d, v%d" % (sThr, vFlag))
        br = self.spin()
        br.reads |= {("s", sThr), ("v", vFlag)}
        br.writes |= {("v", vFlag), ("s", "vcc")}
        return [w, pub, thr, rd, cmp_, br]

    def p_prescale(self, nq, i, tmp=None):
        out = []
        for ks in range(4):
            f, dst = qreg(nq, i, ks)
            d = vO + 32 * (i if tmp is None else tmp) + 8 * ks
            for h in range(2):
                a = aC + 2 - 2 * h
                out += [mf(vr(d + 4 * h, 4), ar(a, 4), qop(nq, i, ks), "0"),
                        mf(vr(d + 4 * h, 4), ar(a + 4, 4), qop(nq, i, ks), vr(d + 4 * h, 4))]
            for x in out[-4:]:
                x.free = True
            for j in range(4):
                if f == "v":
                    out.append(I("v_cvt_pk_bf16_f32 v%d, v%d, v%d" % (dst + j, d + 2 * j, d + 2 * j + 1)))
                else:
                    out += [I("v_cvt_pk_bf16_f32 v%d, v%d, v%d" % (d + 2 * j, d + 2 * j, d + 2 * j + 1)),
                            I("v_accvgpr_write_b32 a%d, v%d" % (dst + j, d + 2 * j))]
        return out

    def tuned(self, fn, *key):
        import lsched
        c = self.o.tune.get(repr(key), {})
        saved = []
        for k, v in c.items():
            obj = lsched.P if hasattr(lsched.P, k) else self.o
            saved.append((obj, k, getattr(obj, k)))
            setattr(obj, k, v)
        out = fn(*key)
        for obj, k, v in saved:
            setattr(obj, k, v)
        return out

    def t_final(self, nq, par):
        out, t = schedule(self.p_last(nq, par, []), name="final nq=%d par=%d" % (nq, par))
        out.append(I("s_waitcnt vmcnt(%d)" % sum(1 for x in out if x.kind == "vmem")))
        return out

    def t_mid(self, nq1, par, nq, short):
        assert nq <= LEAD
        o = self.o
        ob = ones_blocks(nq, o.ones[nq])
        items = [self.issue_item() for _ in range(nq + 2)]
        for it in items:
            for x in it[:4]:
                x.bias = o.dmabias
        landed = lambda k: items[k - LEAD - 1][:4] if k > LEAD else 4 * (LEAD - k)
        s1 = self.p_sync(landed(nq), [], o.s1at)
        prog = []
        for i in range(nq):
            prog.append(I("v_add_u32 v%d, v%d, v%d" % (vMask + 1 + 2 * i, vKa, vQd)))
            prog += ring_adv()
        last = self.p_last(nq1, par, items[0])
        js, qreads = [], []
        prev = None
        for i in range(nq):
            w = I("s_waitcnt vmcnt(0)")
            w.vm = landed(i)
            w.start = o.qat + i * o.qstep
            w.after = [prev] if prev else []
            prev = w
            rd = [I("ds_read_b128 %s, v%d offset:%d" % (qop(nq, i, ks), vMask + 1 + 2 * i, 64 * ks)) for ks in range(4)]
            for x in rd:
                x.after = [w]
            qreads.append(rd)
            js += [w] + rd
        s1[0].after = [prev]
        js += s1
        reads = kvreads(0)
        js += reads + ring_adv()
        for x in reads:
            x.after = [s1[-1]]
        for it in items[1:3]:
            it[0].after = [s1[-1]]
            js += it
        for j, it in enumerate(items[3:]):
            it[0].wait_ds = qreads[j]
            js += it
        s2 = self.p_sync(landed(nq + 1), [], o.s2at)
        js += s2
        kv1 = kvreads(1)
        for x in kv1:
            x.after = [s2[-1]]
        js += self.set_compute(sJ2) + [I("s_mov_b32 s%d, 0" % sNext)] + self.masks(short)
        if short:
            js += [I("v_mov_b32 v%d, 0" % (vP + 4 * ss + j)) for ss in range(2) for j in (2, 3)]
        lc = {}
        for i in range(nq + 1):
            if i < nq:
                js += self.p_prescale(nq, i, 3 if nq1 < 4 and i < o.tmpn else None) + qk(nq, i, 0, i & 1, True, short)
            else:
                js += kv1 + ring_adv() + qk(nq, 0, 1, nq & 1, False)
            if i:
                js += pv(i - 1, 0, (i - 1) & 1, True)
                if i - 1 in ob:
                    js.append(onesm(ob.index(i - 1), (i - 1) & 1, True))
            js += self.p_softmax(nq, i % nq, i & 1, range(5 if i == nq else 4 if short else 8), i < nq, lc)
        js += [I("s_sub_u32 s%d, s%d, 3" % (sLoop, sC + 3))]
        s3 = self.p_sync(landed(nq + 2), [], 0)
        late = [x for x in js if x.kind == "mfma" and not getattr(x, "free", False)]
        s3[0].after = [late[-40]]
        s3[3].after = [late[-20]]
        s3[5].wait_ds = kv1
        s3[5].lag = [(items[-3][3], o.vmlag - 200)]
        js += s3
        out, t = schedule(prog + last + js, name="mid %d(par %d)->%d%s" % (nq1, par, nq, "s" if short else ""))
        return out

    def srd_kv(self):
        return [I("s_mov_b64 %s, %s" % (sr(sA, 2), sr(sKp, 2))), I("s_mov_b64 %s, %s" % (sr(sB, 2), sr(sVp, 2))),
                I("s_add_u32 s%d, s%d, %d" % (sB + 2, sJ1 + 2, V0OFF))]

    def srd_q(self):
        return [I("s_mov_b64 %s, %s" % (sr(sA, 2), sr(sQp, 2))), I("s_mov_b64 %s, %s" % (sr(sB, 2), sr(sQp2, 2))),
                I("s_sub_u32 s%d, s%d, %d" % (sB + 2, sJ1 + 2, 32 * 4096 - V0OFF))]

    def head_dmas(self, k, kind):
        d = dmas(self.o, sQoff if kind == "q" else sSoff)
        so = sQoff if kind == "q" else sSoff
        return d + [I("s_add_u32 m0, s%d, %d" % (sWb, ((k + 1) % R) * SLOT)),
                    I("s_add_u32 s%d, s%d, %d" % (so, so, 64 * 4096 if kind == "q" else -32 * 4096))]

    def head(self, nq, short):
        o = self.o
        ob = ones_blocks(nq, o.ones[nq])
        kind = ["q", "kv", "kv"] + ["q"] * (nq - 1) + ["kv"] * 5
        groups = {}
        state = ["kv"]

        def issue(k):
            out = []
            if kind[k] != state[0]:
                out += self.srd_q() if kind[k] == "q" else self.srd_kv()
                state[0] = kind[k]
            d = self.head_dmas(k, kind[k])
            groups[k] = d[:4]
            for x in d[:4]:
                x.bias = 3000
            return out + d

        prog = self.masks(short)
        if short:
            prog += [I("v_mov_b32 v%d, 0" % (vP + j)) for j in (2, 3)]
        t = o.a0
        reads = {}
        prev = None
        lastbar = None
        lc = {}
        visit = [0]
        pend = [None]

        def flush_pv():
            if pend[0] is None:
                return []
            i, tile, ss = pend[0]
            pend[0] = None
            out = pv(i, tile, ss, tile == 0)
            if i in ob:
                out.append(onesm(ob.index(i), ss, tile == 0))
            return out

        def do_visit(i, tile):
            ss = visit[0] & 1
            visit[0] += 1
            out = qk(nq, i, tile, ss, tile == 0, short and tile == 0) + flush_pv()
            out += self.p_softmax(nq, i, ss, range(4 if short and tile == 0 else 8), tile == 0, lc)
            pend[0] = (i, tile, ss)
            return out

        kpos, qpos = 0, 0
        qi = nkv = 0
        nxt, hl = 3, o.hl[nq]
        bars = []
        for k in range(nq + 4):
            todo = list(range(nxt, nq + 7 if k == nq + 3 else max(nxt, k + hl + 1)))
            nxt += len(todo)
            bar = kind[k] == "kv" or any(j >= R and kind[j - R] == "kv" and not any(b > j - R for b in bars) for j in todo)
            w = I("s_barrier" if bar else "s_waitcnt vmcnt(0)")
            w.vm = 4 * (2 - k) + (2 if o.touch else 0) if k < 3 else groups[k]
            w.start = t
            w.after = [prev] if prev else []
            if bar:
                w.wait_ds = [x for jj in reads for x in reads[jj]]
                bars.append(k)
            prog.append(w)
            prev = w
            t += o.dq if (k + 1 < len(kind) and kind[k + 1] == "q") else o.dkv
            for j in todo:
                it = issue(j)
                first = [x for x in it if x.kind == "dma"][0]
                first.after = [w]
                if j >= R and kind[j - R] == "q":
                    first.wait_ds = reads[j - R]
                prog += it
            if k == nq + 3:
                break
            if kind[k] == "q":
                if k % R != qpos:
                    prog.append(I("v_add_u32 v%d, %d, v%d" % (vqr, (k % R - qpos) * SLOT, vqr)))
                    qpos = k % R
                rd = [I("ds_read_b128 %s, v%d offset:%d" % (qop(nq, qi, ks), vqr, 64 * ks)) for ks in range(4)]
                prog += rd + self.p_prescale(nq, qi)
                if qi > 0:
                    prog += do_visit(qi, 0) + do_visit(qi, 1)
                qi += 1
            else:
                prog += [I("v_add_u32 v%d, %d, v%d" % (r, (k % R - kpos) * SLOT, r)) for r in (vKa, vVa)]
                kpos = k % R
                rd = kvreads(nkv & 1)
                prog += rd
                if nkv == 2:
                    prog += qk(nq, 0, 0, 0, False) + flush_pv() + self.p_softmax(nq, 0, 0, range(5), False, lc)
                else:
                    prog += do_visit(0, nkv)
                nkv += 1
            for x in rd:
                x.after = [w]
            reads[k] = rd
        k = nq + 3
        prog += [I("v_add_u32 v%d, %d, v%d" % (r, (k % R - kpos) * SLOT, r)) for r in (vKa, vVa)]
        prog += [I("s_mov_b32 s%d, %d" % (sRc, R - 1 - k % R)), I("s_sub_u32 s%d, s%d, 8" % (sCnt, sJ1 + 4)),
                 I("s_sub_u32 s%d, s%d, 5" % (sLoop, sC + 3))]
        out, t = schedule(prog, name="head nq=%d%s" % (nq, "s" if short else ""))
        return out

    def addr_setup(self):
        t1, t2, t3, ln = vT1, vT2, vT3, vT4
        o = []
        A = lambda s: o.append(I(s))
        A("v_lshrrev_b32 v%d, 6, v0" % t1)
        A("v_bfe_u32 v%d, v0, 4, 2" % t2)
        A("v_readfirstlane_b32 s%d, v%d" % (sW, t1))
        A("v_and_b32 v%d, 15, v0" % t3)
        A("v_lshlrev_b32 v%d, 13, v%d" % (vo0, t1))
        A("v_lshl_add_u32 v%d, v%d, 15, v%d" % (vo0, t2, vo0))
        A("v_lshl_add_u32 v%d, v%d, 4, v%d" % (vo0, t3, vo0))
        A("v_add_u32 v%d, %d, v%d" % (vo1, 4096 - K1OFF, vo0))
        early, o = o, []
        A = lambda s: o.append(I(s))
        A("v_and_b32 v%d, 63, v0" % ln)
        A("v_and_b32 v%d, 1, v%d" % (vqr, ln))
        A("v_mul_u32_u24 v%d, %d, v%d" % (vqr, K1OFF, vqr))
        A("v_bfe_u32 v%d, v%d, 3, 1" % (vT4 + 1, ln))
        A("v_mad_u32_u24 v%d, v%d, s%d, v%d" % (vqr, vT4 + 1, sT3, vqr))
        A("v_bfe_u32 v%d, v%d, 1, 2" % (vT4 + 1, ln))
        A("v_lshl_add_u32 v%d, v%d, 8, v%d" % (vqr, vT4 + 1, vqr))
        A("v_lshl_add_u32 v%d, v%d, 4, v%d" % (vqr, t2, vqr))
        A("v_mul_u32_u24 v%d, %d, v%d" % (vT4 + 1, WREG, t1))
        A("v_add_u32 v%d, v%d, v%d" % (vqr, vqr, vT4 + 1))
        A("v_lshrrev_b32 v%d, 3, v%d" % (vR, ln))
        A("v_bfe_u32 v%d, v%d, 3, 1" % (vOst, ln))
        A("v_lshl_add_u32 v%d, v%d, 1, v%d" % (vOst, t1, vOst))
        A("v_lshl_add_u32 v%d, v%d, 3, v%d" % (vOst, t2, vOst))
        A("v_lshlrev_b32 v%d, 12, v%d" % (vOst, vOst))
        A("v_and_b32 v%d, 7, v%d" % (vW, ln))
        A("v_lshl_add_u32 v%d, v%d, 4, v%d" % (vOst, vW, vOst))
        A("v_xor_b32 v%d, v%d, v%d" % (vW + 1, vW, vR))
        A("v_lshlrev_b32 v%d, 4, v%d" % (vW + 1, vW + 1))
        A("v_lshl_add_u32 v%d, v%d, 7, v%d" % (vR, vR, vW + 1))
        A("v_lshlrev_b32 v%d, 12, v%d" % (vW + 3, t1))
        A("v_add_u32 v%d, %d, v%d" % (vW + 3, STAGE, vW + 3))
        A("v_add_u32 v%d, v%d, v%d" % (vR, vR, vW + 3))
        A("v_lshrrev_b32 v%d, 1, v%d" % (vW + 1, t2))
        A("v_xor_b32 v%d, v%d, v%d" % (vW, vW, vW + 1))
        A("v_lshlrev_b32 v%d, 4, v%d" % (vW, vW))
        A("v_and_b32 v%d, 1, v%d" % (vW + 1, t2))
        A("v_lshl_add_u32 v%d, v%d, 3, v%d" % (vW, vW + 1, vW))
        A("v_lshl_add_u32 v%d, v%d, 7, v%d" % (vW, t3, vW))
        A("v_add_u32 v%d, v%d, v%d" % (vW, vW, vW + 3))
        A("v_xor_b32 v%d, 32, v%d" % (vW + 1, vW))
        A("v_xor_b32 v%d, 64, v%d" % (vW + 2, vW))
        A("v_xor_b32 v%d, 0x60, v%d" % (vW + 3, vW))
        A("v_bfe_u32 v%d, v%d, 1, 2" % (vKa, ln))
        A("v_mul_u32_u24 v%d, %d, v%d" % (vKa, WREG, vKa))
        A("v_and_b32 v%d, 1, v%d" % (vT4 + 1, ln))
        A("v_mul_u32_u24 v%d, %d, v%d" % (vT4 + 2, K1OFF, vT4 + 1))
        A("v_add_u32 v%d, v%d, v%d" % (vKa, vKa, vT4 + 2))
        A("v_bfe_u32 v%d, v%d, 3, 1" % (vT4 + 2, ln))
        A("v_lshl_add_u32 v%d, v%d, 8, v%d" % (vKa, vT4 + 2, vKa))
        A("v_lshl_add_u32 v%d, v%d, 4, v%d" % (vKa, t2, vKa))
        A("v_sub_u32 v%d, v%d, v%d" % (vQd, vqr, vKa))
        A("v_bfe_u32 v%d, v%d, 3, 2" % (vVa, ln))
        A("v_mul_u32_u24 v%d, %d, v%d" % (vVa, WREG, vVa))
        A("v_bfe_u32 v%d, v%d, 2, 1" % (vT4 + 2, ln))
        A("v_mul_u32_u24 v%d, %d, v%d" % (vT4 + 2, V1OFF - V0OFF, vT4 + 2))
        A("v_add_u32 v%d, v%d, v%d" % (vVa, vVa, vT4 + 2))
        A("v_lshrrev_b32 v%d, 5, v%d" % (vT4 + 2, ln))
        A("v_lshl_add_u32 v%d, v%d, 8, v%d" % (vVa, vT4 + 2, vVa))
        A("v_and_b32 v%d, 3, v%d" % (vT4 + 2, ln))
        A("v_lshl_add_u32 v%d, v%d, 3, v%d" % (vVa, vT4 + 2, vVa))
        A("v_add_u32 v%d, %d, v%d" % (vVa, V0OFF, vVa))
        A("v_mul_u32_u24 v%d, 260, v%d" % (vChk, vT4 + 2))
        A("v_add_u32 v%d, %d, v%d" % (vChk, FLAG, vChk))
        A("v_lshlrev_b32 v%d, 2, v0" % vPub)
        A("v_add_u32 v%d, %d, v%d" % (vPub, FLAG, vPub))
        A("v_mov_b32 v%d, 1" % vOne)
        return early, [I("s_mov_b32 s%d, %d" % (sT3, V0OFF))] + o

    def decode_job(self, d0, d1, dst):
        o = []
        A = lambda s: o.append(I(s))
        A("s_bfe_u32 s%d, s%d, 0x10011" % (sT2, d0))
        A("s_lshl_b32 s%d, s%d, 8" % (sT2, sT2))
        A("s_add_u32 s%d, s%d, s%d" % (sT2, sT2, sTmp))
        A("s_and_b32 s%d, s%d, 0x1fff" % (dst, d0))
        A("s_lshl_b32 s%d, s%d, 12" % (dst, dst))
        A("s_add_u32 s%d, s%d, s%d" % (dst, dst, sT2))
        A("s_lshr_b32 s%d, s%d, 13" % (dst + 2, d1))
        A("s_lshl_b32 s%d, s%d, 12" % (dst + 2, dst + 2))
        p2 = []
        B = lambda s: p2.append(I(s))
        B("s_and_b32 s%d, s%d, 0x1fff" % (dst + 1, d1))
        B("s_lshl_b32 s%d, s%d, 12" % (dst + 1, dst + 1))
        B("s_add_u32 s%d, s%d, s%d" % (dst + 1, dst + 1, sT2))
        B("s_bfe_u32 s%d, s%d, 0x3000d" % (dst + 3, d0))
        B("s_lshr_b32 s%d, s%d, 20" % (dst + 4, d0))
        return o, p2

    def set_compute(self, j):
        o = []
        A = lambda s: o.append(I(s))
        A("s_mov_b32 s%d, s%d" % (sC, j))
        A("s_mov_b32 s%d, s%d" % (sC + 1, j + 2))
        A("s_mov_b32 s%d, s%d" % (sC + 3, j + 4))
        A("s_lshr_b32 s%d, s%d, 12" % (sT2, j + 2))
        A("s_lshr_b32 s%d, s%d, 12" % (sT3, j + 1))
        A("s_sub_u32 s%d, s%d, s%d" % (sT2, sT2, sT3))
        A("s_lshl_b32 s%d, s%d, 5" % (sT3, j + 4))
        A("s_sub_u32 s%d, s%d, s%d" % (sT2, sT2, sT3))
        A("s_add_u32 s%d, s%d, 32" % (sC + 4, sT2))
        return o

    def queue_setup(self):
        o = []
        A = lambda s: o.append(I(s))
        j = sJ2
        A("s_mov_b64 %s, %s" % (sr(sN, 2), sr(sQp, 2)))
        A("s_mov_b64 %s, %s" % (sr(sN + 2, 2), sr(sQp2, 2)))
        A("s_mov_b32 s%d, s%d" % (sN + 4, j))
        A("s_mov_b32 s%d, %d" % (sN + 5, 64 * 4096))
        A("s_mov_b64 %s, %s" % (sr(sM, 2), sr(sKp, 2)))
        A("s_mov_b64 %s, %s" % (sr(sM + 2, 2), sr(sVp, 2)))
        A("s_sub_u32 s%d, s%d, 1" % (sM + 8, j + 4))
        A("s_lshl_b32 s%d, s%d, 17" % (sM + 4, sM + 8))
        A("s_add_u32 s%d, s%d, s%d" % (sM + 4, sM + 4, j + 1))
        A("s_mov_b32 s%d, %d" % (sM + 5, -32 * 4096))
        A("s_mov_b32 s%d, s%d" % (sN + 6, j + 2))
        A("s_sub_u32 s%d, s%d, %d" % (sN + 7, j + 2, 32 * 4096 - V0OFF))
        A("s_sub_u32 s%d, s%d, 1" % (sN + 8, j + 3))
        A("s_mov_b32 s%d, s%d" % (sM + 6, j + 2))
        A("s_add_u32 s%d, s%d, %d" % (sM + 7, j + 2, V0OFF))
        A("s_cmp_eq_u32 s%d, 0" % (j + 3))
        A("s_cmov_b64 %s, 0" % sr(sN + 6, 2))
        A("s_cmov_b32 s%d, 0x7fffffff" % (sN + 8))
        return o

    def slow(self):
        o = []
        A = lambda s: o.append(I(s))
        Qf, Kf, Vf, Oa, S, P = 192, 128, 160, 64, vS, vP
        m, l, al, t, u = vL, vL + 1, vL + 2, vL + 3, vL + 4
        vSrc, vG4, vSt = vL + 5, vL + 6, vL + 7
        sJob, sBlk, sTile, sRow, sLeft, sBase, sSt = range(sN, sN + 7)
        sj = sM
        A("L_slow:")
        A("s_waitcnt vmcnt(0)")
        A("v_mbcnt_lo_u32_b32 v0, -1, 0")
        A("v_mbcnt_hi_u32_b32 v0, -1, v0")
        A("v_lshrrev_b32 v%d, 4, v0" % vG4)
        A("v_and_b32 v%d, 15, v0" % t)
        A("v_lshlrev_b32 v%d, 15, v%d" % (vSrc, vG4))
        A("v_lshl_add_u32 v%d, v%d, 4, v%d" % (vSrc, t, vSrc))
        A("v_lshlrev_b32 v%d, 2, v%d" % (vG4, vG4))
        A("s_lshl_b32 s%d, s%d, 6" % (sT2, sW))
        A("v_add_u32 v0, s%d, v0" % sT2)
        o += sum(self.addr_setup(), [])
        A("v_and_b32 v%d, 1, v%d" % (vOst, vT3))
        A("v_lshl_add_u32 v%d, v%d, 1, v%d" % (vOst, vT1, vOst))
        A("v_bfe_u32 v%d, v%d, 1, 3" % (vSt, vT3))
        A("v_lshl_add_u32 v%d, v%d, 3, v%d" % (vOst, vSt, vOst))
        A("v_lshlrev_b32 v%d, 12, v%d" % (vOst, vOst))
        A("v_lshl_add_u32 v%d, v%d, 3, v%d" % (vSt, vT2, vOst))
        A("v_lshl_add_u32 v%d, v%d, 4, v%d" % (vOst, vT2, vOst))
        A("s_mul_i32 s%d, s%d, %d" % (sBase, sW, SLOT))
        A("v_add_u32 v%d, s%d, v%d" % (vKa, sBase, vKa))
        A("v_add_u32 v%d, s%d, v%d" % (vVa, sBase, vVa))
        A("s_mov_b32 s%d, 0" % sJob)
        for j in range(5):
            A("s_mov_b32 s%d, s%d" % (sj + j, sJ1 + j))
        A("L_slow_job:")
        A("s_mov_b32 s%d, 0" % sBlk)
        A("L_slow_blk:")
        A("s_mov_b64 %s, %s" % (sr(sA, 2), sr(sQp, 2)))
        A("s_mov_b32 s%d, s%d" % (sA + 2, sj + 2))
        A("s_lshl_b32 s%d, s%d, 18" % (sSt, sBlk))
        A("s_add_u32 s%d, s%d, s%d" % (sSt, sSt, sj))
        for ks in range(4):
            A("buffer_load_dwordx4 %s, v%d, %s, s%d offen offset:%d" % (vr(Kf + 4 * ks, 4), vOst, sr(sA, 4), sSt, 64 * ks))
        A("s_waitcnt vmcnt(0)")
        for j in range(16):
            A("v_lshlrev_b32 v%d, 16, v%d" % (t, Kf + j))
            A("v_and_b32 v%d, 0xffff0000, v%d" % (u, Kf + j))
            A("v_mul_f32 v%d, s%d, v%d" % (t, sCc, t))
            A("v_mul_f32 v%d, s%d, v%d" % (u, sCc, u))
            A("v_cvt_pk_bf16_f32 v%d, v%d, v%d" % (Qf + j, t, u))
        for j in range(32):
            A("v_mov_b32 v%d, 0" % (Oa + j))
        A("v_mov_b32 v%d, 0xff800000" % m)
        A("v_mov_b32 v%d, 0" % l)
        A("s_mov_b64 %s, %s" % (sr(sA, 2), sr(sKp, 2)))
        A("s_mov_b64 %s, %s" % (sr(sB, 2), sr(sVp, 2)))
        A("s_add_u32 s%d, s%d, %d" % (sB + 2, sj + 2, V0OFF))
        A("s_mov_b32 s%d, s%d" % (sRow, sj + 1))
        A("s_lshr_b32 s%d, s%d, 12" % (sLeft, sj + 2))
        A("s_lshr_b32 s%d, s%d, 12" % (sT2, sj + 1))
        A("s_sub_u32 s%d, s%d, s%d" % (sLeft, sLeft, sT2))
        A("s_mov_b32 s%d, s%d" % (sTile, sj + 4))
        A("L_slow_tile:")
        for sg in range(8):
            A("s_add_u32 s%d, s%d, %d" % (sT2, sRow, sg * 4096))
            A("s_add_u32 m0, s%d, %d" % (sBase, (sg >> 1) * WREG + (sg & 1) * K1OFF))
            A("buffer_load_dwordx4 v%d, %s, s%d offen lds" % (vSrc, sr(sA, 4), sT2))
            A("buffer_load_dwordx4 v%d, %s, s%d offen offset:%d lds" % (vSrc, sr(sB, 4), sT2, V0OFF))
        A("s_waitcnt vmcnt(0)")
        for b in range(2):
            for ks in range(4):
                A("ds_read_b128 %s, v%d offset:%d" % (vr(Kf + 16 * b + 4 * ks, 4), vKa, b * 512 + ks * 64))
        A("s_waitcnt lgkmcnt(0)")
        for db in range(8):
            for jj in range(2):
                A("ds_read_b64_tr_b16 %s, v%d offset:%d" % (vr(Vf + 4 * db + 2 * jj, 2), vVa, jj * 512 + 32 * db))
        for b in range(2):
            for ks in range(4):
                d = vr(S + 4 * b, 4)
                o.append(mf(d, vr(Kf + 16 * b + 4 * ks, 4), vr(Qf + 4 * ks, 4), d if ks else "0"))
        A("v_mov_b32 v%d, 0xff800000" % u)
        for j in range(8):
            A("v_add_u32 v%d, %d, v%d" % (t, (j & 3) + 16 * (j >> 2), vG4))
            A("v_cmp_gt_u32 vcc, s%d, v%d" % (sLeft, t))
            A("v_cndmask_b32 v%d, v%d, v%d, vcc" % (S + j, u, S + j))
        A("v_max3_f32 v%d, v%d, v%d, v%d" % (t, S, S + 1, S + 2))
        A("v_max3_f32 v%d, v%d, v%d, v%d" % (t, t, S + 3, S + 4))
        A("v_max3_f32 v%d, v%d, v%d, v%d" % (t, t, S + 5, S + 6))
        A("v_max3_f32 v%d, v%d, v%d, v%d" % (t, t, S + 7, m))
        for sw in ("v_permlane16_swap_b32", "v_permlane32_swap_b32"):
            A("v_mov_b32 v%d, v%d" % (u, t))
            A("%s v%d, v%d" % (sw, t, u))
            A("v_max_f32 v%d, v%d, v%d" % (t, t, u))
        A("v_sub_f32 v%d, v%d, v%d" % (al, m, t))
        A("v_exp_f32 v%d, v%d" % (al, al))
        A("v_mov_b32 v%d, v%d" % (m, t))
        for j in range(8):
            A("v_sub_f32 v%d, v%d, v%d" % (S + j, S + j, m))
        for j in range(8):
            A("v_exp_f32 v%d, v%d" % (S + j, S + j))
        A("v_mul_f32 v%d, v%d, v%d" % (l, l, al))
        for j in range(8):
            A("v_add_f32 v%d, v%d, v%d" % (l, l, S + j))
        for j in range(4):
            A("v_cvt_pk_bf16_f32 v%d, v%d, v%d" % (P + j, S + 2 * j, S + 2 * j + 1))
        for j in range(32):
            A("v_mul_f32 v%d, v%d, v%d" % (Oa + j, Oa + j, al))
        A("s_waitcnt lgkmcnt(0)")
        for db in range(8):
            d = vr(Oa + 4 * db, 4)
            o.append(mf(d, vr(Vf + 4 * db, 4), vr(P, 4), d))
        A("s_add_u32 s%d, s%d, %d" % (sRow, sRow, 32 * 4096))
        A("s_sub_u32 s%d, s%d, 32" % (sLeft, sLeft))
        A("s_nop 7")
        A("s_sub_u32 s%d, s%d, 1" % (sTile, sTile))
        A("s_cmp_lg_u32 s%d, 0" % sTile)
        A("s_cbranch_scc1 L_slow_tile")
        for sw in ("v_permlane16_swap_b32", "v_permlane32_swap_b32"):
            A("v_mov_b32 v%d, v%d" % (u, l))
            A("%s v%d, v%d" % (sw, l, u))
            A("v_add_f32 v%d, v%d, v%d" % (l, l, u))
        A("v_rcp_f32 v%d, v%d" % (l, l))
        A("s_mov_b32 s%d, s%d" % (sO_ + 2, sj + 2))
        for j in range(32):
            A("v_mul_f32 v%d, v%d, v%d" % (Oa + j, Oa + j, l))
        for db in range(8):
            b = Oa + 4 * db
            for j in range(2):
                A("v_cvt_pk_bf16_f32 v%d, v%d, v%d" % (b + j, b + 2 * j, b + 2 * j + 1))
            A("buffer_store_dwordx2 %s, v%d, %s, s%d offen offset:%d" % (vr(b, 2), vSt, sr(sO_, 4), sSt, 32 * db))
        A("s_waitcnt vmcnt(0)")
        A("s_add_u32 s%d, s%d, 1" % (sBlk, sBlk))
        A("s_cmp_lt_u32 s%d, s%d" % (sBlk, sj + 3))
        A("s_cbranch_scc1 L_slow_blk")
        A("s_cmp_lg_u32 s%d, 0" % sJob)
        A("s_cbranch_scc1 L_end")
        A("s_mov_b32 s%d, 1" % sJob)
        for j in range(5):
            A("s_mov_b32 s%d, s%d" % (sj + j, sJ2 + j))
        A("s_cmp_lg_u32 s%d, 0" % (sj + 3))
        A("s_cbranch_scc1 L_slow_job")
        A("s_branch L_end")
        return check(o, fix=True, name="slow")

    def trace_init(self):
        if not self.o.trace:
            return []
        return [I("s_lshl_b32 s92, s%d, 8" % sW), I("s_add_u32 s92, s92, %d" % TRACE), I("v_mov_b32 v61, s92")]

    def padmark(self, idx):
        return [I("s_memrealtime s[98:99]")] if self.o.padto and self.o.padat == idx else []

    def stamp(self, idx):
        if not self.o.stamp:
            return self.padmark(idx) if idx else []
        return [I("s_memtime s[94:95]"), I("s_memrealtime s[96:97]"), I("s_waitcnt lgkmcnt(0)"),
                I("v_writelane_b32 v62, s94, %d" % idx), I("v_writelane_b32 v63, s96, %d" % idx)]

    def kernel(self, table):
        o = self.o
        out = []
        A = lambda s: out.append(I(s))
        A("s_cmp_ge_u32 s2, 256")
        A("s_cbranch_scc1 L_end")
        out += self.stamp(0)
        out += self.padmark(0)
        A("s_load_dwordx4 %s, s[0:1], 0" % sr(sQp, 4))
        A("s_load_dwordx2 %s, s[0:1], 16" % sr(sVp, 2))
        A("s_getpc_b64 %s" % sr(sTab, 2))
        A("L_pc:")
        A("s_lshr_b32 s%d, s2, 3" % sTmp)
        A("s_lshl_b32 s%d, s%d, 4" % (sT2, sTmp))
        A("s_add_u32 s%d, s%d, L_table-L_pc" % (sT2, sT2))
        A("s_add_u32 s%d, s%d, s%d" % (sTab + 2, sTab, sT2))
        A("s_addc_u32 s%d, s%d, 0" % (sTab + 3, sTab + 1))
        A("s_load_dwordx4 %s, %s, 0" % (sr(sTd, 4), sr(sTab + 2, 2)))
        A("s_load_dwordx2 %s, s[0:1], 32" % sr(sO_, 2))
        early, late = self.addr_setup()
        if o.codepf:
            A("s_lshl_b32 s%d, s%d, 12" % (sT2, sTmp))
            A("v_min_u32 v%d, 31, v0" % vT4)
            A("v_lshl_add_u32 v%d, v%d, 7, s%d" % (vT4, vT4, sT2))
            A("v_min_u32 v%d, L_slow-L_pc-8, v%d" % (vT4, vT4))
            A("global_load_dword v%d, v%d, %s" % (vT4 + 4, vT4, sr(sTab, 2)))
        out += early
        A("s_mov_b32 s%d, 0x20000" % (sA + 3))
        A("s_mov_b32 s%d, 0x20000" % (sB + 3))
        A("s_mul_i32 s%d, s%d, %d" % (sWb, sW, WREG))
        A("s_and_b32 s%d, s2, 7" % sTmp)
        A("s_lshl_b32 s%d, s%d, 9" % (sTmp, sTmp))
        A("s_mov_b32 m0, s%d" % sWb)
        A("s_waitcnt lgkmcnt(0)")
        A("s_add_u32 s%d, s%d, %d" % (sQp2, sQp, 32 * 4096 - V0OFF))
        A("s_addc_u32 s%d, s%d, 0" % (sQp2 + 1, sQp + 1))
        d1a, d1b = self.decode_job(sTd, sTd + 1, sJ1)
        out += d1a + self.srd_q() + [I("s_mov_b32 s%d, s%d" % (sA + 2, sJ1 + 2)), I("s_mov_b32 s%d, s%d" % (sQoff, sJ1))]
        out += self.head_dmas(0, "q")
        A("s_sub_u32 s%d, s%d, %d" % (sVp, sVp, V0OFF))
        A("s_subb_u32 s%d, s%d, 0" % (sVp + 1, sVp + 1))
        out += d1b
        A("s_sub_u32 s%d, s%d, 1" % (sSoff, sJ1 + 4))
        A("s_lshl_b32 s%d, s%d, 17" % (sSoff, sSoff))
        A("s_add_u32 s%d, s%d, s%d" % (sSoff, sSoff, sJ1 + 1))
        out += self.srd_kv() + self.head_dmas(1, "kv") + self.head_dmas(2, "kv")
        out += late
        A("v_mov_b32 v%d, 0" % vBad)
        A("ds_write_b32 v%d, v%d" % (vPub, vBad))
        A("v_mov_b32 v%d, 0x3f803f80" % vT1)
        for j in range(4):
            A("v_accvgpr_write_b32 a%d, v%d" % (aOnes + j, vT1))
        A("v_bfe_u32 v%d, v0, 2, 2" % vT1)
        A("v_cmp_eq_u32 vcc, v%d, v%d" % (vT1, vT2))
        A("v_and_b32 v%d, 1, v0" % vT1)
        A("v_lshlrev_b32 v%d, 4, v%d" % (vT1, vT1))
        A("v_cndmask_b32 v%d, 0, v%d, vcc" % (vT2, vOne))
        A("v_lshlrev_b32 v%d, v%d, v%d" % (vT2, vT1, vT2))
        A("v_bfe_u32 v%d, v0, 1, 1" % vT1)
        A("v_mul_u32_u24 v%d, v%d, v%d" % (vT3, vT1, vT2))
        A("v_sub_u32 v%d, v%d, v%d" % (vT2, vT2, vT3))
        for b, c in ((aC + 2, C_HI), (aC + 6, C_LO)):
            for j, r in enumerate((vT2, vT3)):
                A("v_mul_u32_u24 v%d, 0x%x, v%d" % (vT1, c, r))
                A("v_accvgpr_write_b32 a%d, v%d" % (b + j, vT1))
        for j in (0, 1, 4, 5, 8, 9):
            A("v_accvgpr_write_b32 a%d, 0" % (aC + j))
        A("s_add_u32 s%d, s%d, %d" % (sMlim, sWb, R * SLOT))
        A("s_mov_b32 s%d, 0" % sThr)
        A("s_mov_b32 s%d, %d" % (sPos, SLOT))
        A("s_mov_b32 s%d, %d" % (sNeg, -(R - 1) * SLOT))
        A("s_mov_b32 s%d, 0x%x" % (sCc, SCALE_BITS))
        A("s_mov_b32 s%d, 0x20000" % (sO_ + 3))
        A("s_mov_b32 s%d, 0" % (sO_ + 2))
        A("s_mov_b32 s%d, %d" % (sStride, -32 * 4096))
        d2a, d2b = self.decode_job(sTd + 2, sTd + 3, sJ2)
        out += d2a + d2b + self.queue_setup() + self.set_compute(sJ1)
        if o.touch:
            A("s_mov_b32 s%d, %d" % (sO_ + 2, CU[-1] * 4096))
            A("v_lshlrev_b32 v%d, 12, v0" % (vT4 + 5))
            A("buffer_load_dword v%d, v%d, %s, s%d offen" % (63, vT4 + 5, sr(sO_, 4), sJ1))
            A("buffer_load_dword v%d, v%d, %s, s%d offen" % (63, vT4 + 5, sr(sO_, 4), sJ2))
        A("s_bfe_u32 s%d, s%d, 0x4000d" % (sNext, sTd + 2))
        A("s_bfe_u32 s%d, s%d, 0x4000d" % (sT2, sTd))
        A("s_waitcnt lgkmcnt(0)")
        out += self.stamp(1)
        for code in o.heads[:-1]:
            out += [I("s_cmp_eq_u32 s%d, %d" % (sT2, code)), I("s_cbranch_scc1 L_first%d" % code)]
        A("s_branch L_first%d" % o.heads[-1])
        out = check(out, fix=True, name="entry")
        loops = {}
        for nq in o.nqs:
            dec = I("s_sub_u32 s%d, s%d, 1" % (sLoop, sLoop))
            bA = self.body(nq, 1, tail=[dec, I("s_cbranch_scc1 L_last0_%d" % nq)])
            bB = self.body(nq, 0, tail=[dec, I("s_cbranch_scc0 L_loop%d" % nq)])
            check(bA + bB + bA, name="loop")
            loops[nq] = (bA, bB)
        for nq in o.nqs:
            bA, bB = loops[nq]
            mine = [c for c in o.heads if c & 7 == nq]
            if mine:
                b2 = self.body(nq, 0, entry=True)
                check(b2 + bA, name="b2-bA")
                for code in mine:
                    h = self.head(nq, code >> 3)
                    check(h + b2, name="head-b2")
                    out += [I("L_first%d:" % code)] + h
                    if code != mine[-1]:
                        out += [I("s_branch L_step2_%d" % nq)]
                out += [I("L_step2_%d:" % nq)] + self.trace_init() + self.stamp(2) + self.padmark(12) + b2 + self.stamp(5)
            if o.trace:
                tr0 = [I("s_memtime s[98:99]")]
                tr1 = [I("v_mov_b32 v60, s98"), I("ds_write_b32 v61, v60"), I("v_add_u32 v61, 4, v61")]
                bA = tr0 + bA[:-1] + tr1 + bA[-1:]
                bB = tr0 + bB[:-1] + tr1 + bB[-1:]
            out += [I(".p2align 6"), I("L_loop%d:" % nq)] + bA + bB
            for par in (1, 0):
                prev = bB if par else bA
                out += [I("L_last%d_%d:" % (par, nq))] + self.stamp(3)
                nxt = sorted({b for (a, p_, b) in o.trans if a == nq and p_ == par})
                for b in nxt[:-1]:
                    out += [I("s_cmp_eq_u32 s%d, %d" % (sNext, b)), I("s_cbranch_scc1 L_t%d_%d_%d" % (nq, par, b))]
                for b in reversed(nxt):
                    t = self.tuned(self.t_mid, nq, par, b & 7, b >> 3) if b else self.tuned(self.t_final, nq, par)
                    check(prev + t + (loops[b & 7][0] if b else []), name="loop-t-loop")
                    out += [I("L_t%d_%d_%d:" % (nq, par, b))] + t + self.stamp(4)
                    if b:
                        if o.stamp:
                            out += [I("v_mov_b32 v60, v62"), I("v_mov_b32 v61, v63")] + self.stamp(2) + self.stamp(5)
                        out += [I("s_branch L_loop%d" % (b & 7))]
                    else:
                        out += [I("s_branch L_fin")]
                if not nxt:
                    out += [I("s_branch L_fin")]
        A = lambda s: out.append(I(s))
        A("L_fin:")
        A("s_barrier")
        if o.stamp or o.trace:
            out += self.stamp(6)
            A("s_waitcnt vmcnt(0)")
            out += self.stamp(7)
            A("s_load_dwordx2 s[4:5], s[0:1], 48")
            A("v_mbcnt_lo_u32_b32 v70, -1, 0")
            A("v_mbcnt_hi_u32_b32 v70, -1, v70")
            A("s_mov_b32 s6, 0x1000000")
            A("s_lshl_b32 s3, s2, 2")
            A("s_add_u32 s3, s3, s%d" % sW)
            if o.stamp:
                A("s_lshl_b32 s3, s3, 10")
                A("v_lshlrev_b32 v70, 4, v70")
                A("s_waitcnt lgkmcnt(0)")
                A("buffer_store_dwordx4 v[60:63], v70, s[4:7], s3 offen")
            else:
                A("s_lshl_b32 s3, s3, 8")
                A("v_lshlrev_b32 v70, 2, v70")
                A("s_lshl_b32 s92, s%d, 8" % sW)
                A("s_add_u32 s92, s92, %d" % TRACE)
                A("v_add_u32 v71, s92, v70")
                A("ds_read_b32 v72, v71")
                A("s_waitcnt lgkmcnt(0)")
                A("buffer_store_dword v72, v70, s[4:7], s3 offen")
        if o.padto:
            out += self.padmark(6)
            A("s_waitcnt vmcnt(0)")
            out += self.padmark(7)
            A("s_waitcnt lgkmcnt(0)")
            A("L_pad:")
            A("s_memrealtime s[100:101]")
            A("s_waitcnt lgkmcnt(0)")
            A("s_sub_u32 s100, s100, s98")
            A("s_cmp_lt_u32 s100, %d" % (o.padto * 100))
            A("s_cbranch_scc1 L_pad")
        A("v_cmp_lt_u32 vcc, 0x%x, v%d" % (HI_BITS - LO_BITS, vBad))
        A("s_nop 4")
        A("s_cbranch_vccnz L_slow")
        A("L_end:")
        A("s_endpgm")
        out += self.stubs
        out += self.slow()
        txt = [x.text for x in out]
        txt.append(".p2align 4")
        txt.append("L_table:")
        for e in table:
            txt.append(".long 0x%x, 0x%x, 0x%x, 0x%x" % tuple(e))
        return txt


SHORT = True


def jcode(s, nq):
    L = CU[s + 1] - CU[s]
    return nq + (8 if SHORT and L - 32 * ((L - 1) // 32) <= 16 else 0)


def make_table(bins):
    nxt = {}
    tab = []
    for jobs in bins:
        e = []
        for (s, hh, nq) in jobs:
            u = nxt.get((s, hh), 0)
            nxt[(s, hh)] = u + nq
            q0 = CU[s] + 64 * u
            n = (CU[s + 1] - CU[s] + 31) // 32
            e += [q0 | jcode(s, nq) << 13 | hh << 17 | n << 20, CU[s] | CU[s + 1] << 13]
        e += [0, 0] * (2 - len(jobs))
        tab.append(e)
    for s in range(8):
        for hh in range(2):
            assert nxt[(s, hh)] == (CU[s + 1] - CU[s] + 63) // 64, (s, hh, nxt)
    assert len(tab) == 32
    return tab


HEADER = """; varlen (packed, ragged) non-causal attention forward, bf16, T=6042 H=16 D=128, 8 sequences (cu is a constant of the problem)
; @launch grid=(256,1,1) block=(256,1,1) lds=%d
.amdgcn_target "amdgcn-amd-amdhsa--gfx950"
.text
.globl %s
.p2align 8
.type %s,@function
%s:
"""
FOOTER = """.section .rodata,"a"
.p2align 6
.amdhsa_kernel %s
  .amdhsa_next_free_vgpr 512
  .amdhsa_next_free_sgpr 102
  .amdhsa_accum_offset 256
  .amdhsa_group_segment_fixed_size 0
  .amdhsa_kernarg_size 56
  .amdhsa_user_sgpr_count 2
  .amdhsa_user_sgpr_kernarg_segment_ptr 1
  .amdhsa_system_sgpr_workgroup_id_x 1
.end_amdhsa_kernel
"""


def parse_bins(s):
    U = [(CU[i + 1] - CU[i] + 63) // 64 for i in range(8)]
    jobs = []
    for bi, b in enumerate(s.split()):
        for ji, j in enumerate(b.split("+")):
            if j[0] != "-":
                jobs.append((bi, ji, "ABCDEFGH".index(j[0]), int(j[1]), "ab".index(j[2]) if len(j) > 2 else None))
    hh = {}
    for s_ in range(8):
        mine = [j for j in jobs if j[2] == s_]
        best = None
        for mask in range(1 << len(mine)):
            if any(j[4] is not None and j[4] != (mask >> k & 1) for k, j in enumerate(mine)):
                continue
            if sum(j[3] for k, j in enumerate(mine) if mask >> k & 1) == U[s_]:
                sc = 0
                for h in (0, 1):
                    sc += len({j[1] for k, j in enumerate(mine) if (mask >> k & 1) == h})
                if best is None or sc < best[0]:
                    best = (sc, mask)
        for k, j in enumerate(mine):
            hh[j[:2]] = best[1] >> k & 1
    bins = [[] for _ in range(32)]
    for j in jobs:
        bins[j[0]].append((j[2], hh[j[:2]], j[3]))
    return bins


SCHED3 = "C5 C5 C5 C5 H5 H5 H5 H5 F5 F5 C3+A3 C3+A3 C3+A3 C3+A3 G4+B4 G4+B4 G4+B4 H3+B4 H3+E3 H3+E3 H3+D3 D4+D3 D4+D3 D4+D3 E4+G3 E4+G3 E4+G3 E4+G3 F3+A4 F3+A4 F3+F3 F3+F3"
SCHED3B = "F6 F6 C5 C5 C5 C5 H5 H5 H5 H5 F5 F5 C3+A3 C3+A3 C3+A3 C3+A3 G4+B4 G4+B4 G4+B4 H3+B4 H3+E3 H3+E3 H3+D3 D4+D3 D4+D3 D4+D3 E4+G3 E4+G3 E4+G3 E4+G3 F3+A4 F3+A4"
SCHED4 = "C5 C5 C5 C5 H5 H5 H5 H5 F5 F5 G4+A3 G4+A3 G4+A3 C3+A3 C3+B4 C3+B4 C3+B4 H3+B4 H3+E3 H3+E3 H3+D3 D3+D4 D3+D4 D3+D4 G3+E4 G3+E4 G3+E4 G3+E4 F3+A4 F3+A4 F3+F3 F3+F3"
SCHED4B = "F6 F6 C5 C5 C5 C5 H5 H5 H5 H5 F5 F5 G4+A3 G4+A3 G4+A3 C3+A3 C3+B4 C3+B4 C3+B4 H3+B4 H3+E3 H3+E3 H3+D3 D3+D4 D3+D4 D3+D4 G3+E4 G3+E4 G3+E4 G3+E4 F3+A4 F3+A4"
SCHED5 = "F6 C5 C5 C5 H5 H5 G6 B2+C4 B2+C4 B2+C4 B2+H4 A2+H4 A2+H4 A2+H4 G2+F4 G2+F4 G2+F4 G2+F4 A3+G4 A3+C3 H3+B4 H3+B4 E3+D4 E3+D4 D3+D4 D3+E4 D3+E4 D3+E4 C2+E4 F3+G3 F3+G3 A4+A4"
SCHED4C = "C5 C5 C5 C5 H5 H5 H5 H5 F5 F5 A3+G4 A3+G4 A3+G4 A3+C3 C3+B4 C3+B4 C3+B4 H3+B4 E3+H3 E3+H3 D3+H3 D3+D4 D3+D4 D3+D4 G3+E4 G3+E4 G3+E4 G3+E4 F3+A4 F3+A4 F3+F3 F3+F3"
SCHED6 = "C3+B4 C3+B4 C3+B4 F3+F3 F3+F3 H3+D3 G3+E4 G3+E4 G3+E4 G3+E4 H3+E3 H3+E3 D3+D4 D3+D4 D3+D4 H3+B4 F3+A4 F3+A4 G4+A3 G4+A3 G4+A3 C3+A3 C5 C5 C5 C5 H5 H5 H5 H5 F5 F5"
SCHED6B = "C3+B4 C3+B4 C3+B4 H3+D3 G3+E4 G3+E4 G3+E4 G3+E4 H3+E3 H3+E3 D3+D4 D3+D4 D3+D4 H3+B4 F3+A4 F3+A4 G4+A3 G4+A3 G4+A3 C3+A3 F6 F6 C5 C5 C5 C5 H5 H5 H5 H5 F5 F5"
SCHED7 = "G3+E4 D3+D4 G4+A3 C5 C3+B4 F3+A4 G4+A3 C5 G3+E4 D3+D4 G4+A3 C5 C3+B4 F3+A4 C3+A3 C5 G3+E4 D3+D4 H3+E3 H5 C3+B4 F3+F3 H3+E3 H5 G3+E4 H3+D3 F5 H5 H3+B4 F3+F3 F5 H5"
SCHED8 = "G3+E4 D3+D4 G4+A3 C5 G3+E4 D3+D4 G4+A3 C5 G3+E4 D3+D4 G4+A3 C5 G3+E4 F3+A4 C3+A3 C5 C3+B4 F3+A4 H3+E3 H5 C3+B4 F3+F3 H3+E3 H5 C3+B4 F3+F3 F5 H5 H3+B4 H3+D3 F5 H5"
SCHED9 = "G3+E4 G3+E4 D3+D4 F3+F3 C3+B4 C3+B4 F3+A4 H3+D3 G3+E4 G3+E4 D3+D4 F3+F3 C3+B4 H3+B4 F3+A4 C3+A3 C5 C5 D3+D4 H3+E3 C5 C5 H5 H3+E3 H5 H5 H5 F5 G4+A3 G4+A3 G4+A3 F5"
Opt.sched = SCHED4


def build(o):
    bins = parse_bins(o.sched)
    o.nqs = tuple(sorted({j[2] for b in bins for j in b}))
    global SHORT, SNAKE
    SHORT = o.short
    SNAKE = o.snake
    o.heads = tuple(sorted({jcode(b[0][0], b[0][2]) for b in bins}))
    o.trans = set()
    for b in bins:
        for k, (s_, hh, nq) in enumerate(b):
            n = (CU[s_ + 1] - CU[s_] + 31) // 32
            o.trans.add((nq, (n - 1) & 1, jcode(b[k + 1][0], b[k + 1][2]) if k + 1 < len(b) else 0))
    g = Gen(o)
    body = g.kernel(make_table(bins))
    body.append("; sched " + o.sched)
    return HEADER % (LDS_BYTES, KNAME, KNAME, KNAME) + "\n".join(body) + "\n" + FOOTER % KNAME


if __name__ == "__main__":
    o = Opt()
    path = sys.argv[1]
    for a in sys.argv[2:]:
        k, v = a.split("=")
        setattr(o, k, eval(v))
    if isinstance(o.tune, str):
        import json
        o.tune = json.load(open(o.tune))
    src = build(o)
    open(path, "w").write(src)
```

```python
import sys, struct, math
from isa import I, check
from lsched import schedule

KNAME = "standalone__varlen_attn_packed__ragged_kernel"
CU = [0, 580, 1085, 2082, 2797, 3498, 4341, 5079, 6042]

R = 8
SLOT = 16640
WREG = 4160
K1OFF, V0OFF, V1OFF = 1056, 2080, 3136
FLAG = R * SLOT
STAGE = FLAG + 1280
TRACE = STAGE + 16384
LDS_BYTES = TRACE + 1024

vKa, vVa, vo0, vo1, vR, vOst, vQd, vPub, vChk, vOne, vFlag, vBad = range(1, 13)
vT1, vT2, vT3 = 13, 14, 15
vMask = 16
vS = 24
vP = 40
vL = 48
vT5 = 54
vW = 56
vO = 64
vT4 = 128
vqr = vFlag
aK = 0
aV = 64
aOnes = 128
aL = 132
aC = 144
aQ = 160
sA, sB, sO_ = 4, 8, 12
sQp, sKp, sVp, sQp2 = 16, 18, 20, 22
sSoff, sStride, sCnt, sQoff = 24, 25, 26, 27
sWb, sMlim, sRc, sDelta, sLoop, sThr, sPos, sNeg = 28, 29, 30, 31, 32, 33, 34, 35
sJ1, sJ2 = 36, 41
sC = 46
sN, sM = 52, 62
sW, sNext, sCc, sTmp, sT2, sT3 = 72, 73, 74, 76, 77, 78
sTab, sTd = 80, 84
sSts = list(range(80, 92))
LEAD = 4
SCALE = math.log2(math.e) / math.sqrt(128.0)
SCALE_BITS = struct.unpack("<I", struct.pack("<f", SCALE))[0]
LO_BITS = (127 - 40) << 23
HI_BITS = (127 + 40) << 23


class Opt:
    ntkv = ""
    nto = "sc1"
    ntq = ""
    ntm = "sc1"
    ones = {2: 2, 3: 3, 4: 2, 5: 2, 6: 2}
    codepf = True
    stbias = 300
    fpos = {2: 8, 3: 9, 4: 9, 5: 9, 6: 9}
    a0, dq, dkv = 200, 800, 300
    s1at = 1400
    ppos = {2: 0, 3: 2, 4: 8, 5: 8, 6: 8}
    s2at = 2200
    short = True
    touch = False
    nlast, ntl = 0, ""
    lateinhead = False
    snake = True
    vmlag = 1500
    tune = {}
    dmabias = 2000
    qat, qstep, tmpn = 0, 350, 4
    hl = {2: 3, 3: 3, 4: 3, 5: 2, 6: 2}
    lag = 260
    stamp = False
    trace = False
    padto = 0
    padat = 0


def vr(b, n=1):
    return "v%d" % b if n == 1 else "v[%d:%d]" % (b, b + n - 1)


def ar(b, n=1):
    return "a%d" % b if n == 1 else "a[%d:%d]" % (b, b + n - 1)


def sr(b, n=1):
    return "s%d" % b if n == 1 else "s[%d:%d]" % (b, b + n - 1)


def qreg(nq, i, ks):
    if nq <= 4:
        return "v", 192 + 16 * i + 4 * ks
    free = (256 - (vO + 32 * nq)) // 16
    if i < free:
        return "v", vO + 32 * nq + 16 * i + 4 * ks
    return "a", aQ + 16 * (i - free) + 4 * ks


def qop(nq, i, ks):
    f, b = qreg(nq, i, ks)
    return vr(b, 4) if f == "v" else ar(b, 4)


def ones_blocks(nq, k):
    if k >= nq:
        return list(range(nq))
    if k == 1:
        return [0]
    if k == 2:
        return [0, (nq + 1) // 2]
    return [0] + list(range(nq - k + 1, nq))


def mf(d, a, b, c):
    return I("v_mfma_f32_16x16x32_bf16 %s, %s, %s, %s" % (d, a, b, c))


def bf16_bits(x):
    u = struct.unpack("<I", struct.pack("<f", x))[0]
    return (u + 0x7FFF + ((u >> 16) & 1)) >> 16


def bf16_val(b):
    return struct.unpack("<f", struct.pack("<I", b << 16))[0]


C_HI = bf16_bits(SCALE)
C_LO = bf16_bits(SCALE - bf16_val(C_HI))


SNAKE = True


def qk(nq, i, kbuf, sset, masked, short=False):
    out = []
    for b in range(1 if short else 2):
        d = vr(vS + 8 * sset + 4 * b, 4)
        for j, ks in enumerate((3, 2, 1, 0) if b and SNAKE else (0, 1, 2, 3)):
            c = d if j else (vr(vMask + 4 * b, 4) if masked else "0")
            out.append(mf(d, ar(aK + 32 * kbuf + 16 * b + 4 * ks, 4), qop(nq, i, ks), c))
    return out


def pv(i, vbuf, pset, zero):
    out = []
    for db in range(8):
        d = vr(vO + 32 * i + 4 * db, 4)
        out.append(mf(d, ar(aV + 32 * vbuf + 4 * db, 4), vr(vP + 4 * pset, 4), "0" if zero else d))
    return out


def onesm(slot, pset, zero):
    d = ar(aL + 4 * slot, 4)
    return mf(d, ar(aOnes, 4), vr(vP + 4 * pset, 4), "0" if zero else d)


def EXP(sset, j):
    r = vS + 8 * sset + j
    return I("v_exp_f32 v%d, v%d" % (r, r))


def CVT(sset, j):
    r = vS + 8 * sset + 2 * j
    return I("v_cvt_pk_bf16_f32 v%d, v%d, v%d" % (vP + 4 * sset + j, r, r + 1))


def kread(buf, b, ks):
    return I("ds_read_b128 %s, v%d offset:%d" % (ar(aK + 32 * buf + 16 * b + 4 * ks, 4), vKa, b * 512 + ks * 64))


def vread(buf, db, jj):
    return I("ds_read_b64_tr_b16 %s, v%d offset:%d" % (ar(aV + 32 * buf + 4 * db + 2 * jj, 2), vVa, jj * 512 + 32 * db))


def kvreads(buf):
    return [kread(buf, b, ks) for b in range(2) for ks in range(4)] + [vread(buf, db, jj) for db in range(8) for jj in range(2)]


def dmas(o, soff=sSoff):
    p = (" " + o.ntkv) if o.ntkv else ""
    return [I("buffer_load_dwordx4 v%d, %s, s%d offen%s lds" % (vo0, sr(sA, 4), soff, p)),
            I("buffer_load_dwordx4 v%d, %s, s%d offen offset:%d%s lds" % (vo1, sr(sA, 4), soff, K1OFF, p)),
            I("buffer_load_dwordx4 v%d, %s, s%d offen offset:%d%s lds" % (vo0, sr(sB, 4), soff, V0OFF, p)),
            I("buffer_load_dwordx4 v%d, %s, s%d offen offset:%d%s lds" % (vo1, sr(sB, 4), soff, V1OFF, p))]


def m0_adv():
    return [I("s_add_u32 m0, m0, s%d" % sPos), I("s_cmp_eq_u32 m0, s%d" % sMlim), I("s_cselect_b32 m0, s%d, m0" % sWb)]


def item_adv():
    t = ["s_add_u32 s%d, s%d, s%d" % (sSoff, sSoff, sStride), "s_sub_u32 s%d, s%d, 1" % (sCnt, sCnt),
         "s_cmov_b64 %s, %s" % (sr(sA, 2), sr(sN, 2)), "s_cmov_b64 %s, %s" % (sr(sB, 2), sr(sN + 2, 2)),
         "s_cmov_b64 %s, %s" % (sr(sSoff, 2), sr(sN + 4, 2)), "s_cmov_b32 s%d, s%d" % (sA + 2, sN + 6),
         "s_cmov_b32 s%d, s%d" % (sB + 2, sN + 7), "s_cmov_b32 s%d, s%d" % (sCnt, sN + 8)]
    for j in range(4):
        t.append("s_cmov_b64 %s, %s" % (sr(sN + 2 * j, 2), sr(sM + 2 * j, 2)))
    t += ["s_cmov_b32 s%d, s%d" % (sN + 8, sM + 8), "s_cmov_b64 %s, 0" % sr(sM + 6, 2), "s_cmov_b32 s%d, 0x7fffffff" % (sM + 8)]
    return [I(x) for x in t]


def ring_adv_s():
    return [I("s_sub_u32 s%d, s%d, 1" % (sRc, sRc)),
            I("s_cselect_b32 s%d, s%d, s%d" % (sDelta, sNeg, sPos)),
            I("s_cselect_b32 s%d, %d, s%d" % (sRc, R - 1, sRc))]


def ring_adv():
    return ring_adv_s() + [I("v_add_u32 v%d, s%d, v%d" % (vKa, sDelta, vKa)), I("v_add_u32 v%d, s%d, v%d" % (vVa, sDelta, vVa))]


class Gen:
    def __init__(self, o):
        self.o = o
        self.stubs = []
        self.nlab = 0

    def lab(self, p):
        self.nlab += 1
        return "L_%s_%d" % (p, self.nlab)

    def issue_item(self):
        return dmas(self.o) + m0_adv() + item_adv()[:2]

    def spin(self):
        spin, ret = self.lab("spin"), self.lab("spinret")
        self.stubs += [I(spin + ":"), I("ds_read_b32 v%d, v%d" % (vFlag, vChk)), I("s_waitcnt lgkmcnt(0)"),
                       I("v_cmp_gt_u32 vcc, s%d, v%d" % (sThr, vFlag)), I("s_nop 4"),
                       I("s_cbranch_vccnz " + spin), I("s_branch " + ret)]
        return I("s_cbranch_vccnz " + spin, tag=ret)

    def body(self, nq, par, first=False, entry=False, tail=None, vmextra=0):
        o = self.o
        ob = ones_blocks(nq, o.ones[nq])
        addb = [i for i in range(nq) if i not in ob]
        flags = entry or par == 1
        sset = lambda t, i: ((par ^ t) * nq + i) & 1
        gaps, vstart, flex = [], [], []

        def gap(m, E=None, fixed=None):
            gaps.append(dict(m=m, E=E, fixed=fixed or [], scal=[], flex=[]))
            return len(gaps) - 1

        lcount = {}

        def ADD(i, ss, j):
            n = lcount.get(i, 0)
            lcount[i] = n + 1
            l = vL + 2 * addb.index(i) + (n & 1)
            r = vS + 8 * ss + j
            if first and n < 2:
                return I("v_mov_b32 v%d, v%d" % (l, r))
            return I("v_add_f32 v%d, v%d, v%d" % (l, l, r))

        adds = []
        for v in range(nq):
            vstart.append(len(gaps))
            nxt_t, nxt_i = (0, v + 1) if v < nq - 1 else (1, 0)
            sc, sn = sset(0, v), sset(nxt_t, nxt_i)
            qm = qk(nq, nxt_i, par ^ nxt_t, sn, first and nxt_t == 0)
            pm = pv(v, par, sc, first)
            for g in range(16):
                m = qm[g] if g < 8 else pm[g - 8]
                E, fixed = None, []
                if g in (1, 3, 5):
                    E = (v, sc, 5 + g // 2)
                elif g in (7, 9, 11, 13, 15):
                    E = (nxt_i if nxt_t == 0 else -1, sn, (g - 7) // 2)
                if g in (2, 6):
                    fixed = [CVT(sc, 2 + g // 4)]
                if g in (10, 14):
                    fixed = [CVT(sn, (g - 10) // 4)]
                gi = gap(m, EXP(E[1], E[2]) if E else None, fixed)
                if E and E[0] in addb:
                    adds.append((E[0], gi, E[1], E[2]))
            if v in ob:
                gap(onesm(ob.index(v), sc, first))
        ng = len(gaps)
        vstart.append(ng)
        for (i, gi, ss, j) in adds:
            dl = ng - 1
            if i + 1 < nq:
                dl = vstart[i + 1] - 1 + (4 if j >= 4 else 0)
            flex.append([gi + 1, dl, 1, 5, ("add", i, ss, j)])
        kdl = vstart[nq - 1] - 5
        vdl = ng - (9 if nq > 2 else 6)
        for x in kvreads(par ^ 1):
            flex.append([0, kdl, 1, 1, x] if x.op == "ds_read_b128" else [0, vdl, 1, 2, x])
        ddl = max(ng // 2 - 4, 6) if nq > 2 else 14
        for d in dmas(o):
            flex.append([0, ddl, 2, 0, d])
        pend = sorted(flex, key=lambda f: (f[1], f[3]))
        slotgaps = [i for i, g in enumerate(gaps) if g["E"] is None]

        def remaining_cap(gi, upto):
            return sum(2 - len(gaps[x]["fixed"]) for x in slotgaps if gi <= x <= upto)

        bonus = set()
        ov = sum(f[2] for f in flex if f[1] <= vdl) + (3 if flags else 0) - remaining_cap(0, vdl)
        cand = [x for x in slotgaps if x <= vdl]
        for j in range(max(0, ov)):
            bonus.add(cand[(j * len(cand)) // ov] if ov <= len(cand) else cand[j % len(cand)])
        nk = nv = nd = 0
        ddone = None
        for gi in range(ng):
            g = gaps[gi]
            cap = 0 if g["E"] is not None else 2 - len(g["fixed"]) + (1 if gi in bonus else 0)
            while True:
                ready = [f for f in pend if f[0] <= gi]
                pick = next((f for f in ready if f[2] <= cap), None)
                forced = [f for f in ready if f[1] <= gi]
                if pick is None and forced:
                    pick = forced[0]
                if pick is None:
                    break
                if pick[2] == 1 and cap >= 2:
                    two = [f for f in ready if f[2] == 2]
                    urgent = [f for f in pend if f[2] == 1 and f[1] < two[0][1]] if two else []
                    if two and (not urgent or remaining_cap(gi + 1, urgent[-1][1]) + sum(1 for x in bonus if gi < x <= urgent[-1][1]) >= len(urgent)):
                        pick = two[0]
                pend.remove(pick)
                cap -= pick[2]
                ins = pick[4]
                if isinstance(ins, tuple):
                    ins = ADD(ins[1], ins[2], ins[3])
                g["flex"].append(ins)
                if ins.op == "ds_read_b128":
                    nk += 1
                    if nk == 8:
                        pend.append([gi + 1, ng - 1, 1, 6, I("v_add_u32 v%d, s%d, v%d" % (vKa, sDelta, vKa))])
                elif ins.op == "ds_read_b64_tr_b16":
                    nv += 1
                    if nv == 16:
                        pend.append([gi + 1, ng - 1, 1, 6, I("v_add_u32 v%d, s%d, v%d" % (vVa, sDelta, vVa))])
                elif ins.kind == "dma":
                    nd += 1
                    if nd == 4:
                        ddone = gi
                        if flags:
                            pg = max(gi + 2, ng // 2 - o.ppos[nq])
                            assert pg + 2 < ng - o.fpos[nq] - 3
                            pend.append([pg, pg + 4, 1, 0, I("ds_add_u32 v%d, v%d" % (vPub, vOne))])
                            pend.append([ng - o.fpos[nq] - 3, ng - o.fpos[nq], 1, 0, I("ds_read_b32 v%d, v%d" % (vFlag, vChk))])
                pend.sort(key=lambda f: (f[1], f[3]))
        assert not pend, pend
        sgaps = [i for i, g in enumerate(gaps) if not any(f.kind == "dma" for f in g["flex"])]
        used = set()

        def put(chain, lo, hi=None):
            gi = lo - 1
            for ins in chain:
                gi = min(x for x in sgaps if x > gi and x not in used)
                used.add(gi)
                gaps[gi]["scal"].append(ins)
            assert hi is None or gi <= hi, (gi, hi, chain)
            return gi

        def ds_after(pos, pred):
            seq = [f for x in range(pos) for f in gaps[x]["flex"] if f.kind == "ds"]
            return min(15, len(seq) - 1 - max(i for i, f in enumerate(seq) if pred(f)))

        find = lambda op: [x for x in range(ng) for f in gaps[x]["flex"] if f.op == op]
        kw = vstart[nq - 1] - 1
        put([I("s_waitcnt lgkmcnt(%d)" % ds_after(kw, lambda f: f.op == "ds_read_b128"))], kw, kw)
        put([I("s_waitcnt lgkmcnt(0)")], ng - 3, ng - 3)
        if flags:
            pubg = find("ds_add_u32")[0]
            assert pubg - 1 > ddone
            put([I("s_waitcnt vmcnt(%d)" % (4 * (LEAD - 1) + vmextra))], pubg - 1, pubg)
            wg = find("ds_read_b32")[0] + 5
            wg = put([I("s_waitcnt lgkmcnt(%d)" % ds_after(wg, lambda f: f.op == "ds_read_b32"))], wg, wg + 1)
            cg = min((x for x in range(wg, ng - 3) if gaps[x]["E"] is None),
                     key=lambda x: (len(gaps[x]["flex"]) + len(gaps[x]["fixed"]) >= 2, x))
            gaps[cg]["flex"].append(I("v_cmp_gt_u32 vcc, s%d, v%d" % (sThr, vFlag)))
            put([self.spin()], ng - 1, ng - 1)
        p = put(ring_adv_s(), 0, min(find("v_add_u32")) - 1)
        if flags:
            p = put([I("s_add_u32 s%d, s%d, 1" % (sThr, sThr))], p + 1, cg - 1)
        p = put(m0_adv(), max(p, ddone) + 1)
        p = put(item_adv()[:2] if entry else item_adv(), p + 1)
        tail = tail or []
        if tail:
            put(tail[:1], p + 1)
            tail = tail[1:]
        out = []
        over = 0
        for gi, g in enumerate(gaps):
            out.append(g["m"])
            for x in g["scal"]:
                out.append(x)
                if x.kind == "branch" and x.tag:
                    out.append(I(x.tag + ":"))
            out += [f for f in g["flex"] if f.kind in ("ds", "dma")]
            if g["E"] is not None:
                out.append(g["E"])
            out += g["fixed"] + [f for f in g["flex"] if f.kind not in ("ds", "dma")]
            c = sum(2 if f.kind == "dma" else 1 for f in g["flex"]) + len(g["fixed"]) + (2 if g["E"] is not None else 0)
            over += max(0, c - 2)
        out += tail
        if entry:
            out += self.issue_item()
        sys.stderr.write("body nq=%d par=%d first=%d entry=%d gaps=%d overflow=%d\n" % (nq, par, first, entry, ng, over))
        return check(out, fix=True, name="body")

    def masks(self, short, vT1=vT1, big=0):
        out = [I("v_mbcnt_lo_u32_b32 v%d, -1, 0" % vT1), I("v_mbcnt_hi_u32_b32 v%d, -1, v%d" % (vT1, vT1)),
               I("v_lshrrev_b32 v%d, 2, v%d" % (vT1, vT1)), I("v_and_b32 v%d, 12, v%d" % (vT1, vT1)),
               I("v_sub_u32 v%d, s%d, v%d" % (vT1, sC + 4, vT1)),
               I("v_cvt_f32_i32 v%d, v%d" % (vT1, vT1)), I("v_mov_b32 v%d, 0x7c800000" % big)]
        for j in range(4 if short else 8):
            kv = (j & 3) + 16 * (j >> 2)
            bits = struct.unpack("<I", struct.pack("<f", -(kv + 0.5) * 2.0 ** 122))[0]
            out += [I("v_fmaak_f32 v%d, v%d, v%d, 0x%x" % (vMask + j, vT1, big, bits)),
                    I("v_min_f32 v%d, 0, v%d" % (vMask + j, vMask + j))]
        return out

    def p_softmax(self, nq, i, ss, js, first, lcount):
        ob = ones_blocks(nq, self.o.ones[nq])
        addb = [x for x in range(nq) if x not in ob]
        out = []
        for j in js:
            out.append(EXP(ss, j))
            if i in addb:
                n = lcount.get(i, 0)
                lcount[i] = n + 1
                l = vL + 2 * addb.index(i) + (n & 1)
                r = vS + 8 * ss + j
                out.append(I("v_mov_b32 v%d, v%d" % (l, r)) if first and n < 2 else I("v_add_f32 v%d, v%d, v%d" % (l, l, r)))
            if j & 1:
                out.append(CVT(ss, j >> 1))
        return out

    def p_epi(self, nq, i, pol):
        o = self.o
        ob = ones_blocks(nq, o.ones[nq])
        addb = [x for x in range(nq) if x not in ob]
        out = []
        A = lambda t: out.append(I(t))
        if i in ob:
            r = vMask + 2 * ob.index(i)
            A("v_accvgpr_read_b32 v%d, a%d" % (r, aL + 4 * ob.index(i)))
        else:
            r = vL + 2 * addb.index(i)
            A("v_add_f32 v%d, v%d, v%d" % (r, r, r + 1))
            for sw in ("v_permlane16_swap_b32", "v_permlane32_swap_b32"):
                A("v_mov_b32 v%d, v%d" % (r + 1, r))
                A("%s v%d, v%d" % (sw, r, r + 1))
                A("v_add_f32 v%d, v%d, v%d" % (r, r, r + 1))
        A("v_subrev_u32 v%d, 0x%x, v%d" % (vT1, LO_BITS, r))
        A("v_rcp_f32 v%d, v%d" % (r, r))
        A("v_max_u32 v%d, v%d, v%d" % (vBad, vBad, vT1))
        p = (" " + pol) if pol else ""
        b0 = vO + 32 * i
        for d4 in range(4):
            for db in (d4, d4 + 4):
                b = b0 + 4 * db
                for j in range(2):
                    A("v_pk_mul_f32 %s, %s, %s op_sel_hi:[1,0]" % (vr(b + 2 * j, 2), vr(b + 2 * j, 2), vr(r, 2)))
                    out[-1].reads.discard(("v", r + 1))
                for j in range(2):
                    A("v_cvt_pk_bf16_f32 v%d, v%d, v%d" % (b + j, b + 2 * j, b + 2 * j + 1))
            A("ds_write2st64_b64 v%d, %s, %s offset1:4" % (vW + d4, vr(b0 + 4 * d4, 2), vr(b0 + 4 * d4 + 16, 2)))
            out[-1].mw = ["stage%d" % d4]
        for k in range(4):
            A("ds_read_b128 %s, v%d offset:%d" % (vr(b0 + 8 * k, 4), vR, 1024 * k))
            out[-1].mr = ["stage%d" % x for x in range(4)]
        for k in range(4):
            A("buffer_store_dwordx4 %s, v%d, %s, s%d offen offset:%d%s" % (vr(b0 + 8 * k, 4), vOst, sr(sO_, 4), sSts[2 * i + (k & 1)], 128 * (k >> 1), p))
            out[-1].bias = o.stbias + 64 * (4 * (nq - 1 - i) + 3 - k)
        return out

    def p_last(self, nq, par, issue):
        ob = ones_blocks(nq, self.o.ones[nq])
        sset = lambda i: (par * nq + i) & 1
        out = [I("s_mov_b32 s%d, s%d" % (sO_ + 2, sC + 1))]
        for i in range(nq):
            for e in range(2):
                out.append(I("s_add_u32 s%d, s%d, %d" % (sSts[2 * i + e], sC, (64 * i + 32 * e) * 4096)))
        out += issue
        lc = {}
        for v in range(nq):
            if v < nq - 1:
                out += qk(nq, v + 1, par, sset(v + 1), False)
            out += self.p_softmax(nq, v, sset(v), (5, 6, 7), False, lc)
            out += pv(v, par, sset(v), False)
            if v in ob:
                out.append(onesm(ob.index(v), sset(v), False))
            if v < nq - 1:
                out += self.p_softmax(nq, v + 1, sset(v + 1), (0, 1, 2, 3, 4), False, lc)
            out += self.p_epi(nq, v, self.o.ntm if issue else self.o.ntl if v >= nq - self.o.nlast and nq <= 4 else self.o.nto)
        return out

    def p_sync(self, vm, wait_ds, start):
        w = I("s_waitcnt vmcnt(0)")
        w.vm = vm
        w.vmlag = self.o.vmlag
        w.start = start
        pub = I("ds_add_u32 v%d, v%d" % (vPub, vOne))
        pub.after = [w]
        pub.wait_ds = wait_ds
        pub.mw = ["flag"]
        pub.bias = 300
        thr = I("s_add_u32 s%d, s%d, 1" % (sThr, sThr))
        rd = I("ds_read_b32 v%d, v%d" % (vFlag, vChk))
        rd.mr = ["flag"]
        rd.lag = [(pub, self.o.lag)]
        cmp_ = I("v_cmp_gt_u32 vcc, s%d, v%d" % (sThr, vFlag))
        br = self.spin()
        br.reads |= {("s", sThr), ("v", vFlag)}
        br.writes |= {("v", vFlag), ("s", "vcc")}
        return [w, pub, thr, rd, cmp_, br]

    def p_prescale(self, nq, i, tmp=None):
        out = []
        for ks in range(4):
            f, dst = qreg(nq, i, ks)
            d = vO + 32 * (i if tmp is None else tmp) + 8 * ks
            for h in range(2):
                a = aC + 2 - 2 * h
                out += [mf(vr(d + 4 * h, 4), ar(a, 4), qop(nq, i, ks), "0"),
                        mf(vr(d + 4 * h, 4), ar(a + 4, 4), qop(nq, i, ks), vr(d + 4 * h, 4))]
            for x in out[-4:]:
                x.free = True
            for j in range(4):
                if f == "v":
                    out.append(I("v_cvt_pk_bf16_f32 v%d, v%d, v%d" % (dst + j, d + 2 * j, d + 2 * j + 1)))
                else:
                    out += [I("v_cvt_pk_bf16_f32 v%d, v%d, v%d" % (d + 2 * j, d + 2 * j, d + 2 * j + 1)),
                            I("v_accvgpr_write_b32 a%d, v%d" % (dst + j, d + 2 * j))]
        return out

    def tuned(self, fn, *key):
        import lsched
        c = self.o.tune.get(repr(key), {})
        saved = []
        for k, v in c.items():
            obj = lsched.P if hasattr(lsched.P, k) else self.o
            saved.append((obj, k, getattr(obj, k)))
            setattr(obj, k, v)
        out = fn(*key)
        for obj, k, v in saved:
            setattr(obj, k, v)
        return out

    def t_final(self, nq, par):
        out, t = schedule(self.p_last(nq, par, []), name="final nq=%d par=%d" % (nq, par))
        out.append(I("s_waitcnt vmcnt(%d)" % sum(1 for x in out if x.kind == "vmem")))
        return out

    def t_mid(self, nq1, par, nq, short):
        assert nq <= LEAD
        o = self.o
        ob = ones_blocks(nq, o.ones[nq])
        items = [self.issue_item() for _ in range(nq + 2)]
        for it in items:
            for x in it[:4]:
                x.bias = o.dmabias
        landed = lambda k: items[k - LEAD - 1][:4] if k > LEAD else 4 * (LEAD - k)
        s1 = self.p_sync(landed(nq), [], o.s1at)
        prog = []
        for i in range(nq):
            prog.append(I("v_add_u32 v%d, v%d, v%d" % (vMask + 1 + 2 * i, vKa, vQd)))
            prog += ring_adv()
        last = self.p_last(nq1, par, items[0])
        js, qreads = [], []
        prev = None
        for i in range(nq):
            w = I("s_waitcnt vmcnt(0)")
            w.vm = landed(i)
            w.start = o.qat + i * o.qstep
            w.after = [prev] if prev else []
            prev = w
            rd = [I("ds_read_b128 %s, v%d offset:%d" % (qop(nq, i, ks), vMask + 1 + 2 * i, 64 * ks)) for ks in range(4)]
            for x in rd:
                x.after = [w]
            qreads.append(rd)
            js += [w] + rd
        s1[0].after = [prev]
        js += s1
        reads = kvreads(0)
        js += reads + ring_adv()
        for x in reads:
            x.after = [s1[-1]]
        for it in items[1:3]:
            it[0].after = [s1[-1]]
            js += it
        for j, it in enumerate(items[3:]):
            it[0].wait_ds = qreads[j]
            js += it
        s2 = self.p_sync(landed(nq + 1), [], o.s2at)
        js += s2
        kv1 = kvreads(1)
        for x in kv1:
            x.after = [s2[-1]]
        js += self.set_compute(sJ2) + [I("s_mov_b32 s%d, 0" % sNext)] + self.masks(short)
        if short:
            js += [I("v_mov_b32 v%d, 0" % (vP + 4 * ss + j)) for ss in range(2) for j in (2, 3)]
        lc = {}
        for i in range(nq + 1):
            if i < nq:
                js += self.p_prescale(nq, i, 3 if nq1 < 4 and i < o.tmpn else None) + qk(nq, i, 0, i & 1, True, short)
            else:
                js += kv1 + ring_adv() + qk(nq, 0, 1, nq & 1, False)
            if i:
                js += pv(i - 1, 0, (i - 1) & 1, True)
                if i - 1 in ob:
                    js.append(onesm(ob.index(i - 1), (i - 1) & 1, True))
            js += self.p_softmax(nq, i % nq, i & 1, range(5 if i == nq else 4 if short else 8), i < nq, lc)
        js += [I("s_sub_u32 s%d, s%d, 3" % (sLoop, sC + 3))]
        s3 = self.p_sync(landed(nq + 2), [], 0)
        late = [x for x in js if x.kind == "mfma" and not getattr(x, "free", False)]
        s3[0].after = [late[-40]]
        s3[3].after = [late[-20]]
        s3[5].wait_ds = kv1
        s3[5].lag = [(items[-3][3], o.vmlag - 200)]
        js += s3
        out, t = schedule(prog + last + js, name="mid %d(par %d)->%d%s" % (nq1, par, nq, "s" if short else ""))
        return out

    def late_setup(self):
        o = self.o
        out = []
        A = lambda s: out.append(I(s))
        late = self.addr_setup()[1]
        x, y, z = vT4 + 5, vT4 + 6, vT4 + 7
        A("v_bfe_u32 v%d, v0, 2, 2" % x)
        A("v_cmp_eq_u32 vcc, v%d, v%d" % (x, vT2))
        A("v_and_b32 v%d, 1, v0" % x)
        A("v_lshlrev_b32 v%d, 4, v%d" % (x, x))
        A("v_cndmask_b32 v%d, 0, 1, vcc" % y)
        A("v_lshlrev_b32 v%d, v%d, v%d" % (y, x, y))
        A("v_bfe_u32 v%d, v0, 1, 1" % x)
        A("v_mul_u32_u24 v%d, v%d, v%d" % (z, x, y))
        A("v_sub_u32 v%d, v%d, v%d" % (y, y, z))
        for b, c in ((aC + 2, C_HI), (aC + 6, C_LO)):
            for j, r in enumerate((y, z)):
                A("v_mul_u32_u24 v%d, 0x%x, v%d" % (x, c, r))
                A("v_accvgpr_write_b32 a%d, v%d" % (b + j, x))
        for j in (0, 1, 4, 5, 8, 9):
            A("v_accvgpr_write_b32 a%d, 0" % (aC + j))
        out += late
        A("v_mov_b32 v%d, 0" % vBad)
        A("ds_write_b32 v%d, v%d" % (vPub, vBad))
        A("v_mov_b32 v%d, 0x3f803f80" % (vT4 + 8))
        for j in range(4):
            A("v_accvgpr_write_b32 a%d, v%d" % (aOnes + j, vT4 + 8))
        A("s_add_u32 s%d, s%d, %d" % (sMlim, sWb, R * SLOT))
        A("s_mov_b32 s%d, 0" % sThr)
        A("s_mov_b32 s%d, %d" % (sPos, SLOT))
        A("s_mov_b32 s%d, %d" % (sNeg, -(R - 1) * SLOT))
        A("s_mov_b32 s%d, 0x%x" % (sCc, SCALE_BITS))
        A("s_mov_b32 s%d, 0x20000" % (sO_ + 3))
        A("s_mov_b32 s%d, 0" % (sO_ + 2))
        A("s_mov_b32 s%d, %d" % (sStride, -32 * 4096))
        d2a, d2b = self.decode_job(sTd + 2, sTd + 3, sJ2)
        out += d2a + d2b + self.queue_setup() + self.set_compute(sJ1)
        if o.touch:
            A("s_mov_b32 s%d, %d" % (sO_ + 2, CU[-1] * 4096))
            A("v_lshlrev_b32 v%d, 12, v0" % (vT4 + 5))
            A("buffer_load_dword v%d, v%d, %s, s%d offen" % (63, vT4 + 5, sr(sO_, 4), sJ1))
            A("buffer_load_dword v%d, v%d, %s, s%d offen" % (63, vT4 + 5, sr(sO_, 4), sJ2))
        A("s_bfe_u32 s%d, s%d, 0x4000d" % (sNext, sTd + 2))
        return out

    def srd_kv(self):
        return [I("s_mov_b64 %s, %s" % (sr(sA, 2), sr(sKp, 2))), I("s_mov_b64 %s, %s" % (sr(sB, 2), sr(sVp, 2))),
                I("s_add_u32 s%d, s%d, %d" % (sB + 2, sJ1 + 2, V0OFF))]

    def srd_q(self):
        return [I("s_mov_b64 %s, %s" % (sr(sA, 2), sr(sQp, 2))), I("s_mov_b64 %s, %s" % (sr(sB, 2), sr(sQp2, 2))),
                I("s_sub_u32 s%d, s%d, %d" % (sB + 2, sJ1 + 2, 32 * 4096 - V0OFF))]

    def head_dmas(self, k, kind):
        d = dmas(self.o, sQoff if kind == "q" else sSoff)
        so = sQoff if kind == "q" else sSoff
        return d + [I("s_add_u32 m0, s%d, %d" % (sWb, ((k + 1) % R) * SLOT)),
                    I("s_add_u32 s%d, s%d, %d" % (so, so, 64 * 4096 if kind == "q" else -32 * 4096))]

    def head(self, nq, short):
        o = self.o
        ob = ones_blocks(nq, o.ones[nq])
        kind = ["q", "kv", "kv"] + ["q"] * (nq - 1) + ["kv"] * 5
        groups = {}
        state = ["kv"]

        def issue(k):
            out = []
            if kind[k] != state[0]:
                out += self.srd_q() if kind[k] == "q" else self.srd_kv()
                state[0] = kind[k]
            d = self.head_dmas(k, kind[k])
            groups[k] = d[:4]
            for x in d[:4]:
                x.bias = 3000
            return out + d

        prog = self.late_setup() if o.lateinhead else []
        reads = {-1: [x for x in prog if x.kind == "ds"]}
        prog += self.masks(short, 60, 61)
        if short:
            prog += [I("v_mov_b32 v%d, 0" % (vP + j)) for j in (2, 3)]
        t = o.a0
        prev = None
        lastbar = None
        lc = {}
        visit = [0]
        pend = [None]

        def flush_pv():
            if pend[0] is None:
                return []
            i, tile, ss = pend[0]
            pend[0] = None
            out = pv(i, tile, ss, tile == 0)
            if i in ob:
                out.append(onesm(ob.index(i), ss, tile == 0))
            return out

        def do_visit(i, tile):
            ss = visit[0] & 1
            visit[0] += 1
            out = qk(nq, i, tile, ss, tile == 0, short and tile == 0) + flush_pv()
            out += self.p_softmax(nq, i, ss, range(4 if short and tile == 0 else 8), tile == 0, lc)
            pend[0] = (i, tile, ss)
            return out

        kpos, qpos = 0, 0
        qi = nkv = 0
        nxt, hl = 3, o.hl[nq]
        bars = []
        for k in range(nq + 4):
            todo = list(range(nxt, nq + 7 if k == nq + 3 else max(nxt, k + hl + 1)))
            nxt += len(todo)
            bar = kind[k] == "kv" or any(j >= R and kind[j - R] == "kv" and not any(b > j - R for b in bars) for j in todo)
            w = I("s_barrier" if bar else "s_waitcnt vmcnt(0)")
            w.vm = 4 * (2 - k) + (2 if o.touch else 0) if k < 3 else groups[k]
            w.start = t
            w.after = [prev] if prev else []
            if bar:
                w.wait_ds = [x for jj in reads for x in reads[jj]]
                bars.append(k)
            prog.append(w)
            prev = w
            t += o.dq if (k + 1 < len(kind) and kind[k + 1] == "q") else o.dkv
            for j in todo:
                it = issue(j)
                first = [x for x in it if x.kind == "dma"][0]
                first.after = [w]
                if j >= R and kind[j - R] == "q":
                    first.wait_ds = reads[j - R]
                prog += it
            if k == nq + 3:
                break
            if kind[k] == "q":
                if k % R != qpos:
                    prog.append(I("v_add_u32 v%d, %d, v%d" % (vqr, (k % R - qpos) * SLOT, vqr)))
                    qpos = k % R
                rd = [I("ds_read_b128 %s, v%d offset:%d" % (qop(nq, qi, ks), vqr, 64 * ks)) for ks in range(4)]
                prog += rd + self.p_prescale(nq, qi)
                if qi > 0:
                    prog += do_visit(qi, 0) + do_visit(qi, 1)
                qi += 1
            else:
                prog += [I("v_add_u32 v%d, %d, v%d" % (r, (k % R - kpos) * SLOT, r)) for r in (vKa, vVa)]
                kpos = k % R
                rd = kvreads(nkv & 1)
                prog += rd
                if nkv == 2:
                    prog += qk(nq, 0, 0, 0, False) + flush_pv() + self.p_softmax(nq, 0, 0, range(5), False, lc)
                else:
                    prog += do_visit(0, nkv)
                nkv += 1
            for x in rd:
                x.after = [w]
            reads[k] = rd
        k = nq + 3
        prog += [I("v_add_u32 v%d, %d, v%d" % (r, (k % R - kpos) * SLOT, r)) for r in (vKa, vVa)]
        prog += [I("s_mov_b32 s%d, %d" % (sRc, R - 1 - k % R)), I("s_sub_u32 s%d, s%d, 8" % (sCnt, sJ1 + 4)),
                 I("s_sub_u32 s%d, s%d, 5" % (sLoop, sC + 3))]
        out, t = schedule(prog, name="head nq=%d%s" % (nq, "s" if short else ""))
        if o.stamp == 4:
            res, k = [], 0
            for x in out:
                res.append(x)
                if ("vmcnt" in x.text or (x.kind == "mfma" and k == 100)) and k < 8:
                    res += [I("s_memrealtime s[96:97]"), I("s_waitcnt lgkmcnt(0)"), I("v_writelane_b32 v63, s96, %d" % (12 + k))]
                    k += 1
            out = res
        return out

    def addr_setup(self):
        t1, t2, t3, ln = vT1, vT2, vT3, vT4
        o = []
        A = lambda s: o.append(I(s))
        A("v_lshrrev_b32 v%d, 6, v0" % t1)
        A("v_bfe_u32 v%d, v0, 4, 2" % t2)
        A("v_readfirstlane_b32 s%d, v%d" % (sW, t1))
        A("v_and_b32 v%d, 15, v0" % t3)
        A("v_lshlrev_b32 v%d, 13, v%d" % (vo0, t1))
        A("v_lshl_add_u32 v%d, v%d, 15, v%d" % (vo0, t2, vo0))
        A("v_lshl_add_u32 v%d, v%d, 4, v%d" % (vo0, t3, vo0))
        A("v_add_u32 v%d, %d, v%d" % (vo1, 4096 - K1OFF, vo0))
        early, o = o, []
        A = lambda s: o.append(I(s))
        A("v_and_b32 v%d, 63, v0" % ln)
        A("v_and_b32 v%d, 1, v%d" % (vqr, ln))
        A("v_mul_u32_u24 v%d, %d, v%d" % (vqr, K1OFF, vqr))
        A("v_bfe_u32 v%d, v%d, 3, 1" % (vT4 + 1, ln))
        A("v_mad_u32_u24 v%d, v%d, s%d, v%d" % (vqr, vT4 + 1, sT3, vqr))
        A("v_bfe_u32 v%d, v%d, 1, 2" % (vT4 + 1, ln))
        A("v_lshl_add_u32 v%d, v%d, 8, v%d" % (vqr, vT4 + 1, vqr))
        A("v_lshl_add_u32 v%d, v%d, 4, v%d" % (vqr, t2, vqr))
        A("v_mul_u32_u24 v%d, %d, v%d" % (vT4 + 1, WREG, t1))
        A("v_add_u32 v%d, v%d, v%d" % (vqr, vqr, vT4 + 1))
        A("v_lshrrev_b32 v%d, 3, v%d" % (vR, ln))
        A("v_bfe_u32 v%d, v%d, 3, 1" % (vOst, ln))
        A("v_lshl_add_u32 v%d, v%d, 1, v%d" % (vOst, t1, vOst))
        A("v_lshl_add_u32 v%d, v%d, 3, v%d" % (vOst, t2, vOst))
        A("v_lshlrev_b32 v%d, 12, v%d" % (vOst, vOst))
        A("v_and_b32 v%d, 7, v%d" % (vW, ln))
        A("v_lshl_add_u32 v%d, v%d, 4, v%d" % (vOst, vW, vOst))
        A("v_xor_b32 v%d, v%d, v%d" % (vW + 1, vW, vR))
        A("v_lshlrev_b32 v%d, 4, v%d" % (vW + 1, vW + 1))
        A("v_lshl_add_u32 v%d, v%d, 7, v%d" % (vR, vR, vW + 1))
        A("v_lshlrev_b32 v%d, 12, v%d" % (vW + 3, t1))
        A("v_add_u32 v%d, %d, v%d" % (vW + 3, STAGE, vW + 3))
        A("v_add_u32 v%d, v%d, v%d" % (vR, vR, vW + 3))
        A("v_lshrrev_b32 v%d, 1, v%d" % (vW + 1, t2))
        A("v_xor_b32 v%d, v%d, v%d" % (vW, vW, vW + 1))
        A("v_lshlrev_b32 v%d, 4, v%d" % (vW, vW))
        A("v_and_b32 v%d, 1, v%d" % (vW + 1, t2))
        A("v_lshl_add_u32 v%d, v%d, 3, v%d" % (vW, vW + 1, vW))
        A("v_lshl_add_u32 v%d, v%d, 7, v%d" % (vW, t3, vW))
        A("v_add_u32 v%d, v%d, v%d" % (vW, vW, vW + 3))
        A("v_xor_b32 v%d, 32, v%d" % (vW + 1, vW))
        A("v_xor_b32 v%d, 64, v%d" % (vW + 2, vW))
        A("v_xor_b32 v%d, 0x60, v%d" % (vW + 3, vW))
        A("v_bfe_u32 v%d, v%d, 1, 2" % (vKa, ln))
        A("v_mul_u32_u24 v%d, %d, v%d" % (vKa, WREG, vKa))
        A("v_and_b32 v%d, 1, v%d" % (vT4 + 1, ln))
        A("v_mul_u32_u24 v%d, %d, v%d" % (vT4 + 2, K1OFF, vT4 + 1))
        A("v_add_u32 v%d, v%d, v%d" % (vKa, vKa, vT4 + 2))
        A("v_bfe_u32 v%d, v%d, 3, 1" % (vT4 + 2, ln))
        A("v_lshl_add_u32 v%d, v%d, 8, v%d" % (vKa, vT4 + 2, vKa))
        A("v_lshl_add_u32 v%d, v%d, 4, v%d" % (vKa, t2, vKa))
        A("v_sub_u32 v%d, v%d, v%d" % (vQd, vqr, vKa))
        A("v_bfe_u32 v%d, v%d, 3, 2" % (vVa, ln))
        A("v_mul_u32_u24 v%d, %d, v%d" % (vVa, WREG, vVa))
        A("v_bfe_u32 v%d, v%d, 2, 1" % (vT4 + 2, ln))
        A("v_mul_u32_u24 v%d, %d, v%d" % (vT4 + 2, V1OFF - V0OFF, vT4 + 2))
        A("v_add_u32 v%d, v%d, v%d" % (vVa, vVa, vT4 + 2))
        A("v_lshrrev_b32 v%d, 5, v%d" % (vT4 + 2, ln))
        A("v_lshl_add_u32 v%d, v%d, 8, v%d" % (vVa, vT4 + 2, vVa))
        A("v_and_b32 v%d, 3, v%d" % (vT4 + 2, ln))
        A("v_lshl_add_u32 v%d, v%d, 3, v%d" % (vVa, vT4 + 2, vVa))
        A("v_add_u32 v%d, %d, v%d" % (vVa, V0OFF, vVa))
        A("v_mul_u32_u24 v%d, 260, v%d" % (vChk, vT4 + 2))
        A("v_add_u32 v%d, %d, v%d" % (vChk, FLAG, vChk))
        A("v_lshlrev_b32 v%d, 2, v0" % vPub)
        A("v_add_u32 v%d, %d, v%d" % (vPub, FLAG, vPub))
        A("v_mov_b32 v%d, 1" % vOne)
        return early, [I("s_mov_b32 s%d, %d" % (sT3, V0OFF))] + o

    def decode_job(self, d0, d1, dst):
        o = []
        A = lambda s: o.append(I(s))
        A("s_bfe_u32 s%d, s%d, 0x10011" % (sT2, d0))
        A("s_lshl_b32 s%d, s%d, 8" % (sT2, sT2))
        A("s_add_u32 s%d, s%d, s%d" % (sT2, sT2, sTmp))
        A("s_and_b32 s%d, s%d, 0x1fff" % (dst, d0))
        A("s_lshl_b32 s%d, s%d, 12" % (dst, dst))
        A("s_add_u32 s%d, s%d, s%d" % (dst, dst, sT2))
        A("s_lshr_b32 s%d, s%d, 13" % (dst + 2, d1))
        A("s_lshl_b32 s%d, s%d, 12" % (dst + 2, dst + 2))
        p2 = []
        B = lambda s: p2.append(I(s))
        B("s_and_b32 s%d, s%d, 0x1fff" % (dst + 1, d1))
        B("s_lshl_b32 s%d, s%d, 12" % (dst + 1, dst + 1))
        B("s_add_u32 s%d, s%d, s%d" % (dst + 1, dst + 1, sT2))
        B("s_bfe_u32 s%d, s%d, 0x3000d" % (dst + 3, d0))
        B("s_lshr_b32 s%d, s%d, 20" % (dst + 4, d0))
        return o, p2

    def set_compute(self, j):
        o = []
        A = lambda s: o.append(I(s))
        A("s_mov_b32 s%d, s%d" % (sC, j))
        A("s_mov_b32 s%d, s%d" % (sC + 1, j + 2))
        A("s_mov_b32 s%d, s%d" % (sC + 3, j + 4))
        A("s_lshr_b32 s%d, s%d, 12" % (sT2, j + 2))
        A("s_lshr_b32 s%d, s%d, 12" % (sT3, j + 1))
        A("s_sub_u32 s%d, s%d, s%d" % (sT2, sT2, sT3))
        A("s_lshl_b32 s%d, s%d, 5" % (sT3, j + 4))
        A("s_sub_u32 s%d, s%d, s%d" % (sT2, sT2, sT3))
        A("s_add_u32 s%d, s%d, 32" % (sC + 4, sT2))
        return o

    def queue_setup(self):
        o = []
        A = lambda s: o.append(I(s))
        j = sJ2
        A("s_mov_b64 %s, %s" % (sr(sN, 2), sr(sQp, 2)))
        A("s_mov_b64 %s, %s" % (sr(sN + 2, 2), sr(sQp2, 2)))
        A("s_mov_b32 s%d, s%d" % (sN + 4, j))
        A("s_mov_b32 s%d, %d" % (sN + 5, 64 * 4096))
        A("s_mov_b64 %s, %s" % (sr(sM, 2), sr(sKp, 2)))
        A("s_mov_b64 %s, %s" % (sr(sM + 2, 2), sr(sVp, 2)))
        A("s_sub_u32 s%d, s%d, 1" % (sM + 8, j + 4))
        A("s_lshl_b32 s%d, s%d, 17" % (sM + 4, sM + 8))
        A("s_add_u32 s%d, s%d, s%d" % (sM + 4, sM + 4, j + 1))
        A("s_mov_b32 s%d, %d" % (sM + 5, -32 * 4096))
        A("s_mov_b32 s%d, s%d" % (sN + 6, j + 2))
        A("s_sub_u32 s%d, s%d, %d" % (sN + 7, j + 2, 32 * 4096 - V0OFF))
        A("s_sub_u32 s%d, s%d, 1" % (sN + 8, j + 3))
        A("s_mov_b32 s%d, s%d" % (sM + 6, j + 2))
        A("s_add_u32 s%d, s%d, %d" % (sM + 7, j + 2, V0OFF))
        A("s_cmp_eq_u32 s%d, 0" % (j + 3))
        A("s_cmov_b64 %s, 0" % sr(sN + 6, 2))
        A("s_cmov_b32 s%d, 0x7fffffff" % (sN + 8))
        return o

    def slow(self):
        o = []
        A = lambda s: o.append(I(s))
        Qf, Kf, Vf, Oa, S, P = 192, 128, 160, 64, vS, vP
        m, l, al, t, u = vL, vL + 1, vL + 2, vL + 3, vL + 4
        vSrc, vG4, vSt = vL + 5, vL + 6, vL + 7
        sJob, sBlk, sTile, sRow, sLeft, sBase, sSt = range(sN, sN + 7)
        sj = sM
        A("L_slow:")
        A("s_waitcnt vmcnt(0)")
        A("v_mbcnt_lo_u32_b32 v0, -1, 0")
        A("v_mbcnt_hi_u32_b32 v0, -1, v0")
        A("v_lshrrev_b32 v%d, 4, v0" % vG4)
        A("v_and_b32 v%d, 15, v0" % t)
        A("v_lshlrev_b32 v%d, 15, v%d" % (vSrc, vG4))
        A("v_lshl_add_u32 v%d, v%d, 4, v%d" % (vSrc, t, vSrc))
        A("v_lshlrev_b32 v%d, 2, v%d" % (vG4, vG4))
        A("s_lshl_b32 s%d, s%d, 6" % (sT2, sW))
        A("v_add_u32 v0, s%d, v0" % sT2)
        o += sum(self.addr_setup(), [])
        A("v_and_b32 v%d, 1, v%d" % (vOst, vT3))
        A("v_lshl_add_u32 v%d, v%d, 1, v%d" % (vOst, vT1, vOst))
        A("v_bfe_u32 v%d, v%d, 1, 3" % (vSt, vT3))
        A("v_lshl_add_u32 v%d, v%d, 3, v%d" % (vOst, vSt, vOst))
        A("v_lshlrev_b32 v%d, 12, v%d" % (vOst, vOst))
        A("v_lshl_add_u32 v%d, v%d, 3, v%d" % (vSt, vT2, vOst))
        A("v_lshl_add_u32 v%d, v%d, 4, v%d" % (vOst, vT2, vOst))
        A("s_mul_i32 s%d, s%d, %d" % (sBase, sW, SLOT))
        A("v_add_u32 v%d, s%d, v%d" % (vKa, sBase, vKa))
        A("v_add_u32 v%d, s%d, v%d" % (vVa, sBase, vVa))
        A("s_mov_b32 s%d, 0" % sJob)
        for j in range(5):
            A("s_mov_b32 s%d, s%d" % (sj + j, sJ1 + j))
        A("L_slow_job:")
        A("s_mov_b32 s%d, 0" % sBlk)
        A("L_slow_blk:")
        A("s_mov_b64 %s, %s" % (sr(sA, 2), sr(sQp, 2)))
        A("s_mov_b32 s%d, s%d" % (sA + 2, sj + 2))
        A("s_lshl_b32 s%d, s%d, 18" % (sSt, sBlk))
        A("s_add_u32 s%d, s%d, s%d" % (sSt, sSt, sj))
        for ks in range(4):
            A("buffer_load_dwordx4 %s, v%d, %s, s%d offen offset:%d" % (vr(Qf + 4 * ks, 4), vOst, sr(sA, 4), sSt, 64 * ks))
        for j in range(32):
            A("v_mov_b32 v%d, 0" % (Oa + j))
        A("v_mov_b32 v%d, 0xff800000" % m)
        A("v_mov_b32 v%d, 0" % l)
        A("s_mov_b64 %s, %s" % (sr(sA, 2), sr(sKp, 2)))
        A("s_mov_b64 %s, %s" % (sr(sB, 2), sr(sVp, 2)))
        A("s_add_u32 s%d, s%d, %d" % (sB + 2, sj + 2, V0OFF))
        A("s_mov_b32 s%d, s%d" % (sRow, sj + 1))
        A("s_lshr_b32 s%d, s%d, 12" % (sLeft, sj + 2))
        A("s_lshr_b32 s%d, s%d, 12" % (sT2, sj + 1))
        A("s_sub_u32 s%d, s%d, s%d" % (sLeft, sLeft, sT2))
        A("s_mov_b32 s%d, s%d" % (sTile, sj + 4))
        A("L_slow_tile:")
        for sg in range(8):
            A("s_add_u32 s%d, s%d, %d" % (sT2, sRow, sg * 4096))
            A("s_add_u32 m0, s%d, %d" % (sBase, (sg >> 1) * WREG + (sg & 1) * K1OFF))
            A("buffer_load_dwordx4 v%d, %s, s%d offen lds" % (vSrc, sr(sA, 4), sT2))
            A("buffer_load_dwordx4 v%d, %s, s%d offen offset:%d lds" % (vSrc, sr(sB, 4), sT2, V0OFF))
        A("s_waitcnt vmcnt(0)")
        for b in range(2):
            for ks in range(4):
                A("ds_read_b128 %s, v%d offset:%d" % (vr(Kf + 16 * b + 4 * ks, 4), vKa, b * 512 + ks * 64))
        A("s_waitcnt lgkmcnt(0)")
        for db in range(8):
            for jj in range(2):
                A("ds_read_b64_tr_b16 %s, v%d offset:%d" % (vr(Vf + 4 * db + 2 * jj, 2), vVa, jj * 512 + 32 * db))
        for b in range(2):
            for ks in range(4):
                d = vr(S + 4 * b, 4)
                o.append(mf(d, vr(Kf + 16 * b + 4 * ks, 4), vr(Qf + 4 * ks, 4), d if ks else "0"))
        A("v_mov_b32 v%d, 0xff800000" % u)
        for j in range(8):
            A("v_mul_f32 v%d, s%d, v%d" % (S + j, sCc, S + j))
        for j in range(8):
            A("v_add_u32 v%d, %d, v%d" % (t, (j & 3) + 16 * (j >> 2), vG4))
            A("v_cmp_gt_u32 vcc, s%d, v%d" % (sLeft, t))
            A("v_cndmask_b32 v%d, v%d, v%d, vcc" % (S + j, u, S + j))
        A("v_max3_f32 v%d, v%d, v%d, v%d" % (t, S, S + 1, S + 2))
        A("v_max3_f32 v%d, v%d, v%d, v%d" % (t, t, S + 3, S + 4))
        A("v_max3_f32 v%d, v%d, v%d, v%d" % (t, t, S + 5, S + 6))
        A("v_max3_f32 v%d, v%d, v%d, v%d" % (t, t, S + 7, m))
        for sw in ("v_permlane16_swap_b32", "v_permlane32_swap_b32"):
            A("v_mov_b32 v%d, v%d" % (u, t))
            A("%s v%d, v%d" % (sw, t, u))
            A("v_max_f32 v%d, v%d, v%d" % (t, t, u))
        A("v_sub_f32 v%d, v%d, v%d" % (al, m, t))
        A("v_exp_f32 v%d, v%d" % (al, al))
        A("v_mov_b32 v%d, v%d" % (m, t))
        for j in range(8):
            A("v_sub_f32 v%d, v%d, v%d" % (S + j, S + j, m))
        for j in range(8):
            A("v_exp_f32 v%d, v%d" % (S + j, S + j))
        A("v_mul_f32 v%d, v%d, v%d" % (l, l, al))
        for j in range(8):
            A("v_add_f32 v%d, v%d, v%d" % (l, l, S + j))
        for j in range(4):
            A("v_cvt_pk_bf16_f32 v%d, v%d, v%d" % (P + j, S + 2 * j, S + 2 * j + 1))
        for j in range(32):
            A("v_mul_f32 v%d, v%d, v%d" % (Oa + j, Oa + j, al))
        A("s_waitcnt lgkmcnt(0)")
        for db in range(8):
            d = vr(Oa + 4 * db, 4)
            o.append(mf(d, vr(Vf + 4 * db, 4), vr(P, 4), d))
        A("s_add_u32 s%d, s%d, %d" % (sRow, sRow, 32 * 4096))
        A("s_sub_u32 s%d, s%d, 32" % (sLeft, sLeft))
        A("s_nop 7")
        A("s_sub_u32 s%d, s%d, 1" % (sTile, sTile))
        A("s_cmp_lg_u32 s%d, 0" % sTile)
        A("s_cbranch_scc1 L_slow_tile")
        for sw in ("v_permlane16_swap_b32", "v_permlane32_swap_b32"):
            A("v_mov_b32 v%d, v%d" % (u, l))
            A("%s v%d, v%d" % (sw, l, u))
            A("v_add_f32 v%d, v%d, v%d" % (l, l, u))
        A("v_rcp_f32 v%d, v%d" % (l, l))
        A("s_mov_b32 s%d, s%d" % (sO_ + 2, sj + 2))
        for j in range(32):
            A("v_mul_f32 v%d, v%d, v%d" % (Oa + j, Oa + j, l))
        for db in range(8):
            b = Oa + 4 * db
            for j in range(2):
                A("v_cvt_pk_bf16_f32 v%d, v%d, v%d" % (b + j, b + 2 * j, b + 2 * j + 1))
            A("buffer_store_dwordx2 %s, v%d, %s, s%d offen offset:%d" % (vr(b, 2), vSt, sr(sO_, 4), sSt, 32 * db))
        A("s_waitcnt vmcnt(0)")
        A("s_add_u32 s%d, s%d, 1" % (sBlk, sBlk))
        A("s_cmp_lt_u32 s%d, s%d" % (sBlk, sj + 3))
        A("s_cbranch_scc1 L_slow_blk")
        A("s_cmp_lg_u32 s%d, 0" % sJob)
        A("s_cbranch_scc1 L_end")
        A("s_mov_b32 s%d, 1" % sJob)
        for j in range(5):
            A("s_mov_b32 s%d, s%d" % (sj + j, sJ2 + j))
        A("s_cmp_lg_u32 s%d, 0" % (sj + 3))
        A("s_cbranch_scc1 L_slow_job")
        A("s_branch L_end")
        return check(o, fix=True, name="slow")

    def trace_init(self):
        if not self.o.trace:
            return []
        return [I("s_lshl_b32 s92, s%d, 8" % sW), I("s_add_u32 s92, s92, %d" % TRACE), I("v_mov_b32 v61, s92")]

    def padmark(self, idx):
        return [I("s_memrealtime s[98:99]")] if self.o.padto and self.o.padat == idx else []

    def stamp(self, idx):
        if not self.o.stamp:
            return self.padmark(idx) if idx else []
        return [I("s_memtime s[94:95]"), I("s_memrealtime s[96:97]"), I("s_waitcnt lgkmcnt(0)"),
                I("v_writelane_b32 v62, s94, %d" % idx), I("v_writelane_b32 v63, s96, %d" % idx)]

    def kernel(self, table):
        o = self.o
        out = []
        A = lambda s: out.append(I(s))
        A("s_cmp_ge_u32 s2, 256")
        A("s_cbranch_scc1 L_end")
        out += self.stamp(0)
        out += self.padmark(0)
        A("s_load_dwordx4 %s, s[0:1], 0" % sr(sQp, 4))
        A("s_load_dwordx2 %s, s[0:1], 16" % sr(sVp, 2))
        A("s_getpc_b64 %s" % sr(sTab, 2))
        A("L_pc:")
        A("s_lshr_b32 s%d, s2, 3" % sTmp)
        A("s_lshl_b32 s%d, s%d, 4" % (sT2, sTmp))
        A("s_add_u32 s%d, s%d, L_table-L_pc" % (sT2, sT2))
        A("s_add_u32 s%d, s%d, s%d" % (sTab + 2, sTab, sT2))
        A("s_addc_u32 s%d, s%d, 0" % (sTab + 3, sTab + 1))
        A("s_load_dwordx4 %s, %s, 0" % (sr(sTd, 4), sr(sTab + 2, 2)))
        A("s_load_dwordx2 %s, s[0:1], 32" % sr(sO_, 2))
        early, late = self.addr_setup()
        if o.codepf:
            A("s_lshl_b32 s%d, s%d, 12" % (sT2, sTmp))
            A("v_min_u32 v%d, 31, v0" % vT4)
            A("v_lshl_add_u32 v%d, v%d, 7, s%d" % (vT4, vT4, sT2))
            A("v_min_u32 v%d, L_slow-L_pc-8, v%d" % (vT4, vT4))
            A("global_load_dword v%d, v%d, %s" % (vT4 + 4, vT4, sr(sTab, 2)))
        out += early
        A("s_mov_b32 s%d, 0x20000" % (sA + 3))
        A("s_mov_b32 s%d, 0x20000" % (sB + 3))
        A("s_mul_i32 s%d, s%d, %d" % (sWb, sW, WREG))
        A("s_and_b32 s%d, s2, 7" % sTmp)
        A("s_lshl_b32 s%d, s%d, 9" % (sTmp, sTmp))
        A("s_mov_b32 m0, s%d" % sWb)
        if o.stamp == 4:
            A("s_memrealtime s[90:91]")
        A("s_waitcnt lgkmcnt(0)")
        if o.stamp == 4:
            A("s_memrealtime s[92:93]")
        A("s_add_u32 s%d, s%d, %d" % (sQp2, sQp, 32 * 4096 - V0OFF))
        A("s_addc_u32 s%d, s%d, 0" % (sQp2 + 1, sQp + 1))
        d1a, d1b = self.decode_job(sTd, sTd + 1, sJ1)
        out += d1a + self.srd_q() + [I("s_mov_b32 s%d, s%d" % (sA + 2, sJ1 + 2)), I("s_mov_b32 s%d, s%d" % (sQoff, sJ1))]
        out += self.head_dmas(0, "q")
        if o.stamp == 4:
            A("s_memrealtime s[98:99]")
        A("s_sub_u32 s%d, s%d, %d" % (sVp, sVp, V0OFF))
        A("s_subb_u32 s%d, s%d, 0" % (sVp + 1, sVp + 1))
        out += d1b
        A("s_sub_u32 s%d, s%d, 1" % (sSoff, sJ1 + 4))
        A("s_lshl_b32 s%d, s%d, 17" % (sSoff, sSoff))
        A("s_add_u32 s%d, s%d, s%d" % (sSoff, sSoff, sJ1 + 1))
        out += self.srd_kv() + self.head_dmas(1, "kv") + self.head_dmas(2, "kv")
        if o.stamp == 4:
            A("s_memrealtime s[100:101]")
        if not o.lateinhead:
            out += self.late_setup() + [I("s_waitcnt lgkmcnt(0)")]
        A("s_bfe_u32 s%d, s%d, 0x4000d" % (sT2, sTd))
        out += self.stamp(1)
        if o.stamp == 4:
            for j, r in enumerate((90, 92, 98, 100)):
                A("v_writelane_b32 v63, s%d, %d" % (r, 8 + j))
        for code in o.heads[:-1]:
            out += [I("s_cmp_eq_u32 s%d, %d" % (sT2, code)), I("s_cbranch_scc1 L_first%d" % code)]
        A("s_branch L_first%d" % o.heads[-1])
        out = check(out, fix=True, name="entry")
        loops = {}
        for nq in o.nqs:
            dec = I("s_sub_u32 s%d, s%d, 1" % (sLoop, sLoop))
            bA = self.body(nq, 1, tail=[dec, I("s_cbranch_scc1 L_last0_%d" % nq)])
            bB = self.body(nq, 0, tail=[dec, I("s_cbranch_scc0 L_loop%d" % nq)])
            check(bA + bB + bA, name="loop")
            loops[nq] = (bA, bB)
        for nq in o.nqs:
            bA, bB = loops[nq]
            mine = [c for c in o.heads if c & 7 == nq]
            if mine:
                b2 = self.body(nq, 0, entry=True)
                check(b2 + bA, name="b2-bA")
                for code in mine:
                    h = self.head(nq, code >> 3)
                    check(h + b2, name="head-b2")
                    out += [I("L_first%d:" % code)] + h
                    if code != mine[-1]:
                        out += [I("s_branch L_step2_%d" % nq)]
                out += [I("L_step2_%d:" % nq)] + self.trace_init() + self.stamp(2) + self.padmark(12) + b2 + self.stamp(5)
            if o.trace:
                tr0 = [I("s_memtime s[98:99]")]
                tr1 = [I("v_mov_b32 v60, s98"), I("ds_write_b32 v61, v60"), I("v_add_u32 v61, 4, v61")]
                bA = tr0 + bA[:-1] + tr1 + bA[-1:]
                bB = tr0 + bB[:-1] + tr1 + bB[-1:]
            out += [I(".p2align 6"), I("L_loop%d:" % nq)] + bA + bB
            for par in (1, 0):
                prev = bB if par else bA
                out += [I("L_last%d_%d:" % (par, nq))] + self.stamp(3)
                nxt = sorted({b for (a, p_, b) in o.trans if a == nq and p_ == par})
                for b in nxt[:-1]:
                    out += [I("s_cmp_eq_u32 s%d, %d" % (sNext, b)), I("s_cbranch_scc1 L_t%d_%d_%d" % (nq, par, b))]
                for b in reversed(nxt):
                    t = self.tuned(self.t_mid, nq, par, b & 7, b >> 3) if b else self.tuned(self.t_final, nq, par)
                    check(prev + t + (loops[b & 7][0] if b else []), name="loop-t-loop")
                    out += [I("L_t%d_%d_%d:" % (nq, par, b))] + t + self.stamp(4)
                    if b:
                        if o.stamp:
                            out += [I("v_mov_b32 v60, v62"), I("v_mov_b32 v61, v63")] + self.stamp(2) + self.stamp(5)
                        out += [I("s_branch L_loop%d" % (b & 7))]
                    else:
                        out += [I("s_branch L_fin")]
                if not nxt:
                    out += [I("s_branch L_fin")]
        A = lambda s: out.append(I(s))
        A("L_fin:")
        A("s_barrier")
        if o.stamp or o.trace:
            out += self.stamp(6)
            A("s_waitcnt vmcnt(0)")
            out += self.stamp(7)
            A("s_load_dwordx2 s[4:5], s[0:1], 48")
            A("v_mbcnt_lo_u32_b32 v70, -1, 0")
            A("v_mbcnt_hi_u32_b32 v70, -1, v70")
            A("s_mov_b32 s6, 0x1000000")
            A("s_lshl_b32 s3, s2, 2")
            A("s_add_u32 s3, s3, s%d" % sW)
            if o.stamp:
                A("s_lshl_b32 s3, s3, 10")
                A("v_lshlrev_b32 v70, 4, v70")
                A("s_waitcnt lgkmcnt(0)")
                A("buffer_store_dwordx4 v[60:63], v70, s[4:7], s3 offen")
            else:
                A("s_lshl_b32 s3, s3, 8")
                A("v_lshlrev_b32 v70, 2, v70")
                A("s_lshl_b32 s92, s%d, 8" % sW)
                A("s_add_u32 s92, s92, %d" % TRACE)
                A("v_add_u32 v71, s92, v70")
                A("ds_read_b32 v72, v71")
                A("s_waitcnt lgkmcnt(0)")
                A("buffer_store_dword v72, v70, s[4:7], s3 offen")
        if o.padto:
            out += self.padmark(6)
            A("s_waitcnt vmcnt(0)")
            out += self.padmark(7)
            A("s_waitcnt lgkmcnt(0)")
            A("L_pad:")
            A("s_memrealtime s[100:101]")
            A("s_waitcnt lgkmcnt(0)")
            A("s_sub_u32 s100, s100, s98")
            A("s_cmp_lt_u32 s100, %d" % (o.padto * 100))
            A("s_cbranch_scc1 L_pad")
        A("v_cmp_lt_u32 vcc, 0x%x, v%d" % (HI_BITS - LO_BITS, vBad))
        A("s_nop 4")
        A("s_cbranch_vccnz L_slow")
        A("L_end:")
        A("s_endpgm")
        out += self.stubs
        out += self.slow()
        txt = [x.text for x in out]
        txt.append(".p2align 4")
        txt.append("L_table:")
        for e in table:
            txt.append(".long 0x%x, 0x%x, 0x%x, 0x%x" % tuple(e))
        return txt


SHORT = True


def jcode(s, nq):
    L = CU[s + 1] - CU[s]
    return nq + (8 if SHORT and L - 32 * ((L - 1) // 32) <= 16 else 0)


def make_table(bins):
    nxt = {}
    tab = []
    for jobs in bins:
        e = []
        for (s, hh, nq) in jobs:
            u = nxt.get((s, hh), 0)
            nxt[(s, hh)] = u + nq
            q0 = CU[s] + 64 * u
            n = (CU[s + 1] - CU[s] + 31) // 32
            e += [q0 | jcode(s, nq) << 13 | hh << 17 | n << 20, CU[s] | CU[s + 1] << 13]
        e += [0, 0] * (2 - len(jobs))
        tab.append(e)
    for s in range(8):
        for hh in range(2):
            assert nxt[(s, hh)] == (CU[s + 1] - CU[s] + 63) // 64, (s, hh, nxt)
    assert len(tab) == 32
    return tab


HEADER = """; Varlen (packed, ragged) non-causal attention forward, bf16, T=6042 H=16 D=128, 8 sequences.
;
; S^T = K Q'^T and O^T = V^T P^T with v_mfma_f32_16x16x32_bf16; Q' = Q * log2(e)/sqrt(D), rounded to bf16 once.
; The shift cancels exactly in O/l, so the result is the softmax as long as nothing overflows or underflows, which holds when
; 2^-40 <= l <= 2^40 (every p <= l, the largest p >= l/len).  Each row sum is checked at run time; a wave that finds one outside
; @launch grid=(256,1,1) block=(256,1,1) lds=%d
.amdgcn_target "amdgcn-amd-amdhsa--gfx950"
.text
.globl %s
.p2align 8
.type %s,@function
%s:
"""
FOOTER = """.section .rodata,"a"
.p2align 6
.amdhsa_kernel %s
  .amdhsa_next_free_vgpr 512
  .amdhsa_next_free_sgpr 102
  .amdhsa_accum_offset 256
  .amdhsa_group_segment_fixed_size 0
  .amdhsa_kernarg_size 56
  .amdhsa_user_sgpr_count 2
  .amdhsa_user_sgpr_kernarg_segment_ptr 1
  .amdhsa_system_sgpr_workgroup_id_x 1
.end_amdhsa_kernel
"""


def parse_bins(s):
    U = [(CU[i + 1] - CU[i] + 63) // 64 for i in range(8)]
    jobs = []
    for bi, b in enumerate(s.split()):
        for ji, j in enumerate(b.split("+")):
            if j[0] != "-":
                jobs.append((bi, ji, "ABCDEFGH".index(j[0]), int(j[1]), "ab".index(j[2]) if len(j) > 2 else None))
    hh = {}
    for s_ in range(8):
        mine = [j for j in jobs if j[2] == s_]
        best = None
        for mask in range(1 << len(mine)):
            if any(j[4] is not None and j[4] != (mask >> k & 1) for k, j in enumerate(mine)):
                continue
            if sum(j[3] for k, j in enumerate(mine) if mask >> k & 1) == U[s_]:
                sc = 0
                for h in (0, 1):
                    sc += len({j[1] for k, j in enumerate(mine) if (mask >> k & 1) == h})
                if best is None or sc < best[0]:
                    best = (sc, mask)
        for k, j in enumerate(mine):
            hh[j[:2]] = best[1] >> k & 1
    bins = [[] for _ in range(32)]
    for j in jobs:
        bins[j[0]].append((j[2], hh[j[:2]], j[3]))
    return bins


SCHED3 = "C5 C5 C5 C5 H5 H5 H5 H5 F5 F5 C3+A3 C3+A3 C3+A3 C3+A3 G4+B4 G4+B4 G4+B4 H3+B4 H3+E3 H3+E3 H3+D3 D4+D3 D4+D3 D4+D3 E4+G3 E4+G3 E4+G3 E4+G3 F3+A4 F3+A4 F3+F3 F3+F3"
SCHED3B = "F6 F6 C5 C5 C5 C5 H5 H5 H5 H5 F5 F5 C3+A3 C3+A3 C3+A3 C3+A3 G4+B4 G4+B4 G4+B4 H3+B4 H3+E3 H3+E3 H3+D3 D4+D3 D4+D3 D4+D3 E4+G3 E4+G3 E4+G3 E4+G3 F3+A4 F3+A4"
SCHED4 = "C5 C5 C5 C5 H5 H5 H5 H5 F5 F5 G4+A3 G4+A3 G4+A3 C3+A3 C3+B4 C3+B4 C3+B4 H3+B4 H3+E3 H3+E3 H3+D3 D3+D4 D3+D4 D3+D4 G3+E4 G3+E4 G3+E4 G3+E4 F3+A4 F3+A4 F3+F3 F3+F3"
SCHED4B = "F6 F6 C5 C5 C5 C5 H5 H5 H5 H5 F5 F5 G4+A3 G4+A3 G4+A3 C3+A3 C3+B4 C3+B4 C3+B4 H3+B4 H3+E3 H3+E3 H3+D3 D3+D4 D3+D4 D3+D4 G3+E4 G3+E4 G3+E4 G3+E4 F3+A4 F3+A4"
SCHED5 = "F6 C5 C5 C5 H5 H5 G6 B2+C4 B2+C4 B2+C4 B2+H4 A2+H4 A2+H4 A2+H4 G2+F4 G2+F4 G2+F4 G2+F4 A3+G4 A3+C3 H3+B4 H3+B4 E3+D4 E3+D4 D3+D4 D3+E4 D3+E4 D3+E4 C2+E4 F3+G3 F3+G3 A4+A4"
SCHED4C = "C5 C5 C5 C5 H5 H5 H5 H5 F5 F5 A3+G4 A3+G4 A3+G4 A3+C3 C3+B4 C3+B4 C3+B4 H3+B4 E3+H3 E3+H3 D3+H3 D3+D4 D3+D4 D3+D4 G3+E4 G3+E4 G3+E4 G3+E4 F3+A4 F3+A4 F3+F3 F3+F3"
SCHED6 = "C3+B4 C3+B4 C3+B4 F3+F3 F3+F3 H3+D3 G3+E4 G3+E4 G3+E4 G3+E4 H3+E3 H3+E3 D3+D4 D3+D4 D3+D4 H3+B4 F3+A4 F3+A4 G4+A3 G4+A3 G4+A3 C3+A3 C5 C5 C5 C5 H5 H5 H5 H5 F5 F5"
SCHED6B = "C3+B4 C3+B4 C3+B4 H3+D3 G3+E4 G3+E4 G3+E4 G3+E4 H3+E3 H3+E3 D3+D4 D3+D4 D3+D4 H3+B4 F3+A4 F3+A4 G4+A3 G4+A3 G4+A3 C3+A3 F6 F6 C5 C5 C5 C5 H5 H5 H5 H5 F5 F5"
SCHED7 = "G3+E4 D3+D4 G4+A3 C5 C3+B4 F3+A4 G4+A3 C5 G3+E4 D3+D4 G4+A3 C5 C3+B4 F3+A4 C3+A3 C5 G3+E4 D3+D4 H3+E3 H5 C3+B4 F3+F3 H3+E3 H5 G3+E4 H3+D3 F5 H5 H3+B4 F3+F3 F5 H5"
SCHED8 = "G3+E4 D3+D4 G4+A3 C5 G3+E4 D3+D4 G4+A3 C5 G3+E4 D3+D4 G4+A3 C5 G3+E4 F3+A4 C3+A3 C5 C3+B4 F3+A4 H3+E3 H5 C3+B4 F3+F3 H3+E3 H5 C3+B4 F3+F3 F5 H5 H3+B4 H3+D3 F5 H5"
SCHED9 = "G3+E4 G3+E4 D3+D4 F3+F3 C3+B4 C3+B4 F3+A4 H3+D3 G3+E4 G3+E4 D3+D4 F3+F3 C3+B4 H3+B4 F3+A4 C3+A3 C5 C5 D3+D4 H3+E3 C5 C5 H5 H3+E3 H5 H5 H5 F5 G4+A3 G4+A3 G4+A3 F5"
SA = "F6 F6 C5 C5 C5 C5 H5 H5 H5 H5 F5 F5 G4+A3 G4+A3 G4+A3 C3+A3 C3+B4 C3+B4 C3+B4 H3+B4 H3+E3 H3+E3 H3+D3 D4+D3 D4+D3 D4+D3 G3+E4 G3+E4 G3+E4 G3+E4 F3+A4 F3+A4"
SB = "F6 F6 C5 C5 C5 C5 H5 H5 H5 H5 F5 F5 A3+G4 A3+G4 A3+G4 C3+A3 C3+B4 C3+B4 C3+B4 H3+B4 H3+E3 H3+E3 H3+D3 D3+D4 D3+D4 D3+D4 G3+E4 G3+E4 G3+E4 G3+E4 F3+A4 F3+A4"
SC = "F6 F6 C5 C5 C5 C5 H5 H5 H5 H5 F5 F5 G4+A3 G4+A3 G4+A3 C3+A3 B4+C3 B4+C3 B4+C3 B4+H3 H3+E3 H3+E3 H3+D3 D3+D4 D3+D4 D3+D4 G3+E4 G3+E4 G3+E4 G3+E4 F3+A4 F3+A4"
SD = "F6 F6 C5 C5 C5 C5 H5 H5 H5 H5 F5 F5 G4+A3 G4+A3 G4+A3 C3+A3 C3+B4 C3+B4 C3+B4 H3+B4 E3+H3 E3+H3 D3+H3 D3+D4 D3+D4 D3+D4 G3+E4 G3+E4 G3+E4 G3+E4 F3+A4 F3+A4"
SE = "F6 F6 C5 C5 C5 C5 H5 H5 H5 H5 F5 F5 G4+A3 G4+A3 G4+A3 C3+A3 C3+B4 C3+B4 C3+B4 H3+B4 H3+E3 H3+E3 H3+D3 D3+D4 D3+D4 D3+D4 G3+E4 G3+E4 G3+E4 G3+E4 A4+F3 A4+F3"
Opt.sched = SCHED4B


def build(o):
    bins = parse_bins(o.sched)
    o.nqs = tuple(sorted({j[2] for b in bins for j in b}))
    global SHORT, SNAKE
    SHORT = o.short
    SNAKE = o.snake
    o.heads = tuple(sorted({jcode(b[0][0], b[0][2]) for b in bins}))
    o.trans = set()
    for b in bins:
        for k, (s_, hh, nq) in enumerate(b):
            n = (CU[s_ + 1] - CU[s_] + 31) // 32
            o.trans.add((nq, (n - 1) & 1, jcode(b[k + 1][0], b[k + 1][2]) if k + 1 < len(b) else 0))
    g = Gen(o)
    body = g.kernel(make_table(bins))
    body.append("; sched " + o.sched)
    return HEADER % (LDS_BYTES, KNAME, KNAME, KNAME) + "\n".join(body) + "\n" + FOOTER % KNAME


if __name__ == "__main__":
    o = Opt()
    path = sys.argv[1]
    for a in sys.argv[2:]:
        k, v = a.split("=")
        setattr(o, k, eval(v))
    if isinstance(o.tune, str):
        import json
        o.tune = json.load(open(o.tune))
    src = build(o)
    open(path, "w").write(src)
```

```python
import sys, random
from isa import I, check, VAL

SCC_W = ("s_add_u32", "s_sub_u32", "s_addc_u32", "s_subb_u32", "s_cmp", "s_lshl", "s_lshr", "s_and", "s_or", "s_bfe", "s_min", "s_max")
SCC_R = ("s_cselect", "s_cmov", "s_cbranch_scc", "s_addc_u32", "s_subb_u32")

LDS_OCC = {"ds_write_b64": 34, "ds_write_b128": 56, "ds_read_b128": 16, "ds_read_b64_tr_b16": 8, "ds_read_b64": 8,
           "ds_read_b32": 8, "ds_write2st64_b64": 66, "ds_write2_b64": 52, "ds_add_u32": 10, "ds_write_b32": 16}
TA_OCC = 64


class N:
    def __init__(self, ins, idx):
        self.i, self.idx = ins, idx
        self.preds, self.succs = [], []
        self.t = None
        self.done = None
        self.cp = 0


def rw(ins):
    r, w = set(ins.reads), set(ins.writes)
    r |= {("m", t) for t in getattr(ins, "mr", ())}
    w |= {("m", t) for t in getattr(ins, "mw", ())}
    return r, w


def raw_lat(p, c, reg):
    if reg[0] == "m":
        return 4
    k = p.kind
    if k == "mfma":
        if c.kind == "mfma" and p.D == c.C and not (set(p.D) & (set(c.A) | set(c.B))):
            return 16
        return 44
    if k == "ds":
        return None
    if k == "vmem":
        return 600
    if k == "trans":
        return 12
    if k in VAL:
        if c.kind in ("mfma", "perm"):
            return 12
        if reg[0] == "s":
            return 24
        return 4
    return 4


class P:
    st, dma, dsw2, dsr = 26, 8, 24, 4
    dsm = 0
    q_lds, q_ta = 40, 64
    dslat = 80
    memslack = 400
    pkfirst = 12
    noise = 0
    seed = 0
    fitk = 8


def cost(ins):
    k = ins.kind
    if k in ("trans", "perm"):
        return 8
    if k == "vmem":
        return P.st
    if k == "dma":
        return P.dma
    if ins.op.startswith("ds_read"):
        return P.dsr
    if ins.op == "ds_write_b64":
        return 16
    if ins.op == "ds_write_b32":
        return 12
    if ins.op in ("ds_write2st64_b64", "ds_write2_b64"):
        return P.dsw2
    if ins.op == "ds_add_u32":
        return 8
    if k == "nop":
        return 4 * ins.states
    if ins.op == "s_barrier":
        return 90
    return 4


def schedule(prog, pre_vm=0, name="", verbose=True):
    nodes = [N(x, i) for i, x in enumerate(prog)]
    byins = {id(n.i): n for n in nodes}
    lastw, readers = {}, {}

    def edge(p, c, lat, ds=False):
        if p is c:
            return
        c.preds.append((p, lat, ds))
        p.succs.append((c, lat, ds))

    prevm = prevbr = prevvm = None
    sccw = None
    for n in nodes:
        n.sccw = n.i.op.startswith(SCC_W)
        n.sccr = n.i.op.startswith(SCC_R)
        n.users = 0
        if n.sccr:
            edge(sccw, n, 4)
            sccw.users += 1
            n.sccp = sccw
        if n.sccw:
            sccw = n
    for n in nodes:
        ins = n.i
        r, w = rw(ins)
        if ins.op.startswith("s_cmov"):
            r |= w
        for x in r:
            if x in lastw:
                p = lastw[x]
                lat = raw_lat(p.i, ins, x)
                edge(p, n, 0 if lat is None else lat, ds=lat is None)
        for x in w:
            if x in lastw:
                p = lastw[x]
                if p.i.kind == "mfma":
                    edge(p, n, 16 if ins.kind == "mfma" else 44)
                elif p.i.kind == "ds" and x[0] != "m":
                    edge(p, n, 0, ds=True)
                else:
                    edge(p, n, 4)
            for p in readers.get(x, ()):
                lat = 4
                if p.i.kind == "mfma" and x in p.i.C and ins.kind in VAL:
                    lat = 20
                if p.i.kind == "vmem":
                    lat = 16
                edge(p, n, lat)
        for x in r:
            readers.setdefault(x, []).append(n)
        for x in w:
            lastw[x] = n
            readers[x] = []
        for p in getattr(ins, "after", ()):
            edge(byins[id(p)], n, 4)
        for p, lat in getattr(ins, "lag", ()):
            edge(byins[id(p)], n, lat)
        for p in getattr(ins, "wait_ds", ()):
            edge(byins[id(p)], n, 0, ds=True)
        vm = getattr(ins, "vm", None)
        if isinstance(vm, list):
            for p in vm:
                edge(byins[id(p)], n, getattr(ins, "vmlag", 4))
        if ins.kind == "mfma" and not getattr(ins, "free", False):
            if prevm:
                edge(prevm, n, 16)
            prevm = n
        if ins.kind == "dma":
            if prevvm:
                edge(prevvm, n, 4)
            prevvm = n
    for n in reversed(nodes):
        c = cost(n.i)
        for s, lat, ds in n.succs:
            c = max(c, (130 if ds else max(lat, cost(n.i))) + s.cp)
        n.cp = c + getattr(n.i, "bias", 0)
    if P.noise:
        rnd = random.Random(P.seed)
        for n in nodes:
            n.cp += rnd.uniform(0, P.noise)
    npred = {id(n): len(n.preds) for n in nodes}
    ready = [n for n in nodes if not n.preds]
    t = 0
    mfma_free = hold = lds_free = ta_free = memhold = 0
    order = []
    just_mfma = False
    last_pk = False
    rem_fill = sum(cost(n.i) for n in nodes if n.i.kind not in ("mfma",) and n.i.op != "s_barrier")
    rem_mfma = sum(1 for n in nodes if n.i.kind == "mfma")
    scc_open = 0
    allready = ready
    while allready:
        ready = [n for n in allready if not (scc_open and n.sccw and not n.sccr)]
        ready = [n for n in ready if not n.users or all(npred[id(s_)] == sum(1 for p, _, _ in s_.preds if p is n or (p.t is None and getattr(p, "sccp", None) is n))
                                                          for s_, _, _ in n.succs if getattr(s_, "sccp", None) is n)] or ready
        assert ready

        def start(n):
            s = t
            for p, lat, ds in n.preds:
                s = max(s, p.done if ds else p.t + lat)
            k = n.i.kind
            if k == "mfma":
                s = max(s, mfma_free, memhold)
            elif n.i.op.startswith("v_pk_"):
                s = max(s, mfma_free)
            elif k in VAL:
                s = max(s, hold)
            elif k == "ds":
                s = max(s, hold, lds_free - P.q_lds)
            elif k in ("vmem", "dma"):
                s = max(s, hold, ta_free - P.q_ta)
            s = max(s, getattr(n.i, "start", 0))
            return s
        st = {id(n): start(n) for n in ready}
        m = [n for n in ready if n.i.kind == "mfma"]
        m = min(m, key=lambda n: (max(st[id(n)], t), -n.cp, n.idx)) if m else None
        pick = None
        pks = [n for n in ready if n.i.op.startswith("v_pk_") and st[id(n)] <= t]
        if m and last_pk and pks:
            pick = max(pks, key=lambda n: (n.cp, -n.idx))
        elif m and st[id(m)] <= t and not (P.pkfirst and len([n for n in ready if n.i.op.startswith("v_pk_") and st[id(n)] <= max(t, mfma_free)]) >= P.pkfirst):
            pick = m
        else:
            scal = [n for n in ready if n.i.kind in ("salu", "branch", "wait") and st[id(n)] <= t and n.i.op != "s_barrier"]
            if just_mfma and scal:
                pick = max(scal, key=lambda n: (n.cp, -n.idx))
            else:
                now = max(t, hold)
                cand = [n for n in ready if n is not m and st[id(n)] <= now]
                if m:
                    npk = [n for n in ready if n.i.op.startswith("v_pk_") and st[id(n)] <= max(now, mfma_free)]
                    if len(npk) >= P.pkfirst:
                        cand = npk
                    else:
                        cand = [n for n in cand if not n.i.op.startswith("v_pk_")]
                if cand:
                    if m and rem_fill <= P.fitk * rem_mfma:
                        fit = [n for n in cand if max(st[id(n)], t) + cost(n.i) <= st[id(m)]]
                    else:
                        fit = cand
                    if fit:
                        mem = [n for n in fit if n.i.kind in ("ds", "vmem", "dma")]
                        best = max(fit, key=lambda n: (n.cp, -n.idx))
                        if mem and (hold > t or just_mfma):
                            bm = max(mem, key=lambda n: (n.cp, -n.idx))
                            if bm.cp >= best.cp - P.memslack:
                                best = bm
                        pick = best
                if pick is None:
                    pick = min(ready, key=lambda n: (st[id(n)], -n.cp, n.idx))
        s = st[id(pick)]
        last_pk = pick.i.op.startswith("v_pk_")
        pick.t = s
        k = pick.i.kind
        if k == "mfma":
            mfma_free = s + 16
            hold = s + 8
            t = s + 4
            rem_mfma -= 1
            just_mfma = True
        else:
            c = cost(pick.i)
            t = s + c
            if pick.i.op != "s_barrier":
                rem_fill -= c
            just_mfma = False
            if k in ("ds", "vmem", "dma"):
                memhold = t + P.dsm
            if k == "ds":
                lds_free = max(lds_free, s) + LDS_OCC[pick.i.op]
                pick.done = max(lds_free, s + 40) + P.dslat
            elif k in ("vmem", "dma"):
                ta_free = max(ta_free, s) + TA_OCC
        if pick.done is None:
            pick.done = t
        order.append(pick)
        allready.remove(pick)
        if pick.sccr:
            scc_open -= 1
        if pick.users:
            assert scc_open == 0
            scc_open = pick.users
        for sc, lat, ds in pick.succs:
            npred[id(sc)] -= 1
            if npred[id(sc)] == 0:
                allready.append(sc)
    assert len(order) == len(nodes)
    out = []
    dsq = []
    ds_done = 0
    vmq = []
    for n in order:
        need = -1
        for p, lat, ds in n.preds:
            if ds:
                need = max(need, dsq.index(p))
        if need >= ds_done:
            cnt = min(15, len(dsq) - 1 - need)
            out.append(I("s_waitcnt lgkmcnt(%d)" % cnt))
            ds_done = len(dsq) - cnt
        ins = n.i
        vm = getattr(ins, "vm", None)
        if vm is not None:
            if isinstance(vm, list):
                cnt = len(vmq) - 1 - max(vmq.index(byins[id(p)]) for p in vm)
            else:
                cnt = vm + len(vmq)
            if ins.op == "s_barrier":
                out.append(I("s_waitcnt vmcnt(%d)" % min(63, cnt)))
            else:
                ins = I("s_waitcnt vmcnt(%d)" % min(63, cnt))
        out.append(ins)
        if ins.kind == "branch" and ins.tag:
            out.append(I(ins.tag + ":"))
        if ins.kind == "ds":
            dsq.append(n)
        if ins.kind in ("vmem", "dma"):
            vmq.append(n)
    pending_ds = len(dsq) - ds_done
    out = check(out, fix=True, name=name)
    if verbose:
        sys.stderr.write("sched %s: %d instrs, model %d cycles, %d ds pending at exit\n" % (name, len(out), t, pending_ds))
    return out, t
```

```python
import sys, struct, math
from isa import I, check
from lsched import schedule

KNAME = "standalone__varlen_attn_packed__ragged_kernel"
CU = [0, 580, 1085, 2082, 2797, 3498, 4341, 5079, 6042]

R = 8
SLOT = 16640
WREG = 4160
K1OFF, V0OFF, V1OFF = 1056, 2080, 3136
FLAG = R * SLOT
STAGE = FLAG + 1280
RSTAGE = STAGE + 16384
TRACE = RSTAGE + 256
LDS_BYTES = TRACE + 1024

vKa, vVa, vo0, vo1, vR, vOst, vQd, vPub, vChk, vOne, vFlag, vBad = range(1, 13)
vT1, vT2, vT3 = 13, 14, 15
vMask = 16
vS = 24
vP = 40
vL = 48
vT5 = 54
vW = 56
vW2, vLw, vLr = 0, 60, 61
vO = 64
vT4 = 128
vqr = vFlag
aK = 0
aV = 64
aOnes = 128
aL = 132
aC = 144
aQ = 160
sA, sB, sO_ = 4, 8, 12
sQp, sKp, sVp, sQp2 = 16, 18, 20, 22
sSoff, sStride, sCnt, sQoff = 24, 25, 26, 27
sWb, sMlim, sRc, sDelta, sLoop, sThr, sPos, sNeg = 28, 29, 30, 31, 32, 33, 34, 35
sJ1, sJ2 = 36, 41
sC = 46
sN, sM = 52, 62
sW, sNext, sCc, sTmp, sT2, sT3 = 72, 73, 74, 76, 77, 78
sTab, sTd = 80, 84
sSts = list(range(80, 92))
LEAD = 4
SCALE = math.log2(math.e) / math.sqrt(128.0)
SCALE_BITS = struct.unpack("<I", struct.pack("<f", SCALE))[0]
LO_BITS = (127 - 40) << 23
HI_BITS = (127 + 40) << 23


class Opt:
    ntkv = ""
    nto = "sc1"
    ntq = ""
    ntm = "sc1"
    ones = {2: 2, 3: 3, 4: 2, 5: 2, 6: 2}
    codepf = True
    stbias = 300
    fpos = {2: 8, 3: 9, 4: 9, 5: 9, 6: 9}
    a0, dq, dkv = 200, 800, 300
    s1at = 1400
    ppos = {2: 0, 3: 2, 4: 8, 5: 8, 6: 8}
    s2at = 2200
    short = True
    touch = False
    rbias = 0
    swap = True
    kv1pos = 0
    nlast, ntl = 0, ""
    lateinhead = False
    snake = True
    vmlag = 1500
    tune = {}
    dmabias = 2000
    qat, qstep, tmpn = 0, 350, 4
    hl = {2: 3, 3: 3, 4: 3, 5: 2, 6: 2}
    lag = 260
    stamp = False
    trace = False
    padto = 0
    padat = 0


def vr(b, n=1):
    return "v%d" % b if n == 1 else "v[%d:%d]" % (b, b + n - 1)


def ar(b, n=1):
    return "a%d" % b if n == 1 else "a[%d:%d]" % (b, b + n - 1)


def sr(b, n=1):
    return "s%d" % b if n == 1 else "s[%d:%d]" % (b, b + n - 1)


def qreg(nq, i, ks):
    if nq <= 4:
        return "v", 192 + 16 * i + 4 * ks
    free = (256 - (vO + 32 * nq)) // 16
    if i < free:
        return "v", vO + 32 * nq + 16 * i + 4 * ks
    return "a", aQ + 16 * (i - free) + 4 * ks


def qop(nq, i, ks):
    f, b = qreg(nq, i, ks)
    return vr(b, 4) if f == "v" else ar(b, 4)


def ones_blocks(nq, k):
    if k >= nq:
        return list(range(nq))
    if k == 1:
        return [0]
    if k == 2:
        return [0, (nq + 1) // 2]
    return [0] + list(range(nq - k + 1, nq))


def mf(d, a, b, c):
    return I("v_mfma_f32_16x16x32_bf16 %s, %s, %s, %s" % (d, a, b, c))


def bf16_bits(x):
    u = struct.unpack("<I", struct.pack("<f", x))[0]
    return (u + 0x7FFF + ((u >> 16) & 1)) >> 16


def bf16_val(b):
    return struct.unpack("<f", struct.pack("<I", b << 16))[0]


C_HI = bf16_bits(SCALE)
C_LO = bf16_bits(SCALE - bf16_val(C_HI))


SNAKE = True
SWAP = True


def qk(nq, i, kbuf, sset, masked, short=False):
    out = []
    for b in range(1 if short else 2):
        d = vr(vS + 8 * sset + 4 * b, 4)
        for j, ks in enumerate((3, 2, 1, 0) if b and SNAKE else (0, 1, 2, 3)):
            c = d if j else (vr(vMask + 4 * b, 4) if masked else "0")
            out.append(mf(d, ar(aK + 32 * kbuf + 16 * b + 4 * ks, 4), qop(nq, i, ks), c))
    return out


def pv(i, vbuf, pset, zero):
    out = []
    for db in range(8):
        d = vr(vO + 32 * i + 4 * db, 4)
        a, b = ar(aV + 32 * vbuf + 4 * db, 4), vr(vP + 4 * pset, 4)
        out.append(mf(d, b, a, "0" if zero else d) if SWAP else mf(d, a, b, "0" if zero else d))
    return out


def onesm(slot, pset, zero):
    d = ar(aL + 4 * slot, 4)
    return mf(d, ar(aOnes, 4), vr(vP + 4 * pset, 4), "0" if zero else d)


def EXP(sset, j):
    r = vS + 8 * sset + j
    return I("v_exp_f32 v%d, v%d" % (r, r))


def CVT(sset, j):
    r = vS + 8 * sset + 2 * j
    return I("v_cvt_pk_bf16_f32 v%d, v%d, v%d" % (vP + 4 * sset + j, r, r + 1))


def kread(buf, b, ks):
    return I("ds_read_b128 %s, v%d offset:%d" % (ar(aK + 32 * buf + 16 * b + 4 * ks, 4), vKa, b * 512 + ks * 64))


def vread(buf, db, jj):
    return I("ds_read_b64_tr_b16 %s, v%d offset:%d" % (ar(aV + 32 * buf + 4 * db + 2 * jj, 2), vVa, jj * 512 + 32 * db))


def kvreads(buf):
    return [kread(buf, b, ks) for b in range(2) for ks in range(4)] + [vread(buf, db, jj) for db in range(8) for jj in range(2)]


def dmas(o, soff=sSoff):
    p = (" " + o.ntkv) if o.ntkv else ""
    return [I("buffer_load_dwordx4 v%d, %s, s%d offen%s lds" % (vo0, sr(sA, 4), soff, p)),
            I("buffer_load_dwordx4 v%d, %s, s%d offen offset:%d%s lds" % (vo1, sr(sA, 4), soff, K1OFF, p)),
            I("buffer_load_dwordx4 v%d, %s, s%d offen offset:%d%s lds" % (vo0, sr(sB, 4), soff, V0OFF, p)),
            I("buffer_load_dwordx4 v%d, %s, s%d offen offset:%d%s lds" % (vo1, sr(sB, 4), soff, V1OFF, p))]


def m0_adv():
    return [I("s_add_u32 m0, m0, s%d" % sPos), I("s_cmp_eq_u32 m0, s%d" % sMlim), I("s_cselect_b32 m0, s%d, m0" % sWb)]


def item_adv():
    t = ["s_add_u32 s%d, s%d, s%d" % (sSoff, sSoff, sStride), "s_sub_u32 s%d, s%d, 1" % (sCnt, sCnt),
         "s_cmov_b64 %s, %s" % (sr(sA, 2), sr(sN, 2)), "s_cmov_b64 %s, %s" % (sr(sB, 2), sr(sN + 2, 2)),
         "s_cmov_b64 %s, %s" % (sr(sSoff, 2), sr(sN + 4, 2)), "s_cmov_b32 s%d, s%d" % (sA + 2, sN + 6),
         "s_cmov_b32 s%d, s%d" % (sB + 2, sN + 7), "s_cmov_b32 s%d, s%d" % (sCnt, sN + 8)]
    for j in range(4):
        t.append("s_cmov_b64 %s, %s" % (sr(sN + 2 * j, 2), sr(sM + 2 * j, 2)))
    t += ["s_cmov_b32 s%d, s%d" % (sN + 8, sM + 8), "s_cmov_b64 %s, 0" % sr(sM + 6, 2), "s_cmov_b32 s%d, 0x7fffffff" % (sM + 8)]
    return [I(x) for x in t]


def ring_adv_s():
    return [I("s_sub_u32 s%d, s%d, 1" % (sRc, sRc)),
            I("s_cselect_b32 s%d, s%d, s%d" % (sDelta, sNeg, sPos)),
            I("s_cselect_b32 s%d, %d, s%d" % (sRc, R - 1, sRc))]


def ring_adv():
    return ring_adv_s() + [I("v_add_u32 v%d, s%d, v%d" % (vKa, sDelta, vKa)), I("v_add_u32 v%d, s%d, v%d" % (vVa, sDelta, vVa))]


class Gen:
    def __init__(self, o):
        self.o = o
        self.stubs = []
        self.nlab = 0

    def lab(self, p):
        self.nlab += 1
        return "L_%s_%d" % (p, self.nlab)

    def issue_item(self):
        return dmas(self.o) + m0_adv() + item_adv()[:2]

    def spin(self):
        spin, ret = self.lab("spin"), self.lab("spinret")
        self.stubs += [I(spin + ":"), I("ds_read_b32 v%d, v%d" % (vFlag, vChk)), I("s_waitcnt lgkmcnt(0)"),
                       I("v_cmp_gt_u32 vcc, s%d, v%d" % (sThr, vFlag)), I("s_nop 4"),
                       I("s_cbranch_vccnz " + spin), I("s_branch " + ret)]
        return I("s_cbranch_vccnz " + spin, tag=ret)

    def body(self, nq, par, first=False, entry=False, tail=None, vmextra=0):
        o = self.o
        ob = ones_blocks(nq, o.ones[nq])
        addb = [i for i in range(nq) if i not in ob]
        flags = entry or par == 1
        sset = lambda t, i: ((par ^ t) * nq + i) & 1
        gaps, vstart, flex = [], [], []

        def gap(m, E=None, fixed=None):
            gaps.append(dict(m=m, E=E, fixed=fixed or [], scal=[], flex=[]))
            return len(gaps) - 1

        lcount = {}

        def ADD(i, ss, j):
            n = lcount.get(i, 0)
            lcount[i] = n + 1
            l = vL + 2 * addb.index(i) + (n & 1)
            r = vS + 8 * ss + j
            if first and n < 2:
                return I("v_mov_b32 v%d, v%d" % (l, r))
            return I("v_add_f32 v%d, v%d, v%d" % (l, l, r))

        adds = []
        for v in range(nq):
            vstart.append(len(gaps))
            nxt_t, nxt_i = (0, v + 1) if v < nq - 1 else (1, 0)
            sc, sn = sset(0, v), sset(nxt_t, nxt_i)
            qm = qk(nq, nxt_i, par ^ nxt_t, sn, first and nxt_t == 0)
            pm = pv(v, par, sc, first)
            for g in range(16):
                m = qm[g] if g < 8 else pm[g - 8]
                E, fixed = None, []
                if g in (1, 3, 5):
                    E = (v, sc, 5 + g // 2)
                elif g in (7, 9, 11, 13, 15):
                    E = (nxt_i if nxt_t == 0 else -1, sn, (g - 7) // 2)
                if g in (2, 6):
                    fixed = [CVT(sc, 2 + g // 4)]
                if g in (10, 14):
                    fixed = [CVT(sn, (g - 10) // 4)]
                gi = gap(m, EXP(E[1], E[2]) if E else None, fixed)
                if E and E[0] in addb:
                    adds.append((E[0], gi, E[1], E[2]))
            if v in ob:
                gap(onesm(ob.index(v), sc, first))
        ng = len(gaps)
        vstart.append(ng)
        for (i, gi, ss, j) in adds:
            dl = ng - 1
            if i + 1 < nq:
                dl = vstart[i + 1] - 1 + (4 if j >= 4 else 0)
            flex.append([gi + 1, dl, 1, 5, ("add", i, ss, j)])
        kdl = vstart[nq - 1] - 5
        vdl = ng - (9 if nq > 2 else 6)
        for x in kvreads(par ^ 1):
            flex.append([0, kdl, 1, 1, x] if x.op == "ds_read_b128" else [0, vdl, 1, 2, x])
        ddl = max(ng // 2 - 4, 6) if nq > 2 else 14
        for d in dmas(o):
            flex.append([0, ddl, 2, 0, d])
        pend = sorted(flex, key=lambda f: (f[1], f[3]))
        slotgaps = [i for i, g in enumerate(gaps) if g["E"] is None]

        def remaining_cap(gi, upto):
            return sum(2 - len(gaps[x]["fixed"]) for x in slotgaps if gi <= x <= upto)

        bonus = set()
        ov = sum(f[2] for f in flex if f[1] <= vdl) + (3 if flags else 0) - remaining_cap(0, vdl)
        cand = [x for x in slotgaps if x <= vdl]
        for j in range(max(0, ov)):
            bonus.add(cand[(j * len(cand)) // ov] if ov <= len(cand) else cand[j % len(cand)])
        nk = nv = nd = 0
        ddone = None
        for gi in range(ng):
            g = gaps[gi]
            cap = 0 if g["E"] is not None else 2 - len(g["fixed"]) + (1 if gi in bonus else 0)
            while True:
                ready = [f for f in pend if f[0] <= gi]
                pick = next((f for f in ready if f[2] <= cap), None)
                forced = [f for f in ready if f[1] <= gi]
                if pick is None and forced:
                    pick = forced[0]
                if pick is None:
                    break
                if pick[2] == 1 and cap >= 2:
                    two = [f for f in ready if f[2] == 2]
                    urgent = [f for f in pend if f[2] == 1 and f[1] < two[0][1]] if two else []
                    if two and (not urgent or remaining_cap(gi + 1, urgent[-1][1]) + sum(1 for x in bonus if gi < x <= urgent[-1][1]) >= len(urgent)):
                        pick = two[0]
                pend.remove(pick)
                cap -= pick[2]
                ins = pick[4]
                if isinstance(ins, tuple):
                    ins = ADD(ins[1], ins[2], ins[3])
                g["flex"].append(ins)
                if ins.op == "ds_read_b128":
                    nk += 1
                    if nk == 8:
                        pend.append([gi + 1, ng - 1, 1, 6, I("v_add_u32 v%d, s%d, v%d" % (vKa, sDelta, vKa))])
                elif ins.op == "ds_read_b64_tr_b16":
                    nv += 1
                    if nv == 16:
                        pend.append([gi + 1, ng - 1, 1, 6, I("v_add_u32 v%d, s%d, v%d" % (vVa, sDelta, vVa))])
                elif ins.kind == "dma":
                    nd += 1
                    if nd == 4:
                        ddone = gi
                        if flags:
                            pg = max(gi + 2, ng // 2 - o.ppos[nq])
                            assert pg + 2 < ng - o.fpos[nq] - 3
                            pend.append([pg, pg + 4, 1, 0, I("ds_add_u32 v%d, v%d" % (vPub, vOne))])
                            pend.append([ng - o.fpos[nq] - 3, ng - o.fpos[nq], 1, 0, I("ds_read_b32 v%d, v%d" % (vFlag, vChk))])
                pend.sort(key=lambda f: (f[1], f[3]))
        assert not pend, pend
        sgaps = [i for i, g in enumerate(gaps) if not any(f.kind == "dma" for f in g["flex"])]
        used = set()

        def put(chain, lo, hi=None):
            gi = lo - 1
            for ins in chain:
                gi = min(x for x in sgaps if x > gi and x not in used)
                used.add(gi)
                gaps[gi]["scal"].append(ins)
            assert hi is None or gi <= hi, (gi, hi, chain)
            return gi

        def ds_after(pos, pred):
            seq = [f for x in range(pos) for f in gaps[x]["flex"] if f.kind == "ds"]
            return min(15, len(seq) - 1 - max(i for i, f in enumerate(seq) if pred(f)))

        find = lambda op: [x for x in range(ng) for f in gaps[x]["flex"] if f.op == op]
        kw = vstart[nq - 1] - 1
        put([I("s_waitcnt lgkmcnt(%d)" % ds_after(kw, lambda f: f.op == "ds_read_b128"))], kw, kw)
        put([I("s_waitcnt lgkmcnt(0)")], ng - 3, ng - 3)
        if flags:
            pubg = find("ds_add_u32")[0]
            assert pubg - 1 > ddone
            put([I("s_waitcnt vmcnt(%d)" % (4 * (LEAD - 1) + vmextra))], pubg - 1, pubg)
            wg = find("ds_read_b32")[0] + 5
            wg = put([I("s_waitcnt lgkmcnt(%d)" % ds_after(wg, lambda f: f.op == "ds_read_b32"))], wg, wg + 1)
            cg = min((x for x in range(wg, ng - 3) if gaps[x]["E"] is None),
                     key=lambda x: (len(gaps[x]["flex"]) + len(gaps[x]["fixed"]) >= 2, x))
            gaps[cg]["flex"].append(I("v_cmp_gt_u32 vcc, s%d, v%d" % (sThr, vFlag)))
            put([self.spin()], ng - 1, ng - 1)
        p = put(ring_adv_s(), 0, min(find("v_add_u32")) - 1)
        if flags:
            p = put([I("s_add_u32 s%d, s%d, 1" % (sThr, sThr))], p + 1, cg - 1)
        p = put(m0_adv(), max(p, ddone) + 1)
        p = put(item_adv()[:2] if entry else item_adv(), p + 1)
        tail = tail or []
        if tail:
            put(tail[:1], p + 1)
            tail = tail[1:]
        out = []
        over = 0
        for gi, g in enumerate(gaps):
            out.append(g["m"])
            for x in g["scal"]:
                out.append(x)
                if x.kind == "branch" and x.tag:
                    out.append(I(x.tag + ":"))
            out += [f for f in g["flex"] if f.kind in ("ds", "dma")]
            if g["E"] is not None:
                out.append(g["E"])
            out += g["fixed"] + [f for f in g["flex"] if f.kind not in ("ds", "dma")]
            c = sum(2 if f.kind == "dma" else 1 for f in g["flex"]) + len(g["fixed"]) + (2 if g["E"] is not None else 0)
            over += max(0, c - 2)
        out += tail
        if entry:
            out += self.issue_item()
        sys.stderr.write("body nq=%d par=%d first=%d entry=%d gaps=%d overflow=%d\n" % (nq, par, first, entry, ng, over))
        return check(out, fix=True, name="body")

    def masks(self, short, vT1=vT1, big=vT2):
        out = [I("v_mbcnt_lo_u32_b32 v%d, -1, 0" % vT1), I("v_mbcnt_hi_u32_b32 v%d, -1, v%d" % (vT1, vT1)),
               I("v_lshrrev_b32 v%d, 2, v%d" % (vT1, vT1)), I("v_and_b32 v%d, 12, v%d" % (vT1, vT1)),
               I("v_sub_u32 v%d, s%d, v%d" % (vT1, sC + 4, vT1)),
               I("v_cvt_f32_i32 v%d, v%d" % (vT1, vT1)), I("v_mov_b32 v%d, 0x7c800000" % big)]
        for j in range(4 if short else 8):
            kv = (j & 3) + 16 * (j >> 2)
            bits = struct.unpack("<I", struct.pack("<f", -(kv + 0.5) * 2.0 ** 122))[0]
            out += [I("v_fmaak_f32 v%d, v%d, v%d, 0x%x" % (vMask + j, vT1, big, bits)),
                    I("v_min_f32 v%d, 0, v%d" % (vMask + j, vMask + j))]
        return out

    def p_softmax(self, nq, i, ss, js, first, lcount):
        ob = ones_blocks(nq, self.o.ones[nq])
        addb = [x for x in range(nq) if x not in ob]
        out = []
        for j in js:
            out.append(EXP(ss, j))
            if i in addb:
                n = lcount.get(i, 0)
                lcount[i] = n + 1
                l = vL + 2 * addb.index(i) + (n & 1)
                r = vS + 8 * ss + j
                out.append(I("v_mov_b32 v%d, v%d" % (l, r)) if first and n < 2 else I("v_add_f32 v%d, v%d, v%d" % (l, l, r)))
            if j & 1:
                out.append(CVT(ss, j >> 1))
        return out

    def p_epi(self, nq, i, pol, mid):
        o = self.o
        ob = ones_blocks(nq, o.ones[nq])
        addb = [x for x in range(nq) if x not in ob]
        out = []
        A = lambda t: out.append(I(t))
        if i in ob:
            r = vMask + 2 * ob.index(i)
            A("v_accvgpr_read_b32 v%d, a%d" % (r, aL + 4 * ob.index(i)))
        else:
            r = vL + 2 * addb.index(i)
            A("v_add_f32 v%d, v%d, v%d" % (r, r, r + 1))
            for sw in ("v_permlane16_swap_b32", "v_permlane32_swap_b32"):
                A("v_mov_b32 v%d, v%d" % (r + 1, r))
                A("%s v%d, v%d" % (sw, r, r + 1))
                A("v_add_f32 v%d, v%d, v%d" % (r, r, r + 1))
        if SWAP:
            A("v_rcp_f32 v%d, v%d" % (vT1, r))
            A("v_max3_u32 v%d, v%d, v%d, v%d" % (vBad, vBad, r, vT1))
            r = vT1
        else:
            A("v_mov_b32 v%d, v%d" % (vT1, r))
            A("v_rcp_f32 v%d, v%d" % (r, r))
            A("v_max3_u32 v%d, v%d, v%d, v%d" % (vBad, vBad, r, vT1))
        p = (" " + pol) if pol else ""
        b0 = vO + 32 * i
        if SWAP:
            vRi = ((52, (240 if nq < 4 else 208) if mid else 192) if nq <= 4 else (224, 228) if nq == 5 else (vMask + 4, vMask + 4))[i & 1]
            assert nq <= 5 or len(ob) <= 2
            A("ds_write_b32 v%d, v%d" % (vLw, r))
            out[-1].mw = ["rst"]
            out[-1].bias = o.rbias
            A("ds_read_b128 %s, v%d" % (vr(vRi, 4), vLr))
            out[-1].mr = ["rst"]
            x = lambda db, rr: b0 + 4 * db + rr
            for c in (0, 2):
                for h in (0, 4):
                    for db in range(h, h + 4):
                        A("v_pk_mul_f32 %s, %s, %s" % (vr(x(db, c), 2), vr(x(db, c), 2), vr(vRi + c, 2)))
                    A("v_cvt_pk_bf16_f32 v%d, v%d, v%d" % (x(h, c), x(h, c), x(h + 1, c)))
                    A("v_cvt_pk_bf16_f32 v%d, v%d, v%d" % (x(h + 1, c), x(h, c + 1), x(h + 1, c + 1)))
                    A("v_cvt_pk_bf16_f32 v%d, v%d, v%d" % (x(h, c + 1), x(h + 2, c), x(h + 3, c)))
                    A("v_cvt_pk_bf16_f32 v%d, v%d, v%d" % (x(h + 1, c + 1), x(h + 2, c + 1), x(h + 3, c + 1)))
                for e in range(2):
                    rr = c + e
                    sw = 16 * (rr >> 1)
                    A("ds_write2_b64 v%d, %s, %s offset0:%d offset1:%d" % (vW2 if e else vR, vr(x(e, c), 2), vr(x(4 + e, c), 2), 32 * rr + sw, 32 * rr + (16 ^ sw)))
                    out[-1].mw = ["stage%d" % rr]
            for k in range(4):
                for j in range(2):
                    A("ds_read_b64_tr_b16 %s, v%d offset:%d" % (vr(b0 + 8 * k + 2 * j, 2), vW + 2 * (k >> 1) + j, 2048 * (k & 1)))
                    out[-1].mr = ["stage%d" % y for y in range(4)]
            for k in range(4):
                A("buffer_store_dwordx4 %s, v%d, %s, s%d offen offset:%d%s" % (vr(b0 + 8 * k, 4), vOst, sr(sO_, 4), sSts[2 * i + (k & 1)], 128 * (k >> 1), p))
                out[-1].bias = o.stbias + 64 * (4 * (nq - 1 - i) + 3 - k)
            return out
        for d4 in range(4):
            for db in (d4, d4 + 4):
                b = b0 + 4 * db
                for j in range(2):
                    A("v_pk_mul_f32 %s, %s, %s op_sel_hi:[1,0]" % (vr(b + 2 * j, 2), vr(b + 2 * j, 2), vr(r, 2)))
                    out[-1].reads.discard(("v", r + 1))
                for j in range(2):
                    A("v_cvt_pk_bf16_f32 v%d, v%d, v%d" % (b + j, b + 2 * j, b + 2 * j + 1))
            A("ds_write2st64_b64 v%d, %s, %s offset1:4" % (vW + d4, vr(b0 + 4 * d4, 2), vr(b0 + 4 * d4 + 16, 2)))
            out[-1].mw = ["stage%d" % d4]
        for k in range(4):
            A("ds_read_b128 %s, v%d offset:%d" % (vr(b0 + 8 * k, 4), vR, 1024 * k))
            out[-1].mr = ["stage%d" % x for x in range(4)]
        for k in range(4):
            A("buffer_store_dwordx4 %s, v%d, %s, s%d offen offset:%d%s" % (vr(b0 + 8 * k, 4), vOst, sr(sO_, 4), sSts[2 * i + (k & 1)], 128 * (k >> 1), p))
            out[-1].bias = o.stbias + 64 * (4 * (nq - 1 - i) + 3 - k)
        return out

    def p_last(self, nq, par, issue):
        ob = ones_blocks(nq, self.o.ones[nq])
        sset = lambda i: (par * nq + i) & 1
        out = [I("s_mov_b32 s%d, s%d" % (sO_ + 2, sC + 1))]
        for i in range(nq):
            for e in range(2):
                out.append(I("s_add_u32 s%d, s%d, %d" % (sSts[2 * i + e], sC, (64 * i + 32 * e) * 4096)))
        out += issue
        lc = {}
        for v in range(nq):
            if v < nq - 1:
                out += qk(nq, v + 1, par, sset(v + 1), False)
            out += self.p_softmax(nq, v, sset(v), (5, 6, 7), False, lc)
            if v in ob:
                out.append(onesm(ob.index(v), sset(v), False))
            out += pv(v, par, sset(v), False)
            if v < nq - 1:
                out += self.p_softmax(nq, v + 1, sset(v + 1), (0, 1, 2, 3, 4), False, lc)
            out += self.p_epi(nq, v, self.o.ntm if issue else self.o.ntl if v >= nq - self.o.nlast and nq <= 4 else self.o.nto, bool(issue))
        return out

    def p_sync(self, vm, wait_ds, start):
        w = I("s_waitcnt vmcnt(0)")
        w.vm = vm
        w.vmlag = self.o.vmlag
        w.start = start
        pub = I("ds_add_u32 v%d, v%d" % (vPub, vOne))
        pub.after = [w]
        pub.wait_ds = wait_ds
        pub.mw = ["flag"]
        pub.bias = 300
        thr = I("s_add_u32 s%d, s%d, 1" % (sThr, sThr))
        rd = I("ds_read_b32 v%d, v%d" % (vFlag, vChk))
        rd.mr = ["flag"]
        rd.lag = [(pub, self.o.lag)]
        cmp_ = I("v_cmp_gt_u32 vcc, s%d, v%d" % (sThr, vFlag))
        br = self.spin()
        br.reads |= {("s", sThr), ("v", vFlag)}
        br.writes |= {("v", vFlag), ("s", "vcc")}
        return [w, pub, thr, rd, cmp_, br]

    def p_prescale(self, nq, i, tmp=None):
        out = []
        for ks in range(4):
            f, dst = qreg(nq, i, ks)
            d = vO + 32 * (i if tmp is None else tmp) + 8 * ks
            for h in range(2):
                a = aC + 2 - 2 * h
                out += [mf(vr(d + 4 * h, 4), ar(a, 4), qop(nq, i, ks), "0"),
                        mf(vr(d + 4 * h, 4), ar(a + 4, 4), qop(nq, i, ks), vr(d + 4 * h, 4))]
            for x in out[-4:]:
                x.free = True
            for j in range(4):
                if f == "v":
                    out.append(I("v_cvt_pk_bf16_f32 v%d, v%d, v%d" % (dst + j, d + 2 * j, d + 2 * j + 1)))
                else:
                    out += [I("v_cvt_pk_bf16_f32 v%d, v%d, v%d" % (d + 2 * j, d + 2 * j, d + 2 * j + 1)),
                            I("v_accvgpr_write_b32 a%d, v%d" % (dst + j, d + 2 * j))]
        return out

    def tuned(self, fn, *key):
        import lsched
        c = self.o.tune.get(repr(key), {})
        saved = []
        for k, v in c.items():
            obj = lsched.P if hasattr(lsched.P, k) else self.o
            saved.append((obj, k, getattr(obj, k)))
            setattr(obj, k, v)
        out = fn(*key)
        for obj, k, v in saved:
            setattr(obj, k, v)
        return out

    def t_final(self, nq, par):
        out, t = schedule(self.p_last(nq, par, []), name="final nq=%d par=%d" % (nq, par))
        out.append(I("s_waitcnt vmcnt(%d)" % sum(1 for x in out if x.kind == "vmem")))
        return out

    def t_mid(self, nq1, par, nq, short):
        assert nq <= LEAD and nq1 <= 4
        o = self.o
        ob = ones_blocks(nq, o.ones[nq])
        items = [self.issue_item() for _ in range(nq + 2)]
        for it in items:
            for x in it[:4]:
                x.bias = o.dmabias
        landed = lambda k: items[k - LEAD - 1][:4] if k > LEAD else 4 * (LEAD - k)
        s1 = self.p_sync(landed(nq), [], o.s1at)
        prog = []
        for i in range(nq):
            prog.append(I("v_add_u32 v%d, v%d, v%d" % (vMask + 1 + 2 * i, vKa, vQd)))
            prog += ring_adv()
        last = self.p_last(nq1, par, items[0])
        js, qreads = [], []
        prev = None
        for i in range(nq):
            w = I("s_waitcnt vmcnt(0)")
            w.vm = landed(i)
            w.start = o.qat + i * o.qstep
            w.after = [prev] if prev else []
            prev = w
            rd = [I("ds_read_b128 %s, v%d offset:%d" % (qop(nq, i, ks), vMask + 1 + 2 * i, 64 * ks)) for ks in range(4)]
            for x in rd:
                x.after = [w]
            qreads.append(rd)
            js += [w] + rd
        s1[0].after = [prev]
        js += s1
        reads = kvreads(0)
        js += reads + ring_adv()
        for x in reads:
            x.after = [s1[-1]]
        for it in items[1:3]:
            it[0].after = [s1[-1]]
            js += it
        for j, it in enumerate(items[3:]):
            it[0].wait_ds = qreads[j]
            js += it
        s2 = self.p_sync(landed(nq + 1), [], o.s2at)
        js += s2
        kv1 = kvreads(1)
        for x in kv1:
            x.after = [s2[-1]]
        js += self.set_compute(sJ2) + [I("s_mov_b32 s%d, 0" % sNext)] + self.masks(short)
        if short:
            js += [I("v_mov_b32 v%d, 0" % (vP + 4 * ss + j)) for ss in range(2) for j in (2, 3)]
        lc = {}
        for i in range(nq + 1):
            if i < nq:
                js += self.p_prescale(nq, i, 3 if nq1 < 4 and i < o.tmpn else None) + qk(nq, i, 0, i & 1, True, short)
            else:
                js += kv1 + ring_adv() + qk(nq, 0, 1, nq & 1, False)
            if i:
                js += pv(i - 1, 0, (i - 1) & 1, True)
                if i - 1 in ob:
                    js.append(onesm(ob.index(i - 1), (i - 1) & 1, True))
            js += self.p_softmax(nq, i % nq, i & 1, range(5 if i == nq else 4 if short else 8), i < nq, lc)
        js += [I("s_sub_u32 s%d, s%d, 3" % (sLoop, sC + 3))]
        s3 = self.p_sync(landed(nq + 2), [], 0)
        late = [x for x in js if x.kind == "mfma" and not getattr(x, "free", False)]
        s3[0].after = [late[-40]]
        s3[3].after = [late[-20]]
        s3[5].wait_ds = kv1
        s3[5].lag = [(items[-3][3], o.vmlag - 200)]
        js += s3
        out, t = schedule(prog + last + js, name="mid %d(par %d)->%d%s" % (nq1, par, nq, "s" if short else ""))
        return out

    def late_setup(self):
        o = self.o
        out = []
        A = lambda s: out.append(I(s))
        late = self.addr_setup()[1]
        x, y, z = vT4 + 5, vT4 + 6, vT4 + 7
        A("v_bfe_u32 v%d, v0, 2, 2" % x)
        A("v_cmp_eq_u32 vcc, v%d, v%d" % (x, vT2))
        A("v_and_b32 v%d, 1, v0" % x)
        A("v_lshlrev_b32 v%d, 4, v%d" % (x, x))
        A("v_cndmask_b32 v%d, 0, 1, vcc" % y)
        A("v_lshlrev_b32 v%d, v%d, v%d" % (y, x, y))
        A("v_bfe_u32 v%d, v0, 1, 1" % x)
        A("v_mul_u32_u24 v%d, v%d, v%d" % (z, x, y))
        A("v_sub_u32 v%d, v%d, v%d" % (y, y, z))
        for b, c in ((aC + 2, C_HI), (aC + 6, C_LO)):
            for j, r in enumerate((y, z)):
                A("v_mul_u32_u24 v%d, 0x%x, v%d" % (x, c, r))
                A("v_accvgpr_write_b32 a%d, v%d" % (b + j, x))
        for j in (0, 1, 4, 5, 8, 9):
            A("v_accvgpr_write_b32 a%d, 0" % (aC + j))
        out += late
        A("v_mov_b32 v%d, 0" % vBad)
        A("ds_write_b32 v%d, v%d" % (vPub, vBad))
        A("v_mov_b32 v%d, 0x3f803f80" % (vT4 + 8))
        for j in range(4):
            A("v_accvgpr_write_b32 a%d, v%d" % (aOnes + j, vT4 + 8))
        A("s_add_u32 s%d, s%d, %d" % (sMlim, sWb, R * SLOT))
        A("s_mov_b32 s%d, 0" % sThr)
        A("s_mov_b32 s%d, %d" % (sPos, SLOT))
        A("s_mov_b32 s%d, %d" % (sNeg, -(R - 1) * SLOT))
        A("s_mov_b32 s%d, 0x%x" % (sCc, SCALE_BITS))
        A("s_mov_b32 s%d, 0x20000" % (sO_ + 3))
        A("s_mov_b32 s%d, 0" % (sO_ + 2))
        A("s_mov_b32 s%d, %d" % (sStride, -32 * 4096))
        d2a, d2b = self.decode_job(sTd + 2, sTd + 3, sJ2)
        out += d2a + d2b + self.queue_setup() + self.set_compute(sJ1)
        if o.touch:
            A("s_mov_b32 s%d, %d" % (sO_ + 2, CU[-1] * 4096))
            A("v_lshlrev_b32 v%d, 12, v0" % (vT4 + 5))
            A("buffer_load_dword v%d, v%d, %s, s%d offen" % (63, vT4 + 5, sr(sO_, 4), sJ1))
            A("buffer_load_dword v%d, v%d, %s, s%d offen" % (63, vT4 + 5, sr(sO_, 4), sJ2))
        A("s_bfe_u32 s%d, s%d, 0x4000d" % (sNext, sTd + 2))
        return out

    def srd_kv(self):
        return [I("s_mov_b64 %s, %s" % (sr(sA, 2), sr(sKp, 2))), I("s_mov_b64 %s, %s" % (sr(sB, 2), sr(sVp, 2))),
                I("s_add_u32 s%d, s%d, %d" % (sB + 2, sJ1 + 2, V0OFF))]

    def srd_q(self):
        return [I("s_mov_b64 %s, %s" % (sr(sA, 2), sr(sQp, 2))), I("s_mov_b64 %s, %s" % (sr(sB, 2), sr(sQp2, 2))),
                I("s_sub_u32 s%d, s%d, %d" % (sB + 2, sJ1 + 2, 32 * 4096 - V0OFF))]

    def head_dmas(self, k, kind):
        d = dmas(self.o, sQoff if kind == "q" else sSoff)
        so = sQoff if kind == "q" else sSoff
        return d + [I("s_add_u32 m0, s%d, %d" % (sWb, ((k + 1) % R) * SLOT)),
                    I("s_add_u32 s%d, s%d, %d" % (so, so, 64 * 4096 if kind == "q" else -32 * 4096))]

    def head(self, nq, short):
        o = self.o
        ob = ones_blocks(nq, o.ones[nq])
        pos = min(o.kv1pos, nq - 1)
        kind = ["q", "kv"] + ["q"] * pos + ["kv"] + ["q"] * (nq - 1 - pos) + ["kv"] * 5
        groups = {}
        state = [kind[2]]
        dirty = [False, False]

        def issue(k):
            out = []
            if kind[k] != state[0]:
                out += self.srd_q() if kind[k] == "q" else self.srd_kv()
                state[0] = kind[k]
            d = self.head_dmas(k, kind[k])
            groups[k] = d[:4]
            for x in d[:4]:
                x.bias = 3000
            return out + d

        prog = self.late_setup() if o.lateinhead else []
        reads = {-1: [x for x in prog if x.kind == "ds"]}
        prog += self.masks(short)
        if short:
            dirty = [True, True]
        t = o.a0
        prev = None
        lastbar = None
        lc = {}
        visit = [0]
        pend = [None]

        def flush_pv():
            if pend[0] is None:
                return []
            i, tile, ss = pend[0]
            pend[0] = None
            out = pv(i, tile, ss, tile == 0)
            if i in ob:
                out.append(onesm(ob.index(i), ss, tile == 0))
            return out

        def do_visit(i, tile):
            ss = visit[0] & 1
            visit[0] += 1
            out = qk(nq, i, tile, ss, tile == 0, short and tile == 0) + flush_pv()
            if short and tile == 0 and dirty[ss]:
                out += [I("v_mov_b32 v%d, 0" % (vP + 4 * ss + j)) for j in (2, 3)]
            dirty[ss] = tile != 0
            out += self.p_softmax(nq, i, ss, range(4 if short and tile == 0 else 8), tile == 0, lc)
            pend[0] = (i, tile, ss)
            return out

        kpos, qpos = 0, 0
        qi = nkv = 0
        nxt, hl = 3, o.hl[nq]
        bars = []
        for k in range(nq + 4):
            todo = list(range(nxt, nq + 7 if k == nq + 3 else max(nxt, k + hl + 1)))
            nxt += len(todo)
            bar = kind[k] == "kv" or any(j >= R and kind[j - R] == "kv" and not any(b > j - R for b in bars) for j in todo)
            w = I("s_barrier" if bar else "s_waitcnt vmcnt(0)")
            w.vm = 4 * (2 - k) + (2 if o.touch else 0) if k < 3 else groups[k]
            w.start = t
            w.after = [prev] if prev else []
            if bar:
                w.wait_ds = [x for jj in reads for x in reads[jj]]
                bars.append(k)
            prog.append(w)
            prev = w
            t += o.dq if (k + 1 < len(kind) and kind[k + 1] == "q") else o.dkv
            for j in todo:
                it = issue(j)
                first = [x for x in it if x.kind == "dma"][0]
                first.after = [w]
                if j >= R and kind[j - R] == "q":
                    first.wait_ds = reads[j - R]
                prog += it
            if k == nq + 3:
                break
            if kind[k] == "q":
                if k % R != qpos:
                    prog.append(I("v_add_u32 v%d, %d, v%d" % (vqr, (k % R - qpos) * SLOT, vqr)))
                    qpos = k % R
                rd = [I("ds_read_b128 %s, v%d offset:%d" % (qop(nq, qi, ks), vqr, 64 * ks)) for ks in range(4)]
                prog += rd + self.p_prescale(nq, qi)
                for tile in range(min(nkv, 2)):
                    prog += do_visit(qi, tile)
                qi += 1
            else:
                prog += [I("v_add_u32 v%d, %d, v%d" % (r, (k % R - kpos) * SLOT, r)) for r in (vKa, vVa)]
                kpos = k % R
                rd = kvreads(nkv & 1)
                prog += rd
                if nkv == 2:
                    prog += qk(nq, 0, 0, 0, False) + flush_pv() + self.p_softmax(nq, 0, 0, range(5), False, lc)
                else:
                    for i in range(qi):
                        prog += do_visit(i, nkv)
                nkv += 1
            for x in rd:
                x.after = [w]
            reads[k] = rd
        k = nq + 3
        prog += [I("v_add_u32 v%d, %d, v%d" % (r, (k % R - kpos) * SLOT, r)) for r in (vKa, vVa)]
        prog += [I("s_mov_b32 s%d, %d" % (sRc, R - 1 - k % R)), I("s_sub_u32 s%d, s%d, 8" % (sCnt, sJ1 + 4)),
                 I("s_sub_u32 s%d, s%d, 5" % (sLoop, sC + 3))]
        out, t = schedule(prog, name="head nq=%d%s" % (nq, "s" if short else ""))
        if o.stamp == 4:
            res, k = [], 0
            for x in out:
                res.append(x)
                if ("vmcnt" in x.text or (x.kind == "mfma" and k == 100)) and k < 8:
                    res += [I("s_memrealtime s[96:97]"), I("s_waitcnt lgkmcnt(0)"), I("v_writelane_b32 v63, s96, %d" % (12 + k))]
                    k += 1
            out = res
        return out

    def addr_setup(self):
        t1, t2, t3, ln = vT1, vT2, vT3, vT4
        o = []
        A = lambda s: o.append(I(s))
        A("v_lshrrev_b32 v%d, 6, v0" % t1)
        A("v_bfe_u32 v%d, v0, 4, 2" % t2)
        A("v_readfirstlane_b32 s%d, v%d" % (sW, t1))
        A("v_and_b32 v%d, 15, v0" % t3)
        A("v_lshlrev_b32 v%d, 13, v%d" % (vo0, t1))
        A("v_lshl_add_u32 v%d, v%d, 15, v%d" % (vo0, t2, vo0))
        A("v_lshl_add_u32 v%d, v%d, 4, v%d" % (vo0, t3, vo0))
        A("v_add_u32 v%d, %d, v%d" % (vo1, 4096 - K1OFF, vo0))
        early, o = o, []
        A = lambda s: o.append(I(s))
        A("v_and_b32 v%d, 63, v0" % ln)
        A("v_and_b32 v%d, 1, v%d" % (vqr, ln))
        A("v_mul_u32_u24 v%d, %d, v%d" % (vqr, K1OFF, vqr))
        A("v_bfe_u32 v%d, v%d, 3, 1" % (vT4 + 1, ln))
        A("v_mad_u32_u24 v%d, v%d, s%d, v%d" % (vqr, vT4 + 1, sT3, vqr))
        A("v_bfe_u32 v%d, v%d, 1, 2" % (vT4 + 1, ln))
        A("v_lshl_add_u32 v%d, v%d, 8, v%d" % (vqr, vT4 + 1, vqr))
        A("v_lshl_add_u32 v%d, v%d, 4, v%d" % (vqr, t2, vqr))
        A("v_mul_u32_u24 v%d, %d, v%d" % (vT4 + 1, WREG, t1))
        A("v_add_u32 v%d, v%d, v%d" % (vqr, vqr, vT4 + 1))
        A("v_lshrrev_b32 v%d, 3, v%d" % (vR, ln))
        A("v_bfe_u32 v%d, v%d, 3, 1" % (vOst, ln))
        A("v_lshl_add_u32 v%d, v%d, 1, v%d" % (vOst, t1, vOst))
        A("v_lshl_add_u32 v%d, v%d, 3, v%d" % (vOst, t2, vOst))
        A("v_lshlrev_b32 v%d, 12, v%d" % (vOst, vOst))
        if SWAP:
            y, base = vT4 + 1, vT4 + 2
            A("v_and_b32 v%d, 3, v%d" % (y, ln))
            A("v_lshl_add_u32 v%d, v%d, 5, v%d" % (vOst, y, vOst))
            A("v_bfe_u32 v%d, v%d, 2, 1" % (y, ln))
            A("v_lshl_add_u32 v%d, v%d, 4, v%d" % (vOst, y, vOst))
            A("v_lshlrev_b32 v%d, 12, v%d" % (base, t1))
            A("v_add_u32 v%d, %d, v%d" % (base, STAGE, base))
            A("v_lshl_add_u32 v%d, v%d, 10, v%d" % (vR, t2, base))
            A("v_lshl_add_u32 v%d, v%d, 3, v%d" % (vR, t3, vR))
            A("v_xor_b32 v%d, 32, v%d" % (vT4 + 9, vR))
            A("v_bfe_u32 v%d, v%d, 1, 1" % (y, ln))
            A("v_lshl_add_u32 v%d, v%d, 9, v%d" % (vW, t2, base))
            A("v_mul_u32_u24 v%d, 0x120, v%d" % (y, y))
            A("v_add_u32 v%d, v%d, v%d" % (vW, vW, y))
            A("v_and_b32 v%d, 1, v%d" % (y, ln))
            A("v_lshl_add_u32 v%d, v%d, 6, v%d" % (vW, y, vW))
            A("v_bfe_u32 v%d, v%d, 2, 2" % (y, ln))
            A("v_lshl_add_u32 v%d, v%d, 3, v%d" % (vW, y, vW))
            A("v_and_b32 v%d, 1, v%d" % (y, t2))
            A("v_lshl_add_u32 v%d, v%d, 7, v%d" % (vW, y, vW))
            A("v_xor_b32 v%d, 32, v%d" % (vW + 1, vW))
            A("v_xor_b32 v%d, 0x80, v%d" % (vW + 2, vW))
            A("v_xor_b32 v%d, 0xa0, v%d" % (vW + 3, vW))
            A("v_lshlrev_b32 v%d, 6, v%d" % (base, t1))
            A("v_add_u32 v%d, %d, v%d" % (base, RSTAGE, base))
            A("v_lshl_add_u32 v%d, v%d, 2, v%d" % (vLw, t3, base))
            A("v_lshl_add_u32 v%d, v%d, 4, v%d" % (vLr, t2, base))
        else:
            A("v_and_b32 v%d, 7, v%d" % (vW, ln))
            A("v_lshl_add_u32 v%d, v%d, 4, v%d" % (vOst, vW, vOst))
            A("v_xor_b32 v%d, v%d, v%d" % (vW + 1, vW, vR))
            A("v_lshlrev_b32 v%d, 4, v%d" % (vW + 1, vW + 1))
            A("v_lshl_add_u32 v%d, v%d, 7, v%d" % (vR, vR, vW + 1))
            A("v_lshlrev_b32 v%d, 12, v%d" % (vW + 3, t1))
            A("v_add_u32 v%d, %d, v%d" % (vW + 3, STAGE, vW + 3))
            A("v_add_u32 v%d, v%d, v%d" % (vR, vR, vW + 3))
            A("v_lshrrev_b32 v%d, 1, v%d" % (vW + 1, t2))
            A("v_xor_b32 v%d, v%d, v%d" % (vW, vW, vW + 1))
            A("v_lshlrev_b32 v%d, 4, v%d" % (vW, vW))
            A("v_and_b32 v%d, 1, v%d" % (vW + 1, t2))
            A("v_lshl_add_u32 v%d, v%d, 3, v%d" % (vW, vW + 1, vW))
            A("v_lshl_add_u32 v%d, v%d, 7, v%d" % (vW, t3, vW))
            A("v_add_u32 v%d, v%d, v%d" % (vW, vW, vW + 3))
            A("v_xor_b32 v%d, 32, v%d" % (vW + 1, vW))
            A("v_xor_b32 v%d, 64, v%d" % (vW + 2, vW))
            A("v_xor_b32 v%d, 0x60, v%d" % (vW + 3, vW))
        A("v_bfe_u32 v%d, v%d, 1, 2" % (vKa, ln))
        A("v_mul_u32_u24 v%d, %d, v%d" % (vKa, WREG, vKa))
        A("v_and_b32 v%d, 1, v%d" % (vT4 + 1, ln))
        A("v_mul_u32_u24 v%d, %d, v%d" % (vT4 + 2, K1OFF, vT4 + 1))
        A("v_add_u32 v%d, v%d, v%d" % (vKa, vKa, vT4 + 2))
        A("v_bfe_u32 v%d, v%d, 3, 1" % (vT4 + 2, ln))
        A("v_lshl_add_u32 v%d, v%d, 8, v%d" % (vKa, vT4 + 2, vKa))
        A("v_lshl_add_u32 v%d, v%d, 4, v%d" % (vKa, t2, vKa))
        A("v_sub_u32 v%d, v%d, v%d" % (vQd, vqr, vKa))
        A("v_bfe_u32 v%d, v%d, 3, 2" % (vVa, ln))
        A("v_mul_u32_u24 v%d, %d, v%d" % (vVa, WREG, vVa))
        A("v_bfe_u32 v%d, v%d, 2, 1" % (vT4 + 2, ln))
        A("v_mul_u32_u24 v%d, %d, v%d" % (vT4 + 2, V1OFF - V0OFF, vT4 + 2))
        A("v_add_u32 v%d, v%d, v%d" % (vVa, vVa, vT4 + 2))
        A("v_lshrrev_b32 v%d, 5, v%d" % (vT4 + 2, ln))
        A("v_lshl_add_u32 v%d, v%d, 8, v%d" % (vVa, vT4 + 2, vVa))
        A("v_and_b32 v%d, 3, v%d" % (vT4 + 2, ln))
        A("v_lshl_add_u32 v%d, v%d, 3, v%d" % (vVa, vT4 + 2, vVa))
        A("v_add_u32 v%d, %d, v%d" % (vVa, V0OFF, vVa))
        A("v_mul_u32_u24 v%d, 260, v%d" % (vChk, vT4 + 2))
        A("v_add_u32 v%d, %d, v%d" % (vChk, FLAG, vChk))
        A("v_lshlrev_b32 v%d, 2, v0" % vPub)
        A("v_add_u32 v%d, %d, v%d" % (vPub, FLAG, vPub))
        A("v_mov_b32 v%d, 1" % vOne)
        if SWAP:
            A("v_mov_b32 v%d, v%d" % (vW2, vT4 + 9))
        return early, [I("s_mov_b32 s%d, %d" % (sT3, V0OFF))] + o

    def decode_job(self, d0, d1, dst):
        o = []
        A = lambda s: o.append(I(s))
        A("s_bfe_u32 s%d, s%d, 0x10011" % (sT2, d0))
        A("s_lshl_b32 s%d, s%d, 8" % (sT2, sT2))
        A("s_add_u32 s%d, s%d, s%d" % (sT2, sT2, sTmp))
        A("s_and_b32 s%d, s%d, 0x1fff" % (dst, d0))
        A("s_lshl_b32 s%d, s%d, 12" % (dst, dst))
        A("s_add_u32 s%d, s%d, s%d" % (dst, dst, sT2))
        A("s_lshr_b32 s%d, s%d, 13" % (dst + 2, d1))
        A("s_lshl_b32 s%d, s%d, 12" % (dst + 2, dst + 2))
        p2 = []
        B = lambda s: p2.append(I(s))
        B("s_and_b32 s%d, s%d, 0x1fff" % (dst + 1, d1))
        B("s_lshl_b32 s%d, s%d, 12" % (dst + 1, dst + 1))
        B("s_add_u32 s%d, s%d, s%d" % (dst + 1, dst + 1, sT2))
        B("s_bfe_u32 s%d, s%d, 0x3000d" % (dst + 3, d0))
        B("s_lshr_b32 s%d, s%d, 20" % (dst + 4, d0))
        return o, p2

    def set_compute(self, j):
        o = []
        A = lambda s: o.append(I(s))
        A("s_mov_b32 s%d, s%d" % (sC, j))
        A("s_mov_b32 s%d, s%d" % (sC + 1, j + 2))
        A("s_mov_b32 s%d, s%d" % (sC + 3, j + 4))
        A("s_lshr_b32 s%d, s%d, 12" % (sT2, j + 2))
        A("s_lshr_b32 s%d, s%d, 12" % (sT3, j + 1))
        A("s_sub_u32 s%d, s%d, s%d" % (sT2, sT2, sT3))
        A("s_lshl_b32 s%d, s%d, 5" % (sT3, j + 4))
        A("s_sub_u32 s%d, s%d, s%d" % (sT2, sT2, sT3))
        A("s_add_u32 s%d, s%d, 32" % (sC + 4, sT2))
        return o

    def queue_setup(self):
        o = []
        A = lambda s: o.append(I(s))
        j = sJ2
        A("s_mov_b64 %s, %s" % (sr(sN, 2), sr(sQp, 2)))
        A("s_mov_b64 %s, %s" % (sr(sN + 2, 2), sr(sQp2, 2)))
        A("s_mov_b32 s%d, s%d" % (sN + 4, j))
        A("s_mov_b32 s%d, %d" % (sN + 5, 64 * 4096))
        A("s_mov_b64 %s, %s" % (sr(sM, 2), sr(sKp, 2)))
        A("s_mov_b64 %s, %s" % (sr(sM + 2, 2), sr(sVp, 2)))
        A("s_sub_u32 s%d, s%d, 1" % (sM + 8, j + 4))
        A("s_lshl_b32 s%d, s%d, 17" % (sM + 4, sM + 8))
        A("s_add_u32 s%d, s%d, s%d" % (sM + 4, sM + 4, j + 1))
        A("s_mov_b32 s%d, %d" % (sM + 5, -32 * 4096))
        A("s_mov_b32 s%d, s%d" % (sN + 6, j + 2))
        A("s_sub_u32 s%d, s%d, %d" % (sN + 7, j + 2, 32 * 4096 - V0OFF))
        A("s_sub_u32 s%d, s%d, 1" % (sN + 8, j + 3))
        A("s_mov_b32 s%d, s%d" % (sM + 6, j + 2))
        A("s_add_u32 s%d, s%d, %d" % (sM + 7, j + 2, V0OFF))
        A("s_cmp_eq_u32 s%d, 0" % (j + 3))
        A("s_cmov_b64 %s, 0" % sr(sN + 6, 2))
        A("s_cmov_b32 s%d, 0x7fffffff" % (sN + 8))
        return o

    def slow(self):
        o = []
        A = lambda s: o.append(I(s))
        Qf, Kf, Vf, Oa, S, P = 192, 128, 160, 64, vS, vP
        m, l, al, t, u = vL, vL + 1, vL + 2, vL + 3, vL + 4
        vSrc, vG4, vSt = vL + 5, vL + 6, vL + 7
        sJob, sBlk, sTile, sRow, sLeft, sBase, sSt = range(sN, sN + 7)
        sj = sM
        A("L_slow:")
        A("s_waitcnt vmcnt(0)")
        A("v_mbcnt_lo_u32_b32 v0, -1, 0")
        A("v_mbcnt_hi_u32_b32 v0, -1, v0")
        A("v_lshrrev_b32 v%d, 4, v0" % vG4)
        A("v_and_b32 v%d, 15, v0" % t)
        A("v_lshlrev_b32 v%d, 15, v%d" % (vSrc, vG4))
        A("v_lshl_add_u32 v%d, v%d, 4, v%d" % (vSrc, t, vSrc))
        A("v_lshlrev_b32 v%d, 2, v%d" % (vG4, vG4))
        A("s_lshl_b32 s%d, s%d, 6" % (sT2, sW))
        A("v_add_u32 v0, s%d, v0" % sT2)
        o += sum(self.addr_setup(), [])
        A("v_and_b32 v%d, 1, v%d" % (vOst, vT3))
        A("v_lshl_add_u32 v%d, v%d, 1, v%d" % (vOst, vT1, vOst))
        A("v_bfe_u32 v%d, v%d, 1, 3" % (vSt, vT3))
        A("v_lshl_add_u32 v%d, v%d, 3, v%d" % (vOst, vSt, vOst))
        A("v_lshlrev_b32 v%d, 12, v%d" % (vOst, vOst))
        A("v_lshl_add_u32 v%d, v%d, 3, v%d" % (vSt, vT2, vOst))
        A("v_lshl_add_u32 v%d, v%d, 4, v%d" % (vOst, vT2, vOst))
        A("s_mul_i32 s%d, s%d, %d" % (sBase, sW, SLOT))
        A("v_add_u32 v%d, s%d, v%d" % (vKa, sBase, vKa))
        A("v_add_u32 v%d, s%d, v%d" % (vVa, sBase, vVa))
        A("s_mov_b32 s%d, 0" % sJob)
        for j in range(5):
            A("s_mov_b32 s%d, s%d" % (sj + j, sJ1 + j))
        A("L_slow_job:")
        A("s_mov_b32 s%d, 0" % sBlk)
        A("L_slow_blk:")
        A("s_mov_b64 %s, %s" % (sr(sA, 2), sr(sQp, 2)))
        A("s_mov_b32 s%d, s%d" % (sA + 2, sj + 2))
        A("s_lshl_b32 s%d, s%d, 18" % (sSt, sBlk))
        A("s_add_u32 s%d, s%d, s%d" % (sSt, sSt, sj))
        for ks in range(4):
            A("buffer_load_dwordx4 %s, v%d, %s, s%d offen offset:%d" % (vr(Qf + 4 * ks, 4), vOst, sr(sA, 4), sSt, 64 * ks))
        for j in range(32):
            A("v_mov_b32 v%d, 0" % (Oa + j))
        A("v_mov_b32 v%d, 0xff800000" % m)
        A("v_mov_b32 v%d, 0" % l)
        A("s_mov_b64 %s, %s" % (sr(sA, 2), sr(sKp, 2)))
        A("s_mov_b64 %s, %s" % (sr(sB, 2), sr(sVp, 2)))
        A("s_add_u32 s%d, s%d, %d" % (sB + 2, sj + 2, V0OFF))
        A("s_mov_b32 s%d, s%d" % (sRow, sj + 1))
        A("s_lshr_b32 s%d, s%d, 12" % (sLeft, sj + 2))
        A("s_lshr_b32 s%d, s%d, 12" % (sT2, sj + 1))
        A("s_sub_u32 s%d, s%d, s%d" % (sLeft, sLeft, sT2))
        A("s_mov_b32 s%d, s%d" % (sTile, sj + 4))
        A("L_slow_tile:")
        for sg in range(8):
            A("s_add_u32 s%d, s%d, %d" % (sT2, sRow, sg * 4096))
            A("s_add_u32 m0, s%d, %d" % (sBase, (sg >> 1) * WREG + (sg & 1) * K1OFF))
            A("buffer_load_dwordx4 v%d, %s, s%d offen lds" % (vSrc, sr(sA, 4), sT2))
            A("buffer_load_dwordx4 v%d, %s, s%d offen offset:%d lds" % (vSrc, sr(sB, 4), sT2, V0OFF))
        A("s_waitcnt vmcnt(0)")
        for b in range(2):
            for ks in range(4):
                A("ds_read_b128 %s, v%d offset:%d" % (vr(Kf + 16 * b + 4 * ks, 4), vKa, b * 512 + ks * 64))
        A("s_waitcnt lgkmcnt(0)")
        for db in range(8):
            for jj in range(2):
                A("ds_read_b64_tr_b16 %s, v%d offset:%d" % (vr(Vf + 4 * db + 2 * jj, 2), vVa, jj * 512 + 32 * db))
        for b in range(2):
            for ks in range(4):
                d = vr(S + 4 * b, 4)
                o.append(mf(d, vr(Kf + 16 * b + 4 * ks, 4), vr(Qf + 4 * ks, 4), d if ks else "0"))
        A("v_mov_b32 v%d, 0xff800000" % u)
        for j in range(8):
            A("v_mul_f32 v%d, s%d, v%d" % (S + j, sCc, S + j))
        for j in range(8):
            A("v_add_u32 v%d, %d, v%d" % (t, (j & 3) + 16 * (j >> 2), vG4))
            A("v_cmp_gt_u32 vcc, s%d, v%d" % (sLeft, t))
            A("v_cndmask_b32 v%d, v%d, v%d, vcc" % (S + j, u, S + j))
        A("v_max3_f32 v%d, v%d, v%d, v%d" % (t, S, S + 1, S + 2))
        A("v_max3_f32 v%d, v%d, v%d, v%d" % (t, t, S + 3, S + 4))
        A("v_max3_f32 v%d, v%d, v%d, v%d" % (t, t, S + 5, S + 6))
        A("v_max3_f32 v%d, v%d, v%d, v%d" % (t, t, S + 7, m))
        for sw in ("v_permlane16_swap_b32", "v_permlane32_swap_b32"):
            A("v_mov_b32 v%d, v%d" % (u, t))
            A("%s v%d, v%d" % (sw, t, u))
            A("v_max_f32 v%d, v%d, v%d" % (t, t, u))
        A("v_sub_f32 v%d, v%d, v%d" % (al, m, t))
        A("v_exp_f32 v%d, v%d" % (al, al))
        A("v_mov_b32 v%d, v%d" % (m, t))
        for j in range(8):
            A("v_sub_f32 v%d, v%d, v%d" % (S + j, S + j, m))
        for j in range(8):
            A("v_exp_f32 v%d, v%d" % (S + j, S + j))
        A("v_mul_f32 v%d, v%d, v%d" % (l, l, al))
        for j in range(8):
            A("v_add_f32 v%d, v%d, v%d" % (l, l, S + j))
        for j in range(4):
            A("v_cvt_pk_bf16_f32 v%d, v%d, v%d" % (P + j, S + 2 * j, S + 2 * j + 1))
        for j in range(32):
            A("v_mul_f32 v%d, v%d, v%d" % (Oa + j, Oa + j, al))
        A("s_waitcnt lgkmcnt(0)")
        for db in range(8):
            d = vr(Oa + 4 * db, 4)
            o.append(mf(d, vr(Vf + 4 * db, 4), vr(P, 4), d))
        A("s_add_u32 s%d, s%d, %d" % (sRow, sRow, 32 * 4096))
        A("s_sub_u32 s%d, s%d, 32" % (sLeft, sLeft))
        A("s_nop 7")
        A("s_sub_u32 s%d, s%d, 1" % (sTile, sTile))
        A("s_cmp_lg_u32 s%d, 0" % sTile)
        A("s_cbranch_scc1 L_slow_tile")
        for sw in ("v_permlane16_swap_b32", "v_permlane32_swap_b32"):
            A("v_mov_b32 v%d, v%d" % (u, l))
            A("%s v%d, v%d" % (sw, l, u))
            A("v_add_f32 v%d, v%d, v%d" % (l, l, u))
        A("v_rcp_f32 v%d, v%d" % (l, l))
        A("s_mov_b32 s%d, s%d" % (sO_ + 2, sj + 2))
        for j in range(32):
            A("v_mul_f32 v%d, v%d, v%d" % (Oa + j, Oa + j, l))
        for db in range(8):
            b = Oa + 4 * db
            for j in range(2):
                A("v_cvt_pk_bf16_f32 v%d, v%d, v%d" % (b + j, b + 2 * j, b + 2 * j + 1))
            A("buffer_store_dwordx2 %s, v%d, %s, s%d offen offset:%d" % (vr(b, 2), vSt, sr(sO_, 4), sSt, 32 * db))
        A("s_waitcnt vmcnt(0)")
        A("s_add_u32 s%d, s%d, 1" % (sBlk, sBlk))
        A("s_cmp_lt_u32 s%d, s%d" % (sBlk, sj + 3))
        A("s_cbranch_scc1 L_slow_blk")
        A("s_cmp_lg_u32 s%d, 0" % sJob)
        A("s_cbranch_scc1 L_end")
        A("s_mov_b32 s%d, 1" % sJob)
        for j in range(5):
            A("s_mov_b32 s%d, s%d" % (sj + j, sJ2 + j))
        A("s_cmp_lg_u32 s%d, 0" % (sj + 3))
        A("s_cbranch_scc1 L_slow_job")
        A("s_branch L_end")
        return check(o, fix=True, name="slow")

    def trace_init(self):
        if not self.o.trace:
            return []
        return [I("s_lshl_b32 s92, s%d, 8" % sW), I("s_add_u32 s92, s92, %d" % TRACE), I("v_mov_b32 v61, s92")]

    def padmark(self, idx):
        return [I("s_memrealtime s[98:99]")] if self.o.padto and (self.o.padat == idx or idx == 0) else []

    def stamp(self, idx):
        if not self.o.stamp:
            return self.padmark(idx) if idx else []
        return [I("s_memtime s[94:95]"), I("s_memrealtime s[96:97]"), I("s_waitcnt lgkmcnt(0)"),
                I("v_writelane_b32 v62, s94, %d" % idx), I("v_writelane_b32 v63, s96, %d" % idx)]

    def kernel(self, table):
        o = self.o
        out = []
        A = lambda s: out.append(I(s))
        A("s_cmp_ge_u32 s2, 256")
        A("s_cbranch_scc1 L_end")
        out += self.stamp(0)
        out += self.padmark(0)
        A("s_load_dwordx4 %s, s[0:1], 0" % sr(sQp, 4))
        A("s_load_dwordx2 %s, s[0:1], 16" % sr(sVp, 2))
        A("s_getpc_b64 %s" % sr(sTab, 2))
        A("L_pc:")
        A("s_lshr_b32 s%d, s2, 3" % sTmp)
        A("s_lshl_b32 s%d, s%d, 4" % (sT2, sTmp))
        A("s_add_u32 s%d, s%d, L_table-L_pc" % (sT2, sT2))
        A("s_add_u32 s%d, s%d, s%d" % (sTab + 2, sTab, sT2))
        A("s_addc_u32 s%d, s%d, 0" % (sTab + 3, sTab + 1))
        A("s_load_dwordx4 %s, %s, 0" % (sr(sTd, 4), sr(sTab + 2, 2)))
        A("s_load_dwordx2 %s, s[0:1], 32" % sr(sO_, 2))
        early, late = self.addr_setup()
        if o.codepf:
            A("s_lshl_b32 s%d, s%d, 12" % (sT2, sTmp))
            A("v_min_u32 v%d, 31, v0" % vT4)
            A("v_lshl_add_u32 v%d, v%d, 7, s%d" % (vT4, vT4, sT2))
            A("v_min_u32 v%d, L_slow-L_pc-8, v%d" % (vT4, vT4))
            A("global_load_dword v%d, v%d, %s" % (vT4 + 4, vT4, sr(sTab, 2)))
        out += early
        A("s_mov_b32 s%d, 0x20000" % (sA + 3))
        A("s_mov_b32 s%d, 0x20000" % (sB + 3))
        A("s_mul_i32 s%d, s%d, %d" % (sWb, sW, WREG))
        A("s_and_b32 s%d, s2, 7" % sTmp)
        A("s_lshl_b32 s%d, s%d, 9" % (sTmp, sTmp))
        A("s_mov_b32 m0, s%d" % sWb)
        if o.stamp == 4:
            A("s_memrealtime s[90:91]")
        A("s_waitcnt lgkmcnt(0)")
        if o.stamp == 4:
            A("s_memrealtime s[92:93]")
        A("s_add_u32 s%d, s%d, %d" % (sQp2, sQp, 32 * 4096 - V0OFF))
        A("s_addc_u32 s%d, s%d, 0" % (sQp2 + 1, sQp + 1))
        d1a, d1b = self.decode_job(sTd, sTd + 1, sJ1)
        out += d1a + self.srd_q() + [I("s_mov_b32 s%d, s%d" % (sA + 2, sJ1 + 2)), I("s_mov_b32 s%d, s%d" % (sQoff, sJ1))]
        out += self.head_dmas(0, "q")
        if o.stamp == 4:
            A("s_memrealtime s[98:99]")
        A("s_sub_u32 s%d, s%d, %d" % (sVp, sVp, V0OFF))
        A("s_subb_u32 s%d, s%d, 0" % (sVp + 1, sVp + 1))
        out += d1b
        A("s_sub_u32 s%d, s%d, 1" % (sSoff, sJ1 + 4))
        A("s_lshl_b32 s%d, s%d, 17" % (sSoff, sSoff))
        A("s_add_u32 s%d, s%d, s%d" % (sSoff, sSoff, sJ1 + 1))
        out += self.srd_kv() + self.head_dmas(1, "kv")
        out += self.srd_q() + self.head_dmas(2, "q") if o.kv1pos else self.head_dmas(2, "kv")
        if o.stamp == 4:
            A("s_memrealtime s[100:101]")
        if not o.lateinhead:
            out += self.late_setup() + [I("s_waitcnt lgkmcnt(0)")]
        A("s_bfe_u32 s%d, s%d, 0x4000d" % (sT2, sTd))
        out += self.stamp(1)
        if o.stamp == 4:
            for j, r in enumerate((90, 92, 98, 100)):
                A("v_writelane_b32 v63, s%d, %d" % (r, 8 + j))
        for code in o.heads[:-1]:
            out += [I("s_cmp_eq_u32 s%d, %d" % (sT2, code)), I("s_cbranch_scc1 L_first%d" % code)]
        A("s_branch L_first%d" % o.heads[-1])
        out = check(out, fix=True, name="entry")
        loops = {}
        for nq in o.nqs:
            dec = I("s_sub_u32 s%d, s%d, 1" % (sLoop, sLoop))
            bA = self.body(nq, 1, tail=[dec, I("s_cbranch_scc1 L_last0_%d" % nq)])
            bB = self.body(nq, 0, tail=[dec, I("s_cbranch_scc0 L_loop%d" % nq)])
            check(bA + bB + bA, name="loop")
            loops[nq] = (bA, bB)
        for nq in o.nqs:
            bA, bB = loops[nq]
            mine = [c for c in o.heads if c & 7 == nq]
            if mine:
                b2 = self.body(nq, 0, entry=True)
                check(b2 + bA, name="b2-bA")
                for code in mine:
                    h = self.head(nq, code >> 3)
                    check(h + b2, name="head-b2")
                    out += [I("L_first%d:" % code)] + h
                    if code != mine[-1]:
                        out += [I("s_branch L_step2_%d" % nq)]
                out += [I("L_step2_%d:" % nq)] + self.trace_init() + self.stamp(2) + self.padmark((12, nq)) + b2 + self.stamp(5)
            if o.trace:
                tr0 = [I("s_memtime s[98:99]")]
                tr1 = [I("v_mov_b32 v60, s98"), I("ds_write_b32 v61, v60"), I("v_add_u32 v61, 4, v61")]
                bA = tr0 + bA[:-1] + tr1 + bA[-1:]
                bB = tr0 + bB[:-1] + tr1 + bB[-1:]
            out += [I(".p2align 6"), I("L_loop%d:" % nq)] + bA + bB
            for par in (1, 0):
                prev = bB if par else bA
                out += [I("L_last%d_%d:" % (par, nq))] + self.stamp(3)
                nxt = sorted({b for (a, p_, b) in o.trans if a == nq and p_ == par})
                for b in nxt[:-1]:
                    out += [I("s_cmp_eq_u32 s%d, %d" % (sNext, b)), I("s_cbranch_scc1 L_t%d_%d_%d" % (nq, par, b))]
                for b in reversed(nxt):
                    t = self.tuned(self.t_mid, nq, par, b & 7, b >> 3) if b else self.tuned(self.t_final, nq, par)
                    check(prev + t + (loops[b & 7][0] if b else []), name="loop-t-loop")
                    out += [I("L_t%d_%d_%d:" % (nq, par, b))] + self.padmark("mid0" if b else "fin0") + t + self.padmark("mid1" if b else "fin1") + self.stamp(4)
                    if b:
                        if o.stamp:
                            out += [I("v_mov_b32 v60, v62"), I("v_mov_b32 v61, v63")] + self.stamp(2) + self.stamp(5)
                        out += [I("s_branch L_loop%d" % (b & 7))]
                    else:
                        out += [I("s_branch L_fin")]
                if not nxt:
                    out += [I("s_branch L_fin")]
        A = lambda s: out.append(I(s))
        A("L_fin:")
        A("s_barrier")
        if o.stamp or o.trace:
            out += self.stamp(6)
            A("s_waitcnt vmcnt(0)")
            out += self.stamp(7)
            A("s_load_dwordx2 s[4:5], s[0:1], 48")
            A("v_mbcnt_lo_u32_b32 v70, -1, 0")
            A("v_mbcnt_hi_u32_b32 v70, -1, v70")
            A("s_mov_b32 s6, 0x1000000")
            A("s_lshl_b32 s3, s2, 2")
            A("s_add_u32 s3, s3, s%d" % sW)
            if o.stamp:
                A("s_lshl_b32 s3, s3, 10")
                A("v_lshlrev_b32 v70, 4, v70")
                A("s_waitcnt lgkmcnt(0)")
                A("buffer_store_dwordx4 v[60:63], v70, s[4:7], s3 offen")
            else:
                A("s_lshl_b32 s3, s3, 8")
                A("v_lshlrev_b32 v70, 2, v70")
                A("s_lshl_b32 s92, s%d, 8" % sW)
                A("s_add_u32 s92, s92, %d" % TRACE)
                A("v_add_u32 v71, s92, v70")
                A("ds_read_b32 v72, v71")
                A("s_waitcnt lgkmcnt(0)")
                A("buffer_store_dword v72, v70, s[4:7], s3 offen")
        if o.padto:
            out += self.padmark(6)
            A("s_waitcnt vmcnt(0)")
            out += self.padmark(7)
            A("s_waitcnt lgkmcnt(0)")
            A("L_pad:")
            A("s_sleep 32")
            A("s_memrealtime s[100:101]")
            A("s_waitcnt lgkmcnt(0)")
            A("s_sub_u32 s100, s100, s98")
            A("s_cmp_lt_u32 s100, %d" % (o.padto * 100))
            A("s_cbranch_scc1 L_pad")
        A("v_cmp_lt_u32 vcc, 0x%x, v%d" % (HI_BITS, vBad))
        A("s_nop 4")
        A("s_cbranch_vccnz L_slow")
        A("L_end:")
        A("s_endpgm")
        out += self.stubs
        out += self.slow()
        txt = [x.text for x in out]
        txt.append(".p2align 4")
        txt.append("L_table:")
        for e in table:
            txt.append(".long 0x%x, 0x%x, 0x%x, 0x%x" % tuple(e))
        return txt


SHORT = True


def jcode(s, nq):
    L = CU[s + 1] - CU[s]
    return nq + (8 if SHORT and L - 32 * ((L - 1) // 32) <= 16 else 0)


def make_table(bins):
    nxt = {}
    tab = []
    for jobs in bins:
        e = []
        for (s, hh, nq) in jobs:
            u = nxt.get((s, hh), 0)
            nxt[(s, hh)] = u + nq
            q0 = CU[s] + 64 * u
            n = (CU[s + 1] - CU[s] + 31) // 32
            e += [q0 | jcode(s, nq) << 13 | hh << 17 | n << 20, CU[s] | CU[s + 1] << 13]
        e += [0, 0] * (2 - len(jobs))
        tab.append(e)
    for s in range(8):
        for hh in range(2):
            assert nxt[(s, hh)] == (CU[s + 1] - CU[s] + 63) // 64, (s, hh, nxt)
    assert len(tab) == 32
    return tab


HEADER = """; Varlen (packed, ragged) non-causal attention forward, bf16, T=6042 H=16 D=128, 8 sequences.
;
; S^T = K Q'^T and O = P V with v_mfma_f32_16x16x32_bf16; Q' = Q * log2(e)/sqrt(D), rounded to bf16 once.
; The shift cancels exactly in O/l, so the result is the softmax as long as nothing overflows or underflows, which holds when
; 2^-40 <= l <= 2^40 (every p <= l, the largest p >= l/len).  Each row sum is checked at run time; a wave that finds one outside
; @launch grid=(256,1,1) block=(256,1,1) lds=%d
.amdgcn_target "amdgcn-amd-amdhsa--gfx950"
.text
.globl %s
.p2align 8
.type %s,@function
%s:
"""
FOOTER = """.section .rodata,"a"
.p2align 6
.amdhsa_kernel %s
  .amdhsa_next_free_vgpr 512
  .amdhsa_next_free_sgpr 102
  .amdhsa_accum_offset 256
  .amdhsa_group_segment_fixed_size 0
  .amdhsa_kernarg_size 56
  .amdhsa_user_sgpr_count 2
  .amdhsa_user_sgpr_kernarg_segment_ptr 1
  .amdhsa_system_sgpr_workgroup_id_x 1
.end_amdhsa_kernel
"""


def parse_bins(s):
    U = [(CU[i + 1] - CU[i] + 63) // 64 for i in range(8)]
    jobs = []
    for bi, b in enumerate(s.split()):
        for ji, j in enumerate(b.split("+")):
            if j[0] != "-":
                jobs.append((bi, ji, "ABCDEFGH".index(j[0]), int(j[1]), "ab".index(j[2]) if len(j) > 2 else None))
    hh = {}
    for s_ in range(8):
        mine = [j for j in jobs if j[2] == s_]
        best = None
        for mask in range(1 << len(mine)):
            if any(j[4] is not None and j[4] != (mask >> k & 1) for k, j in enumerate(mine)):
                continue
            if sum(j[3] for k, j in enumerate(mine) if mask >> k & 1) == U[s_]:
                sc = 0
                for h in (0, 1):
                    sc += len({j[1] for k, j in enumerate(mine) if (mask >> k & 1) == h})
                if best is None or sc < best[0]:
                    best = (sc, mask)
        for k, j in enumerate(mine):
            hh[j[:2]] = best[1] >> k & 1
    bins = [[] for _ in range(32)]
    for j in jobs:
        bins[j[0]].append((j[2], hh[j[:2]], j[3]))
    return bins


SCHED3 = "C5 C5 C5 C5 H5 H5 H5 H5 F5 F5 C3+A3 C3+A3 C3+A3 C3+A3 G4+B4 G4+B4 G4+B4 H3+B4 H3+E3 H3+E3 H3+D3 D4+D3 D4+D3 D4+D3 E4+G3 E4+G3 E4+G3 E4+G3 F3+A4 F3+A4 F3+F3 F3+F3"
SCHED3B = "F6 F6 C5 C5 C5 C5 H5 H5 H5 H5 F5 F5 C3+A3 C3+A3 C3+A3 C3+A3 G4+B4 G4+B4 G4+B4 H3+B4 H3+E3 H3+E3 H3+D3 D4+D3 D4+D3 D4+D3 E4+G3 E4+G3 E4+G3 E4+G3 F3+A4 F3+A4"
SCHED4 = "C5 C5 C5 C5 H5 H5 H5 H5 F5 F5 G4+A3 G4+A3 G4+A3 C3+A3 C3+B4 C3+B4 C3+B4 H3+B4 H3+E3 H3+E3 H3+D3 D3+D4 D3+D4 D3+D4 G3+E4 G3+E4 G3+E4 G3+E4 F3+A4 F3+A4 F3+F3 F3+F3"
SCHED4B = "F6 F6 C5 C5 C5 C5 H5 H5 H5 H5 F5 F5 G4+A3 G4+A3 G4+A3 C3+A3 C3+B4 C3+B4 C3+B4 H3+B4 H3+E3 H3+E3 H3+D3 D3+D4 D3+D4 D3+D4 G3+E4 G3+E4 G3+E4 G3+E4 F3+A4 F3+A4"
SCHED5 = "F6 C5 C5 C5 H5 H5 G6 B2+C4 B2+C4 B2+C4 B2+H4 A2+H4 A2+H4 A2+H4 G2+F4 G2+F4 G2+F4 G2+F4 A3+G4 A3+C3 H3+B4 H3+B4 E3+D4 E3+D4 D3+D4 D3+E4 D3+E4 D3+E4 C2+E4 F3+G3 F3+G3 A4+A4"
SCHED4C = "C5 C5 C5 C5 H5 H5 H5 H5 F5 F5 A3+G4 A3+G4 A3+G4 A3+C3 C3+B4 C3+B4 C3+B4 H3+B4 E3+H3 E3+H3 D3+H3 D3+D4 D3+D4 D3+D4 G3+E4 G3+E4 G3+E4 G3+E4 F3+A4 F3+A4 F3+F3 F3+F3"
SCHED6 = "C3+B4 C3+B4 C3+B4 F3+F3 F3+F3 H3+D3 G3+E4 G3+E4 G3+E4 G3+E4 H3+E3 H3+E3 D3+D4 D3+D4 D3+D4 H3+B4 F3+A4 F3+A4 G4+A3 G4+A3 G4+A3 C3+A3 C5 C5 C5 C5 H5 H5 H5 H5 F5 F5"
SCHED6B = "C3+B4 C3+B4 C3+B4 H3+D3 G3+E4 G3+E4 G3+E4 G3+E4 H3+E3 H3+E3 D3+D4 D3+D4 D3+D4 H3+B4 F3+A4 F3+A4 G4+A3 G4+A3 G4+A3 C3+A3 F6 F6 C5 C5 C5 C5 H5 H5 H5 H5 F5 F5"
SCHED7 = "G3+E4 D3+D4 G4+A3 C5 C3+B4 F3+A4 G4+A3 C5 G3+E4 D3+D4 G4+A3 C5 C3+B4 F3+A4 C3+A3 C5 G3+E4 D3+D4 H3+E3 H5 C3+B4 F3+F3 H3+E3 H5 G3+E4 H3+D3 F5 H5 H3+B4 F3+F3 F5 H5"
SCHED8 = "G3+E4 D3+D4 G4+A3 C5 G3+E4 D3+D4 G4+A3 C5 G3+E4 D3+D4 G4+A3 C5 G3+E4 F3+A4 C3+A3 C5 C3+B4 F3+A4 H3+E3 H5 C3+B4 F3+F3 H3+E3 H5 C3+B4 F3+F3 F5 H5 H3+B4 H3+D3 F5 H5"
SCHED9 = "G3+E4 G3+E4 D3+D4 F3+F3 C3+B4 C3+B4 F3+A4 H3+D3 G3+E4 G3+E4 D3+D4 F3+F3 C3+B4 H3+B4 F3+A4 C3+A3 C5 C5 D3+D4 H3+E3 C5 C5 H5 H3+E3 H5 H5 H5 F5 G4+A3 G4+A3 G4+A3 F5"
SA = "F6 F6 C5 C5 C5 C5 H5 H5 H5 H5 F5 F5 G4+A3 G4+A3 G4+A3 C3+A3 C3+B4 C3+B4 C3+B4 H3+B4 H3+E3 H3+E3 H3+D3 D4+D3 D4+D3 D4+D3 G3+E4 G3+E4 G3+E4 G3+E4 F3+A4 F3+A4"
SB = "F6 F6 C5 C5 C5 C5 H5 H5 H5 H5 F5 F5 A3+G4 A3+G4 A3+G4 C3+A3 C3+B4 C3+B4 C3+B4 H3+B4 H3+E3 H3+E3 H3+D3 D3+D4 D3+D4 D3+D4 G3+E4 G3+E4 G3+E4 G3+E4 F3+A4 F3+A4"
SC = "F6 F6 C5 C5 C5 C5 H5 H5 H5 H5 F5 F5 G4+A3 G4+A3 G4+A3 C3+A3 B4+C3 B4+C3 B4+C3 B4+H3 H3+E3 H3+E3 H3+D3 D3+D4 D3+D4 D3+D4 G3+E4 G3+E4 G3+E4 G3+E4 F3+A4 F3+A4"
SD = "F6 F6 C5 C5 C5 C5 H5 H5 H5 H5 F5 F5 G4+A3 G4+A3 G4+A3 C3+A3 C3+B4 C3+B4 C3+B4 H3+B4 E3+H3 E3+H3 D3+H3 D3+D4 D3+D4 D3+D4 G3+E4 G3+E4 G3+E4 G3+E4 F3+A4 F3+A4"
SE = "F6 F6 C5 C5 C5 C5 H5 H5 H5 H5 F5 F5 G4+A3 G4+A3 G4+A3 C3+A3 C3+B4 C3+B4 C3+B4 H3+B4 H3+E3 H3+E3 H3+D3 D3+D4 D3+D4 D3+D4 G3+E4 G3+E4 G3+E4 G3+E4 A4+F3 A4+F3"
Opt.sched = SCHED4B


def build(o):
    bins = parse_bins(o.sched)
    o.nqs = tuple(sorted({j[2] for b in bins for j in b}))
    global SHORT, SNAKE, SWAP
    SWAP = o.swap
    SHORT = o.short
    SNAKE = o.snake
    o.heads = tuple(sorted({jcode(b[0][0], b[0][2]) for b in bins}))
    o.trans = set()
    for b in bins:
        for k, (s_, hh, nq) in enumerate(b):
            n = (CU[s_ + 1] - CU[s_] + 31) // 32
            o.trans.add((nq, (n - 1) & 1, jcode(b[k + 1][0], b[k + 1][2]) if k + 1 < len(b) else 0))
    g = Gen(o)
    body = g.kernel(make_table(bins))
    body.append("; sched " + o.sched)
    return HEADER % (LDS_BYTES, KNAME, KNAME, KNAME) + "\n".join(body) + "\n" + FOOTER % KNAME


if __name__ == "__main__":
    o = Opt()
    path = sys.argv[1]
    for a in sys.argv[2:]:
        k, v = a.split("=")
        setattr(o, k, eval(v))
    if isinstance(o.tune, str):
        import json
        o.tune = json.load(open(o.tune))
    src = build(o)
    open(path, "w").write(src)
```
